```python
import torch

def _softmax(x, axis=-1):
    return torch.softmax(x, dim=axis)

def _gelu(x):
    return torch.nn.functional.gelu(x, approximate='tanh')

def _silu(x):
    return torch.nn.functional.silu(x)

def _sigmoid(x):
    return torch.sigmoid(x)

def _layernorm(x, axis=-1, eps=1e-05):
    m = x.mean(dim=axis, keepdim=True)
    v = x.var(dim=axis, keepdim=True, unbiased=False)
    return (x - m) / torch.sqrt(v + eps)

def _scatter_add(tgt, idx, src, axis=0):
    return tgt.clone().index_add_(axis, idx, src)

def _segment_sum(src, seg, n):
    out = torch.zeros((n,) + src.shape[1:], dtype=src.dtype)
    return out.index_add_(0, seg, src)

def _pad(x, pw):
    flat = tuple((v for pair in reversed(pw) for v in pair))
    return torch.nn.functional.pad(x, flat)
kernel_name = 'adaLN_cond__memory_aug_recurrent_mem_tr__moe_arch_mod__prompt'

def setup_inputs():

    _w = lambda a: (lambda t: t.to(torch.bfloat16) if t.is_floating_point() else t)(torch.as_tensor(a))

    def _A_setup():
        B, S, Dm = (1, 2048, 512)
        H, Dh = (32, 128)
        M, seg = (8, 32)
        seg = min(seg, S)
        S = S // seg * seg
        return {'x': _w((lambda *s: torch.randn(*s, dtype=torch.bfloat16) * 0.05)(B, S, Dm)), 'mem0': _w((lambda *s: torch.randn(*s, dtype=torch.bfloat16) * 0.4)(B, M, Dm)), 'Wq': _w((lambda *s: torch.randn(*s, dtype=torch.bfloat16) * 3.2)(Dm, H, Dh) * Dm ** (-0.5)), 'Wk': _w((lambda *s: torch.randn(*s, dtype=torch.bfloat16) * 3.2)(Dm, H, Dh) * Dm ** (-0.5)), 'Wv': _w((lambda *s: torch.randn(*s, dtype=torch.bfloat16) * 0.4)(Dm, H, Dh) * Dm ** (-0.5)), 'Wo': _w((lambda *s: torch.randn(*s, dtype=torch.bfloat16) * 0.4)(H, Dh, Dm) * (H * Dh) ** (-0.5)), 'seg_len': seg}
    _A_in = _A_setup()

    def _B_setup():
        B, S, D, F, C = (1, 2048, 512, 1376, 2)
        return {'x': _w((lambda *s: torch.randn(*s, dtype=torch.bfloat16) * 0.05)(B, S, D)), 'w_r': _w((lambda *s: torch.randn(*s, dtype=torch.bfloat16) * 0.05)(D)), 'w_gate': _w((lambda *s: torch.randn(*s, dtype=torch.bfloat16) * 0.05)(D, F)), 'w_up': _w((lambda *s: torch.randn(*s, dtype=torch.bfloat16) * 0.05)(D, F)), 'w_down': _w((lambda *s: torch.randn(*s, dtype=torch.bfloat16) * 0.05)(F, D))}
    _B_in = _B_setup()
    return {'A_x': _A_in['x'], 'A_mem0': _A_in['mem0'], 'A_Wq': _A_in['Wq'], 'A_Wk': _A_in['Wk'], 'A_Wv': _A_in['Wv'], 'A_Wo': _A_in['Wo'], 'A_seg_len': _A_in['seg_len'], 'B_x': _B_in['x'], 'B_w_r': _B_in['w_r'], 'B_w_gate': _B_in['w_gate'], 'B_w_up': _B_in['w_up'], 'B_w_down': _B_in['w_down'], 'c': _w((lambda *s: torch.randn(*s, dtype=torch.bfloat16) * 0.05)(1, 512) * 8.0), 'w_mod': _w((lambda *s: torch.randn(*s, dtype=torch.bfloat16) * 0.05)(512, 6 * 512) * 512 ** (-0.5) * 8.0)}

def reference(A_x, A_mem0, A_Wq, A_Wk, A_Wv, A_Wo, A_seg_len, B_x, B_w_r, B_w_gate, B_w_up, B_w_down, c, w_mod):

    def _A_ref(x, mem0, Wq, Wk, Wv, Wo, seg_len):
        B, S, Dm = x.shape
        H, Dh = (Wq.shape[1], Wq.shape[2])
        M = mem0.shape[1]
        scale = Dh ** (-0.5)
        n_seg = S // seg_len
        L = M + seg_len
        idx = torch.arange(L)
        mask = (idx[:, None] < M) | (idx[:, None] >= idx[None, :])
        mem = mem0
        outs = []
        for s in range(n_seg):
            xs = x[:, s * seg_len:(s + 1) * seg_len, :].clone()
            h = torch.concatenate([mem, xs], axis=1)
            q = torch.einsum('btd,dhe->bhte', h, Wq)
            k = torch.einsum('btd,dhe->bhte', h, Wk)
            v = torch.einsum('btd,dhe->bhte', h, Wv)
            scores = torch.einsum('bhqe,bhke->bhqk', q, k) * scale
            scores = torch.where(mask[None, None], scores, -1000000000.0)
            p = _softmax(scores, axis=-1)
            o = torch.einsum('bhqk,bhke->bhqe', p, v)
            o = torch.einsum('bhte,hed->btd', o, Wo)
            mem = o[:, :M, :].clone()
            outs.append(o[:, M:, :])
        return torch.concatenate(outs, axis=1)

    def _B_ref(x, w_r, w_gate, w_up, w_down):
        B, S, D = x.shape
        C = 2
        r = x @ w_r
        idx = torch.argsort(-r, axis=-1)[:, :C]
        idx_e = (lambda x, n, axis: torch.repeat_interleave(x, n, dim=axis))(idx.reshape(B, C, 1), D, axis=2)
        x_sel = (lambda x, i, axis: torch.take_along_dim(x, i, dim=axis))(x, idx_e, axis=1)
        g = _silu(x_sel @ w_gate)
        u = x_sel @ w_up
        y = g * u @ w_down
        r_sel = _sigmoid((lambda x, i, axis: torch.take_along_dim(x, i, dim=axis))(r, idx, axis=1))
        y = y * r_sel.reshape(B, C, 1)
        b_off = (torch.arange(B) * S).reshape(B, 1)
        flat_idx = (idx + b_off).reshape(B * C)
        zero = (x * 0.0).reshape(B * S, D)
        upd = _scatter_add(zero, flat_idx, y.reshape(B * C, D), axis=0)
        return x + upd.reshape(B, S, D)
    x = A_x
    mod = (_silu(c) @ w_mod).reshape(c.shape[0], 6, 1, -1)
    sa, ca, ga, sb, cb, gb = (mod[:, 0].clone(), mod[:, 1].clone(), mod[:, 2].clone(), mod[:, 3].clone(), mod[:, 4].clone(), mod[:, 5].clone())
    h = _layernorm(x, axis=-1) * (1 + ca) + sa
    x = x + ga * _A_ref(h, A_mem0, A_Wq, A_Wk, A_Wv, A_Wo, A_seg_len)
    h = _layernorm(x, axis=-1) * (1 + cb) + sb
    x = x + gb * _B_ref(h, B_w_r, B_w_gate, B_w_up, B_w_down)
    return x
```

```python
import re

def _expand(tok):
    tok = tok.strip()
    tok = tok.lstrip('-')
    m = re.match(r'^abs\((.*)\)$', tok)
    if m: tok = m.group(1)
    m = re.match(r'^\|(.*)\|$', tok)
    if m: tok = m.group(1)
    m = re.match(r'^([vas])(\d+)$', tok)
    if m: return [(m.group(1), int(m.group(2)))]
    m = re.match(r'^([vas])\[(\d+):(\d+)\]$', tok)
    if m: return [(m.group(1), i) for i in range(int(m.group(2)), int(m.group(3)) + 1)]
    if tok == 'vcc': return [('s', 106), ('s', 107)]
    if tok == 'vcc_lo': return [('s', 106)]
    if tok == 'vcc_hi': return [('s', 107)]
    if tok == 'exec': return [('s', 126), ('s', 127)]
    if tok == 'm0': return [('s', 124)]
    return []

def R(kind, lo, n=1):
    return f"{kind}{lo}" if n == 1 else f"{kind}[{lo}:{lo+n-1}]"
def V(lo, n=1): return R('v', lo, n)
def A(lo, n=1): return R('a', lo, n)
def S(lo, n=1): return R('s', lo, n)

TRANS = ('v_exp_f32', 'v_log_f32', 'v_rcp_f32', 'v_rsq_f32', 'v_sqrt_f32', 'v_sin_f32', 'v_cos_f32')

class Ins:
    __slots__ = ('text', 'mn', 'cls', 'wr', 'rd', 'passes', 'srcc', 'ab', 'states', 'dpp', 'wide_store_data')

class Asm:
    def __init__(self):
        self.lines = []
        self.hist = []
        self.nlabel = 0
        self.ninstr = 0
        self.nops_inserted = 0

    def label(self, name):
        self.lines.append(f"{name}:")
    def newlabel(self, base='L'):
        self.nlabel += 1
        return f"{base}_{self.nlabel}"
    def comment(self, t):
        self.lines.append(f"    ; {t}")
    def raw(self, t):
        self.lines.append(t)

    def _classify(self, text):
        ins = Ins()
        ins.text = text
        body = text.split(';')[0].strip()
        parts = body.split(None, 1)
        mn = parts[0]
        ins.mn = mn
        rest = parts[1] if len(parts) > 1 else ''
        ops = []
        cur = ''; depth = 0
        for ch in rest:
            if ch in '[(': depth += 1
            if ch in '])': depth -= 1
            if ch == ',' and depth == 0:
                ops.append(cur.strip()); cur = ''
            else: cur += ch
        if cur.strip(): ops.append(cur.strip())
        mods = ''
        if ops:
            l = ops[-1].split(None, 1)
            ops[-1] = l[0]
            if len(l) > 1: mods = l[1]
        ins.wr = set(); ins.rd = set(); ins.passes = 0; ins.srcc = set(); ins.ab = set(); ins.states = 1
        ins.dpp = ('quad_perm' in mods or 'row_' in mods or mn.endswith('_dpp'))
        ins.wide_store_data = set()
        ex = lambda t: set(_expand(t))
        if mn.startswith('v_mfma') or mn.startswith('v_smfmac'):
            ins.cls = 'mfma'
            if '32x32' in mn: ins.passes = 8
            elif '16x16' in mn: ins.passes = 4
            else: raise ValueError(mn)
            if mn.endswith('_f32') and 'x4_f32' in mn: ins.passes = 8
            ins.wr = ex(ops[0]); ins.ab = ex(ops[1]) | ex(ops[2])
            if mn.startswith('v_smfmac'):
                ins.ab |= ex(ops[3]); ins.srcc = ex(ops[0])
            else:
                ins.srcc = ex(ops[3])
            ins.rd = ins.ab | ins.srcc
        elif mn.startswith('v_'):
            ins.cls = 'valu'
            if mn.startswith('v_cmp'):
                ins.wr = ex(ops[0]);
                for o in ops[1:]: ins.rd |= ex(o)
            elif mn.startswith('v_permlane') and 'swap' in mn:
                ins.wr = ex(ops[0]) | ex(ops[1]); ins.rd = set(ins.wr)
            elif mn in ('v_add_co_u32', 'v_sub_co_u32', 'v_addc_co_u32', 'v_subb_co_u32'):
                ins.wr = ex(ops[0]) | ex(ops[1])
                for o in ops[2:]: ins.rd |= ex(o)
            else:
                ins.wr = ex(ops[0])
                for o in ops[1:]: ins.rd |= ex(o)
                if mn.startswith('v_fmac') or mn.startswith('v_dot2c') or mn.startswith('v_pk_fmac') or ins.dpp or mn.startswith('v_writelane'):
                    ins.rd |= ins.wr
                if mn.startswith('v_cndmask') and len(ops) == 3:
                    ins.rd |= ex('vcc')
        elif mn.startswith('ds_'):
            ins.cls = 'ds'
            if mn.startswith('ds_read') or mn.startswith('ds_bpermute') or mn.startswith('ds_permute') or mn.startswith('ds_swizzle') or ('_rtn' in mn):
                ins.wr = ex(ops[0])
                for o in ops[1:]: ins.rd |= ex(o)
            else:
                for o in ops: ins.rd |= ex(o)
        elif mn.startswith('global_') or mn.startswith('buffer_') or mn.startswith('flat_'):
            ins.cls = 'vmem'
            if 'load_lds' in mn or ' lds' in (' ' + mods):
                for o in ops: ins.rd |= ex(o)
                ins.rd |= ex('m0')
                ins.cls = 'vmem_lds'
            elif '_load' in mn:
                ins.wr = ex(ops[0])
                for o in ops[1:]: ins.rd |= ex(o)
            elif '_atomic' in mn:
                if 'sc0' in mods and mn.startswith('global_'):
                    ins.wr = ex(ops[0])
                    for o in ops[1:]: ins.rd |= ex(o)
                else:
                    for o in ops: ins.rd |= ex(o)
            elif '_store' in mn:
                for o in ops: ins.rd |= ex(o)
                if 'x4' in mn or 'x3' in mn:
                    d = ops[1] if mn.startswith('global_') else ops[0]
                    ins.wide_store_data = ex(d)
            else:
                pass
        elif mn.startswith('s_'):
            ins.cls = 'salu'
            if mn == 's_nop':
                ins.states = int(ops[0], 0) + 1
            elif mn.startswith('s_cmp') or mn.startswith('s_cbranch') or mn in ('s_branch', 's_barrier', 's_waitcnt', 's_endpgm', 's_sleep', 's_setprio', 's_bitcmp1_b32', 's_bitcmp0_b32'):
                for o in ops: ins.rd |= ex(o)
            else:
                if ops: ins.wr = ex(ops[0])
                for o in ops[1:]: ins.rd |= ex(o)
                if 'saveexec' in mn: ins.wr |= ex('exec')
        else:
            raise ValueError("unknown instr " + text)
        return ins

    def _need(self, p, c):
        need = 0
        isv = lambda s: {r for r in s if r[0] in 'va'}
        iss = lambda s: {r for r in s if r[0] == 's'}
        if p.cls == 'valu':
            if c.cls == 'mfma' and (isv(p.wr) & c.rd): need = max(need, 2)
            if c.cls == 'valu':
                if p.mn in TRANS and (p.wr & c.rd): need = max(need, 1)
                if (c.mn.startswith('v_permlane') or c.dpp) and (isv(p.wr) & c.rd): need = max(need, 2)
                if (c.mn.startswith('v_readlane') or c.mn.startswith('v_readfirstlane')) and (isv(p.wr) & c.rd): need = max(need, 1)
                if iss(p.wr) & c.rd: need = max(need, 4 if c.mn.startswith(('v_readlane', 'v_writelane')) else 2)
            if p.mn in TRANS and c.cls in ('vmem', 'ds', 'vmem_lds', 'mfma') and (p.wr & c.rd): need = max(need, 2)
            if c.cls in ('vmem', 'vmem_lds') and (iss(p.wr) & c.rd): need = max(need, 5)
            if c.cls == 'salu' and (iss(p.wr) & c.rd): need = max(need, 1)
        if p.cls == 'mfma':
            t = {2: (5, 4, 1), 4: (8, 6, 3), 8: (12, 10, 7), 16: (20, 18, 15)}[p.passes]
            if c.cls == 'mfma':
                if p.wr & c.ab: need = max(need, t[0])
                if p.wr & c.srcc:
                    if p.wr == c.srcc and p.mn == c.mn: need = max(need, 0)
                    else: need = max(need, t[1])
                elif p.wr & c.wr: need = max(need, t[0])
            else:
                if p.wr & (c.rd | c.wr): need = max(need, t[0])
                if c.cls == 'valu' and (p.srcc & c.wr): need = max(need, t[2])
        if p.wide_store_data and (p.wide_store_data & c.wr):
            need = max(need, 2 if c.cls == 'valu' else 1)
        if p.cls == 'salu' and (('s', 124) in p.wr) and c.cls == 'vmem_lds': need = max(need, 1)
        return need

    def __call__(self, text):
        ins = self._classify(text)
        dist = 0; pad = 0
        for p in reversed(self.hist):
            n = self._need(p, ins)
            if n > dist: pad = max(pad, n - dist)
            dist += p.states
            if dist > 24: break
        while pad > 0:
            k = min(pad, 16)
            nop = self._classify(f"s_nop {k-1}")
            self.hist.append(nop); self.lines.append(f"    s_nop {k-1}"); self.nops_inserted += 1
            pad -= k
        self.hist.append(ins)
        if len(self.hist) > 64: self.hist = self.hist[-40:]
        self.lines.append("    " + text)
        self.ninstr += 1

    def flush_hazards(self, n=20):
        dist = 0; pad = 0
        for p in reversed(self.hist):
            worst = 0
            if p.cls == 'mfma': worst = {2: 5, 4: 8, 8: 12, 16: 20}[p.passes]
            elif p.cls == 'valu': worst = 5 if any(r[0] == 's' for r in p.wr) else 2
            elif p.wide_store_data: worst = 2
            elif p.cls == 'salu' and ('s', 124) in p.wr: worst = 1
            if worst > dist: pad = max(pad, worst - dist)
            dist += p.states
            if dist > 24: break
        while pad > 0:
            k = min(pad, 16)
            self(f"s_nop {k-1}")
            pad -= k
        self.hist = []

    def text(self):
        return "\n".join(self.lines) + "\n"

class Cnt:
    def __init__(self, a):
        self.a = a; self.l = []; self.v = []
    def lds(self, text, tag=None):
        self.a(text); self.l.append(tag)
    def vm(self, text, tag=None):
        self.a(text); self.v.append(tag)
    def wait_l(self, tag):
        if tag not in self.l: return
        i = len(self.l) - 1 - self.l[::-1].index(tag)
        n = len(self.l) - 1 - i
        self.a(f"s_waitcnt lgkmcnt({min(n,15)})")
        self.l = self.l[i+1:] if n <= 15 else self.l[len(self.l)-15:]
    def wait_v(self, tag):
        if tag not in self.v: return
        i = len(self.v) - 1 - self.v[::-1].index(tag)
        n = len(self.v) - 1 - i
        self.a(f"s_waitcnt vmcnt({min(n,63)})")
        self.v = self.v[i+1:]
    def all_l(self):
        self.a("s_waitcnt lgkmcnt(0)"); self.l = []
    def all_v(self):
        self.a("s_waitcnt vmcnt(0)"); self.v = []
    def all(self):
        self.a("s_waitcnt vmcnt(0) lgkmcnt(0)"); self.l = []; self.v = []

import struct
def f2u(x): return struct.unpack('<I', struct.pack('<f', x))[0]
def sadd64(a, dst, src, off):
    a(f"s_add_u32 s{dst}, s{src}, {off}")
    a(f"s_addc_u32 s{dst+1}, s{src+1}, 0")
```

```python
from asmlib import *
from layout import *
S_XCC=39; S_G=3
sT=70
F_HALL = F_HRDY

def load_args(a):
    for (reg, off) in ((S_WS,K_WS),(S_DBG,K_DBG),(S_WQ,K_WQ),(S_WK,K_WK),(S_WV,K_WV),(S_WO,K_WO),(S_MEM0,K_MEM0),(S_X,K_X),(S_OUT,K_OUT),
                       (S_WMOD,K_WMOD),(S_C,K_C),(S_WR,K_WR),(S_WG,K_WG),(S_WU,K_WU),(S_WD,K_WD)):
        a(f"s_load_dwordx2 s[{reg}:{reg+1}], s[0:1], {off}")

def startup(a, force_fallback=False):
    a("s_cmp_ge_u32 s2, 256")
    a("s_cbranch_scc1 L_exit")
    load_args(a)
    a(f"s_mov_b32 s{S_WGID}, s2")
    a(f"s_getreg_b32 s{S_XCC}, hwreg(HW_REG_XCC_ID, 0, 4)")
    a("v_lshrrev_b32 v1, 6, v0")
    a(f"v_readfirstlane_b32 s{S_WAVE}, v1")
    a(f"s_min_u32 s{S_XCC}, s{S_XCC}, 9")
    a("s_waitcnt lgkmcnt(0)")
    a(f"s_lshl_b32 s{sT}, s{S_XCC}, 2")
    a(f"v_mov_b32 v1, s{sT}")
    a("v_mov_b32 v2, 1")
    a("v_mov_b32 v8, 0")
    a(f"s_cmp_lg_u32 s{S_WAVE}, 0")
    a("s_cbranch_scc1 L_st1")
    a("s_mov_b64 exec, 1")
    a(f"global_atomic_add v8, v1, v2, s[{S_DBG}:{S_DBG+1}] sc0")
    a("s_mov_b64 exec, -1")
    a.label("L_st1")
    a("v_and_b32 v3, 63, v0")
    a(f"s_lshl_b32 s{sT}, s{S_WGID}, 8")
    a(f"v_lshl_add_u32 v4, v3, 2, s{sT}")
    a(f"s_lshl_b32 s{sT+1}, s{S_WGID}, 11")
    a(f"s_add_u32 s{sT+1}, s{sT+1}, {WS_PB}")
    a(f"v_lshl_add_u32 v5, v0, 3, s{sT+1}")
    a("v_mov_b32 v6, 1")
    a("v_mov_b32 v7, 1")
    a(f"global_store_dwordx2 v5, v[6:7], s[{S_WS}:{S_WS+1}] sc1")
    a(f"s_cmp_lg_u32 s{S_WAVE}, 1")
    a("s_cbranch_scc1 L_st2")
    a("v_mov_b32 v6, 0")
    a(f"global_store_dword v4, v6, s[{S_WS}:{S_WS+1}] sc1")
    a.label("L_st2")
    a(f"s_cmp_lg_u32 s{S_WAVE}, 2")
    a("s_cbranch_scc1 L_st3")
    a("v_mov_b32 v6, -1")
    a(f"v_add_u32 v4, {WS_MB}, v4")
    a(f"global_store_dword v4, v6, s[{S_WS}:{S_WS+1}] sc1")
    a.label("L_st3")
    a("s_waitcnt vmcnt(0)")
    a("s_barrier")
    a(f"s_cmp_lg_u32 s{S_WAVE}, 0")
    a("s_cbranch_scc1 L_st4")
    a("s_mov_b64 exec, 1")
    a("v_mov_b32 v1, 40")
    a(f"global_atomic_add v9, v1, v2, s[{S_DBG}:{S_DBG+1}] sc0")
    a("v_mov_b32 v1, 0")
    a("s_waitcnt vmcnt(0)")
    a("ds_write_b64 v1, v[8:9]")
    a("s_mov_b64 exec, -1")
    a("s_waitcnt lgkmcnt(0)")
    a.label("L_st4")
    a("s_barrier")
    a("v_mov_b32 v1, 0")
    a("ds_read_b64 v[8:9], v1")
    a("s_waitcnt lgkmcnt(0)")
    a(f"v_readfirstlane_b32 s{S_VR}, v8")
    a(f"v_readfirstlane_b32 s{S_G}, v9")
    a(f"s_mov_b32 s{S_VX}, s{S_XCC}")
    a("s_barrier")

def decide(a, tagname, force_fallback=False):
    l = a.newlabel("dec")
    a("v_mov_b32 v1, 0")
    a(f"s_mov_b32 s{sT}, 0")
    a.label(l)
    a(f"global_load_dword v2, v1, s[{S_DBG}:{S_DBG+1}] offset:40 sc1")
    a(f"s_add_u32 s{sT}, s{sT}, 1")
    a(f"s_cmp_gt_u32 s{sT}, 0x400000")
    a("s_cbranch_scc1 L_fail")
    a("s_waitcnt vmcnt(0)")
    a("v_cmp_ne_u32 vcc, 0x100, v2")
    a(f"s_cbranch_vccnz {l}")
    a(f"global_load_dwordx4 v[4:7], v1, s[{S_DBG}:{S_DBG+1}] sc1")
    a(f"global_load_dwordx4 v[8:11], v1, s[{S_DBG}:{S_DBG+1}] offset:16 sc1")
    a("s_waitcnt vmcnt(0)")
    for r in range(4, 12): a(f"v_xor_b32 v{r}, 32, v{r}")
    a("v_or3_b32 v4, v4, v5, v6")
    a("v_or3_b32 v4, v4, v7, v8")
    a("v_or3_b32 v4, v4, v9, v10")
    a("v_or_b32 v4, v4, v11")
    a(f"v_readfirstlane_b32 s{S_MODE}, v4")
    a(f"s_cmp_lg_u32 s{S_MODE}, 0")
    a(f"s_cselect_b32 s{S_MODE}, 1, 0")
    if force_fallback:
        a(f"s_mov_b32 s{S_MODE}, 1")

def poll_counter(a, off, val, vt=1, op="lt"):
    l = a.newlabel("poll")
    a(f"v_mov_b32 v{vt}, {off}")
    a(f"s_mov_b32 s{sT+9}, 0")
    a.label(l)
    a(f"global_load_dword v{vt+1}, v{vt}, s[{S_WS}:{S_WS+1}] sc1")
    a(f"s_add_u32 s{sT+9}, s{sT+9}, 1")
    a(f"s_cmp_gt_u32 s{sT+9}, 0x400000")
    a("s_cbranch_scc1 L_fail")
    a("s_waitcnt vmcnt(0)")
    a(f"v_cmp_gt_u32 vcc, {val}, v{vt+1}")
    a(f"s_cbranch_vccnz {l}")

def signal_add(a, off, vt=1):
    l = a.newlabel("sig")
    a(f"s_cmp_lg_u32 s{S_WAVE}, 0")
    a(f"s_cbranch_scc1 {l}")
    a(f"v_mov_b32 v{vt}, {off}")
    a(f"v_mov_b32 v{vt+1}, 1")
    a("s_mov_b64 exec, 1")
    a(f"global_atomic_add v{vt}, v{vt+1}, s[{S_WS}:{S_WS+1}]")
    a("s_mov_b64 exec, -1")
    a.label(l)

def lane_ids(a, l, g, c):
    a(f"v_mbcnt_lo_u32_b32 v{l}, -1, 0")
    a(f"v_mbcnt_hi_u32_b32 v{l}, -1, v{l}")
    a(f"v_lshrrev_b32 v{g}, 4, v{l}")
    a(f"v_and_b32 v{c}, 15, v{l}")

def stage_rows(a, sbase, row_shift_or_stride, nrows, lds_base, v0, clamp12=False):
    stride = row_shift_or_stride
    l=v0; g=v0+1; c=v0+2; t=v0+3; o0=v0+4; o1=v0+5
    lane_ids(a, l, g, c)
    a(f"v_lshrrev_b32 v{t}, 1, v{c}")
    a(f"v_xor_b32 v{t}, v{t}, v{g}")
    for (o, x) in ((o0, 0), (o1, 4)):
        a(f"v_xor_b32 v{o}, {x}, v{t}")
        if clamp12:
            a(f"v_subrev_u32 v{l}, 2, v{o}")
            a(f"v_cmp_lt_u32 vcc, 5, v{o}")
            a(f"v_cndmask_b32 v{o}, v{o}, v{l}, vcc")
        a(f"v_lshlrev_b32 v{o}, 5, v{o}")
        a(f"v_and_b32 v{l}, 1, v{c}")
        a(f"v_lshl_add_u32 v{o}, v{l}, 4, v{o}")
        a(f"s_mov_b32 s{sT}, {stride}")
        a(f"v_mad_u32_u24 v{o}, v{g}, s{sT}, v{o}")
    per = nrows // 4
    a(f"s_mul_i32 s{sT}, s{S_WAVE}, {per*stride}")
    a(f"s_add_u32 s{sT+2}, s{sbase}, s{sT}")
    a(f"s_addc_u32 s{sT+3}, s{sbase+1}, 0")
    a(f"s_mul_i32 s{sT+1}, s{S_WAVE}, {per*256}")
    a(f"s_add_u32 s{sT+1}, s{sT+1}, {lds_base}")
    n = per // 4
    for i in range(n):
        a(f"s_add_u32 m0, s{sT+1}, {i*1024}")
        a(f"global_load_lds_dwordx4 v{o1 if (i>>1)&1 else o0}, s[{sT+2}:{sT+3}]")
        if i < n-1:
            a(f"s_add_u32 s{sT+2}, s{sT+2}, {4*stride}")
            a(f"s_addc_u32 s{sT+3}, s{sT+3}, 0")
    return n

def tr_base(a, dst, v0, unit_expr=None):
    l=v0; g=v0+1; c=v0+2; t=v0+3
    lane_ids(a, l, g, c)
    a(f"v_lshrrev_b32 v{t}, 2, v{c}")
    a(f"v_lshl_add_u32 v{dst}, v{g}, 3, v{t}")
    a(f"v_lshlrev_b32 v{dst}, 8, v{dst}")
    a(f"v_and_b32 v{l}, 1, v{g}")
    a(f"v_lshl_add_u32 v{dst+1}, v{l}, 2, v{t}")
    a(f"v_and_b32 v{l}, 3, v{c}")
    return l

def rnd_pair(a, x, tmp=None):
    a(f"v_cvt_pk_bf16_f32 v{x+1}, v{x}, v{x+1}")
    a(f"v_lshlrev_b32 v{x}, 16, v{x+1}")
    a(f"v_and_b32 v{x+1}, 0xffff0000, v{x+1}")
def rnd1(a, x):
    a(f"v_cvt_pk_bf16_f32 v{x}, v{x}, v{x}")
    a(f"v_lshlrev_b32 v{x}, 16, v{x}")

LOG2E = 1.4426950408889634
def mod_stage(a):
    L_S = 131072; L_Z = L_S + 1024
    a(f"s_mul_i32 s{sT+6}, s{S_VR}, 192")
    a(f"s_add_u32 s{sT+6}, s{S_WMOD}, s{sT+6}")
    a(f"s_addc_u32 s{sT+7}, s{S_WMOD+1}, 0")
    a("v_lshlrev_b32 v20, 2, v0")
    a(f"global_load_dword v21, v20, s[{S_C}:{S_C+1}]")
    n = stage_rows(a, sT+6, 6144, 512, 0, 2, clamp12=True)
    a(f"s_waitcnt vmcnt({n})")
    a("v_lshlrev_b32 v22, 16, v21")
    a("v_and_b32 v23, 0xffff0000, v21")
    a(f"s_mov_b32 s{sT}, {f2u(-LOG2E)}")
    for r in (22, 23):
        a(f"v_mul_f32 v{r+2}, s{sT}, v{r}")
        a(f"v_exp_f32 v{r+2}, v{r+2}")
        a(f"v_add_f32 v{r+2}, 1.0, v{r+2}")
        a(f"v_rcp_f32 v{r+2}, v{r+2}")
        a(f"v_mul_f32 v{r}, v{r}, v{r+2}")
    a("v_cvt_pk_bf16_f32 v22, v22, v23")
    a(f"v_add_u32 v20, {L_S}, v20")
    a("v_mov_b32 v23, 0")
    a("ds_write_b32 v20, v22")
    a("ds_write_b32 v20, v23 offset:1024")
    cp = tr_base(a, 10, 2)
    a(f"v_lshl_add_u32 v10, v{cp}, 3, v10")
    a(f"v_lshlrev_b32 v12, 4, v3")
    a(f"v_add_u32 v12, {L_S}, v12")
    a(f"v_mov_b32 v13, {L_Z}")
    a("v_cmp_eq_u32 vcc, 0, v4")
    a("v_cndmask_b32 v12, v13, v12, vcc")
    a("s_waitcnt vmcnt(0) lgkmcnt(0)")
    a("s_barrier")
    for ks in range(16):
        a(f"ds_read_b128 v[{32+4*ks}:{35+4*ks}], v12 offset:{64*ks}")
    for rep in range(2):
        lskip = a.newlabel("modskip")
        if rep == 1:
            a(f"s_cmp_ge_u32 s{S_WAVE}, 2")
            a(f"s_cbranch_scc1 {lskip}")
        a(f"s_add_u32 s{sT}, s{S_WAVE}, {4*rep}")
        a(f"v_xor_b32 v14, s{sT}, v11")
        a("v_lshl_add_u32 v14, v14, 5, v10")
        a("v_add_u32 v15, 0x10000, v14")
        for half in range(2):
            for k8 in range(8):
                for m in range(2):
                    a(f"ds_read_b64_tr_b16 v[{96+4*k8+2*m}:{97+4*k8+2*m}], v{14+half} offset:{k8*8192+m*1024}")
            a("s_waitcnt lgkmcnt(0)")
            for k8 in range(8):
                ks = half*8 + k8
                c = "0" if ks == 0 else "v[16:19]"
                a(f"v_mfma_f32_16x16x32_bf16 v[16:19], v[{32+4*ks}:{35+4*ks}], v[{96+4*k8}:{99+4*k8}], {c}")
        a(f"s_mul_i32 s{sT+1}, s{S_VR}, 96")
        a(f"s_lshl_b32 s{sT+2}, s{sT}, 4")
        a(f"s_add_u32 s{sT+1}, s{sT+1}, s{sT+2}")
        rnd1(a, 16)
        a(f"s_lshr_b32 s{sT+2}, s{sT+1}, 9")
        a(f"s_cmp_eq_u32 s{sT+2}, 1")
        a(f"s_cselect_b32 s{sT+3}, 1.0, 0")
        a(f"s_cmp_eq_u32 s{sT+2}, 4")
        a(f"s_cselect_b32 s{sT+3}, 1.0, s{sT+3}")
        a(f"v_add_f32 v16, s{sT+3}, v16")
        rnd1(a, 16)
        a(f"s_lshl_b32 s{sT+1}, s{sT+1}, 2")
        a(f"s_add_u32 s{sT+1}, s{sT+1}, {WS_MOD}")
        a(f"v_lshl_add_u32 v17, v4, 2, s{sT+1}")
        a("s_mov_b64 exec, 0xffff")
        a(f"global_store_dword v17, v16, s[{S_WS}:{S_WS+1}] sc1")
        a("s_mov_b64 exec, -1")
        if rep == 1: a.label(lskip)
        a.flush_hazards()
    a("s_waitcnt vmcnt(0)")
    a("s_barrier")
    signal_add(a, F_MODRDY)

def row16_sum(a, x, t):
    for sh in (8, 4, 2, 1):
        a(f"v_add_f32_dpp v{x}, v{x}, v{x} row_ror:{sh} row_mask:0xf bank_mask:0xf")

def ln_rows(a, X, MV, T0):
    s=T0; q=T0+2
    a(f"v_pk_add_f32 v[{s}:{s+1}], v[{X}:{X+1}], v[{X+2}:{X+3}]")
    for i in range(4, 32, 2):
        a(f"v_pk_add_f32 v[{s}:{s+1}], v[{s}:{s+1}], v[{X+i}:{X+i+1}]")
    a(f"v_add_f32 v{s}, v{s}, v{s+1}")
    row16_sum(a, s, None)
    a(f"v_mul_f32 v{s}, {f2u(1/512)}, v{s}")
    a(f"v_mov_b32 v{s+1}, v{s}")
    a(f"v_mov_b64 v[{q}:{q+1}], 0")
    for i in range(0, 32, 2):
        a(f"v_pk_add_f32 v[{T0+4}:{T0+5}], v[{X+i}:{X+i+1}], v[{s}:{s+1}] neg_lo:[0,1] neg_hi:[0,1]")
        a(f"v_pk_fma_f32 v[{q}:{q+1}], v[{T0+4}:{T0+5}], v[{T0+4}:{T0+5}], v[{q}:{q+1}]")
    a(f"v_add_f32 v{q}, v{q}, v{q+1}")
    row16_sum(a, q, None)
    a(f"v_mul_f32 v{q}, {f2u(1/512)}, v{q}")
    rnd1(a, q)
    a(f"v_add_f32 v{q}, {f2u(1e-5)}, v{q}")
    rnd1(a, q)
    a(f"v_sqrt_f32 v{q}, v{q}")
    rnd1(a, q)
    a(f"v_rcp_f32 v{s+1}, v{q}")
    rnd1(a, s)

def ln_apply(a, X, s, CA, SA, OUT):
    a(f"v_mov_b32 v{s+2}, v{s}")
    a(f"v_mov_b32 v{s+3}, v{s}")
    a(f"v_mov_b32 v{s+4}, v{s+1}")
    a(f"v_mov_b32 v{s+5}, v{s+1}")
    for i in range(0, 32, 2):
        x = X+i
        a(f"v_pk_add_f32 v[{x}:{x+1}], v[{x}:{x+1}], v[{s+2}:{s+3}] neg_lo:[0,1] neg_hi:[0,1]")
        rnd_pair(a, x)
        a(f"v_pk_mul_f32 v[{x}:{x+1}], v[{x}:{x+1}], v[{s+4}:{s+5}]")
        rnd_pair(a, x)
        a(f"v_pk_mul_f32 v[{x}:{x+1}], v[{x}:{x+1}], v[{CA+i}:{CA+i+1}]")
        rnd_pair(a, x)
        a(f"v_pk_add_f32 v[{x}:{x+1}], v[{x}:{x+1}], v[{SA+i}:{SA+i+1}]")
        a(f"v_cvt_pk_bf16_f32 v{OUT+i//2}, v{x}, v{x+1}")

def ln1_pre(a, sB):
    lane_ids(a, 120, 121, 122)
    a(f"s_lshl_b32 s{sT}, s{sB}, 4")
    a(f"s_lshl_b32 s{sT+1}, s{S_WAVE}, 2")
    a(f"s_add_u32 s{sT}, s{sT}, s{sT+1}")
    a(f"v_add_u32 v123, s{sT}, v121")
    a("v_lshlrev_b32 v123, 10, v123")
    a("v_lshl_add_u32 v123, v122, 4, v123")
    for j in range(4):
        a(f"global_load_dwordx4 v[{128+4*j}:{131+4*j}], v123, s[{S_X}:{S_X+1}] offset:{256*j}")

def ln1_stage(a, sB, nyounger):
    X=144; CA=176; SA=208; T0=240; OUT=128
    a(f"s_waitcnt vmcnt({nyounger})")
    for i in range(16):
        a(f"v_lshlrev_b32 v{X+2*i}, 16, v{128+i}")
        a(f"v_and_b32 v{X+2*i+1}, 0xffff0000, v{128+i}")
    ln_rows(a, X, None, T0)
    poll_counter(a, F_MODRDY, 32, vt=124)
    a("v_lshlrev_b32 v124, 5, v122")
    a(f"v_add_u32 v124, {WS_MOD}, v124")
    for j in range(4):
        for h in range(2):
            a(f"global_load_dwordx4 v[{SA+8*j+4*h}:{SA+8*j+4*h+3}], v124, s[{S_WS}:{S_WS+1}] offset:{512*j+16*h} sc1")
            a(f"global_load_dwordx4 v[{CA+8*j+4*h}:{CA+8*j+4*h+3}], v124, s[{S_WS}:{S_WS+1}] offset:{2048+512*j+16*h} sc1")
    a("s_waitcnt vmcnt(0)")
    ln_apply(a, X, T0, CA, SA, OUT)
    a("v_lshrrev_b32 v124, 2, v122")
    a("v_lshlrev_b32 v124, 10, v124")
    a("v_and_b32 v125, 3, v122")
    a("v_lshl_add_u32 v124, v125, 8, v124")
    a(f"s_lshl_b32 s{sT+1}, s{S_WAVE}, 2")
    a(f"v_add_u32 v125, s{sT+1}, v121")
    a("v_lshl_add_u32 v124, v125, 4, v124")
    a(f"s_lshl_b32 s{sT}, s{sB}, 14")
    a(f"s_add_u32 s{sT}, s{sT}, {WS_H}")
    a(f"v_add_u32 v124, s{sT}, v124")
    for j in range(4):
        if j: a("v_add_u32 v124, 4096, v124")
        a(f"global_store_dwordx4 v124, v[{OUT+4*j}:{OUT+4*j+3}], s[{S_WS}:{S_WS+1}] sc1")
    a("s_waitcnt vmcnt(0)")
    a("s_barrier")
    signal_add(a, F_HALL, vt=124)

sNT=40; sMH=41; sMTX=42; sHEAD=43; sOUTB=44; sHB=46; sIT=48; sSIG=49
def gemm_pre(a, sB):
    a(f"s_cmp_ge_u32 s{sB}, 96")
    a(f"s_cselect_b32 s{sMH}, 1, 0")
    a(f"s_mul_i32 s{sT}, s{sMH}, 96")
    a(f"s_sub_u32 s{sNT}, s{sB}, s{sT}")
    a(f"s_lshr_b32 s{sMTX}, s{sNT}, 5")
    a(f"s_and_b32 s{sHEAD}, s{sNT}, 31")
    a(f"s_mov_b64 s[{sT+6}:{sT+7}], s[{S_WK}:{S_WK+1}]")
    a(f"s_cmp_eq_u32 s{sMTX}, 1")
    a(f"s_cselect_b64 s[{sT+6}:{sT+7}], s[{S_WV}:{S_WV+1}], s[{sT+6}:{sT+7}]")
    a(f"s_cmp_eq_u32 s{sMTX}, 2")
    a(f"s_cselect_b64 s[{sT+6}:{sT+7}], s[{S_WQ}:{S_WQ+1}], s[{sT+6}:{sT+7}]")
    a(f"s_lshl_b32 s{sT}, s{sHEAD}, 8")
    a(f"s_add_u32 s{sT+6}, s{sT+6}, s{sT}")
    a(f"s_addc_u32 s{sT+7}, s{sT+7}, 0")
    return stage_rows(a, sT+6, 8192, 512, 0, 2)

def gemm_stage(a):
    C = Cnt(a)
    a("s_waitcnt vmcnt(0)")
    a("s_barrier")
    cp = tr_base(a, 10, 2)
    a(f"v_lshl_add_u32 v10, v{cp}, 3, v10")
    WF = lambda t, ks: (t*16+ks)*4
    for t in range(2):
        a(f"s_lshl_b32 s{sT}, s{S_WAVE}, 1")
        a(f"s_add_u32 s{sT}, s{sT}, {t}")
        a(f"v_xor_b32 v14, s{sT}, v11")
        a("v_lshl_add_u32 v14, v14, 5, v10")
        a("v_add_u32 v15, 0x10000, v14")
        for ks in range(16):
            for m in range(2):
                a(f"ds_read_b64_tr_b16 a[{WF(t,ks)+2*m}:{WF(t,ks)+2*m+1}], v{14+(ks>>3)} offset:{(ks&7)*8192+m*1024}")
    a("s_waitcnt lgkmcnt(0)")
    a(f"s_mov_b32 s{sT}, {WS_KF}")
    a(f"s_cmp_eq_u32 s{sMTX}, 1")
    a(f"s_cselect_b32 s{sT}, {WS_VF}, s{sT}")
    a(f"s_cmp_eq_u32 s{sMTX}, 2")
    a(f"s_cselect_b32 s{sT}, {WS_QF}, s{sT}")
    a(f"s_lshl_b32 s{sT+1}, s{sHEAD}, 13")
    a(f"s_add_u32 s{sT}, s{sT}, s{sT+1}")
    a(f"s_lshl_b32 s{sT+1}, s{sMH}, 19")
    a(f"s_add_u32 s{sT}, s{sT}, s{sT+1}")
    sadd64(a, sOUTB, S_WS, f"s{sT}")
    a(f"s_lshl_b32 s{sT}, s{sMH}, 16")
    a(f"s_lshl_b32 s{sT+1}, s{S_WAVE}, 14")
    a(f"s_add_u32 s{sT}, s{sT}, s{sT+1}")
    a(f"s_add_u32 s{sT}, s{sT}, {WS_H}")
    sadd64(a, sHB, S_WS, f"s{sT}")
    lane_ids(a, 2, 3, 4)
    a("v_lshlrev_b32 v5, 4, v2")
    a("v_add_u32 v6, 0x10000, v5")
    for i in range(1, 4): a(f"v_add_u32 v{6+i}, {4096*i}, v5")
    a(f"s_lshl_b32 s{sT}, s{S_WAVE}, 10")
    a(f"v_add_u32 v12, s{sT}, v5")
    a(f"s_lshl_b32 s{sT}, s{S_WAVE}, 11")
    a(f"v_add_u32 v13, s{sT}, v5")
    a(f"v_add_u32 v14, 0x40000, v12")
    a(f"v_add_u32 v15, 0x40000, v13")
    a(f"v_add_u32 v19, 4096, v12")
    a(f"v_add_u32 v20, 4096, v14")
    poll_counter(a, F_HALL, 128, vt=16)
    a("s_barrier")
    def dma(buf):
        a(f"s_lshl_b32 s{sT}, s{S_WAVE}, 14")
        for q in range(4):
            a(f"s_add_u32 m0, s{sT}, {buf*65536 + q*4096}")
            for i in range(4):
                a(f"global_load_lds_dwordx4 v{5 if q==0 else 6+q}, s[{sHB}:{sHB+1}] offset:{i*1024} sc1")
        sadd64(a, sHB, sHB, 131072)
    dma(0)
    a("s_waitcnt vmcnt(0)")
    a(f"s_mov_b32 s{sIT}, 0")
    a(f"s_lshl_b32 s{sSIG}, s{sMH}, 7")
    a(f"s_add_u32 s{sSIG}, s{sSIG}, {F_KVRDY - 256}")
    lv = a.newlabel("gemmV"); ldone = a.newlabel("gemmdone")
    a(f"s_cmp_eq_u32 s{sMTX}, 1")
    a(f"s_cbranch_scc1 {lv}")
    ACC=32; HF=64
    for isV in (0, 1):
        if isV: a.label(lv)
        a.flush_hazards()
        lloop = a.newlabel("gloop")
        a.label(lloop)
        for buf in range(2):
            a("s_waitcnt vmcnt(4)")
            a("s_barrier")
            ls = a.newlabel("gs")
            a(f"s_cmp_lt_u32 s{sIT}, 2")
            a(f"s_cbranch_scc1 {ls}")
            a(f"s_sub_u32 s{sT+8}, s{sSIG}, 256")
            signal_add(a, f"s{sT+8}", vt=16)
            a.label(ls)
            ln = a.newlabel("gn")
            a(f"s_cmp_ge_u32 s{sIT}, 15")
            a(f"s_cbranch_scc1 {ln}")
            dma(1-buf)
            a.label(ln)
            C.l = []
            order = [(ks, mt) for ks in range(16) for mt in range(4)]
            PF = 6
            def rd(n):
                ks, mt = order[n]
                C.lds(f"ds_read_b128 v[{HF+4*(n%8)}:{HF+4*(n%8)+3}], v{5+buf} offset:{mt*16384+ks*1024}", n)
            for n in range(PF): rd(n)
            for n, (ks, mt) in enumerate(order):
                C.wait_l(n)
                for t in range(2):
                    d = ACC + (mt*2+t)*4
                    c = "0" if ks == 0 else f"v[{d}:{d+3}]"
                    w = f"a[{WF(t,ks)}:{WF(t,ks)+3}]"; h = f"v[{HF+4*(n%8)}:{HF+4*(n%8)+3}]"
                    if isV: a(f"v_mfma_f32_16x16x32_bf16 v[{d}:{d+3}], {h}, {w}, {c}")
                    else: a(f"v_mfma_f32_16x16x32_bf16 v[{d}:{d+3}], {w}, {h}, {c}")
                    if t == 0 and n + PF < 64: rd(n + PF)
            E=96
            if not isV:
                for mt in range(4):
                    for r in range(4):
                        a(f"v_cvt_pk_bf16_f32 v{E+4*mt+r}, v{ACC+mt*8+r}, v{ACC+mt*8+4+r}")
                    a(f"global_store_dwordx4 v{(12,19,14,20)[mt]}, v[{E+4*mt}:{E+4*mt+3}], s[{sOUTB}:{sOUTB+1}] sc1")
            else:
                for sg in range(2):
                    for t in range(2):
                        e = E + (sg*2+t)*4
                        for kt in range(2):
                            d = ACC + ((2*sg+kt)*2+t)*4
                            a(f"v_cvt_pk_bf16_f32 v{e+2*kt}, v{d}, v{d+1}")
                            a(f"v_cvt_pk_bf16_f32 v{e+2*kt+1}, v{d+2}, v{d+3}")
                        a(f"global_store_dwordx4 v{13 if sg==0 else 15}, v[{e}:{e+3}], s[{sOUTB}:{sOUTB+1}] offset:{t*1024} sc1")
            sadd64(a, sOUTB, sOUTB, 1048576)
            a(f"s_add_u32 s{sSIG}, s{sSIG}, 256")
            a(f"s_add_u32 s{sIT}, s{sIT}, 1")
            a.flush_hazards()
        a(f"s_cmp_lt_u32 s{sIT}, 16")
        a(f"s_cbranch_scc1 {lloop}")
        if not isV: a(f"s_branch {ldone}")
    a.label(ldone)
    a.flush_hazards()
    a("s_waitcnt vmcnt(0)")
    a("s_barrier")
    a(f"s_sub_u32 s{sT+8}, s{sSIG}, 256")
    signal_add(a, f"s{sT+8}", vt=16)
    signal_add(a, f"s{sSIG}", vt=16)
```

```python
from asmlib import *
from layout import *

L_WV   = 0
L_X    = 131072
L_KT   = L_X
L_VT   = L_X + 8192
L_MS   = L_X + 16384
L_VX   = L_MS
L_Q    = L_X + 24576
RS = 288
L_K    = L_Q + 2304
L_O    = L_K + 2304
L_DUM  = L_O + 2304
L_END  = L_DUM + 256
assert L_END <= 163840

M = lambda kb: 4*kb
QA=32; KA=40; VA=48; WVS=56; QB=72; AF=88
vIDX=104; vL16=105; vMEMOFF=106; vPST=107; vPUB=108; vQKW=109; vQR=110; vKR=111; vOW=112; vOR=113; vWV=114
vKT=116; vMSW=117; vMSR=118; vVOFF=119; vFLG=120; vVXW=121
T=122
WO = lambda i,kb2: 128 + (i*2+kb2)*8
WQ = lambda t,kb: (t*8+kb)*8
WK = lambda t,kb: 128 + (t*8+kb)*8
sHALF=40; sPUBM=42; sPB=44
sMB=60
sSTEP=68; sSPIN=69
sT=70
sKF=80; sVF=82; sKM=84; sVM=86; sC1=88
sDUMP=90; sPBr=92; sT0=94; sKMM=98; sPRG=100; sFOFF=101
C1 = 0.08838834764831845 * 1.4426950408889634

def lane_consts(a):
    l=T; g=T+1; c=T+2; t0=T+3; t1=T+4; t2=T+5
    a(f"v_mbcnt_lo_u32_b32 v{l}, -1, 0")
    a(f"v_mbcnt_hi_u32_b32 v{l}, -1, v{l}")
    a(f"v_lshrrev_b32 v{g}, 4, v{l}")
    a(f"v_and_b32 v{c}, 15, v{l}")
    a(f"v_lshlrev_b32 v{vL16}, 4, v{l}")
    a(f"v_add_u32 v{vKT}, {L_KT}, v{vL16}")
    a(f"v_add_u32 v{vMSR}, {L_MS}, v{vL16}")
    a(f"s_lshl_b32 s{sT}, s{S_WAVE}, 10")
    a(f"v_add_u32 v{vMSW}, s{sT}, v{vMSR}")
    a(f"s_lshl_b32 s{sT}, s{S_WAVE}, 11")
    a(f"s_add_u32 s{sT}, s{sT}, {L_VT}")
    a(f"v_add_u32 v{vVOFF}, s{sT}, v{vL16}")
    a(f"s_lshl_b32 s{sT}, s{S_WAVE}, 12")
    a(f"v_add_u32 v{vWV}, s{sT}, v{vL16}")
    a(f"v_add_u32 v{vWV+1}, 0x10000, v{vWV}")
    a(f"s_lshl_b32 s{sT}, s{S_WAVE}, 9")
    a(f"s_add_u32 s{sT}, s{sT}, {L_VX}")
    a(f"v_lshl_add_u32 v{vVXW}, v{l}, 2, s{sT}")
    a(f"s_mov_b32 s{sHALF}, 0xAAAAAAAA")
    a(f"s_mov_b32 s{sHALF+1}, 0xAAAAAAAA")
    a(f"v_mov_b32 v{t0}, 0x4444")
    a(f"v_mov_b32 v{t1}, 0xEEEE")
    a(f"v_cndmask_b32 v{vIDX}, v{t0}, v{t1}, s[{sHALF}:{sHALF+1}]")
    a(f"v_lshlrev_b32 v{t0}, 11, v{g}")
    a(f"v_lshl_add_u32 v{t0}, v{c}, 4, v{t0}")
    a(f"s_lshl_b32 s{sT}, s{S_WAVE}, 8")
    a(f"v_add_u32 v{vMEMOFF}, s{sT}, v{t0}")
    a(f"v_lshrrev_b32 v{t0}, 1, v{g}")
    a(f"v_lshlrev_b32 v{t0}, 13, v{t0}")
    a(f"v_and_b32 v{t1}, 1, v{g}")
    a(f"v_lshl_add_u32 v{t0}, v{t1}, 7, v{t0}")
    a(f"v_lshl_add_u32 v{t0}, v{c}, 3, v{t0}")
    a(f"s_lshl_b32 s{sT}, s{S_VR}, 8")
    a(f"v_add_u32 v{vPST}, s{sT}, v{t0}")
    a(f"v_bfe_u32 v{t0}, v{l}, 3, 1")
    a(f"v_lshlrev_b32 v{t0}, 6, v{t0}")
    a(f"v_lshrrev_b32 v{t1}, 1, v{g}")
    a(f"v_lshl_add_u32 v{t0}, v{t1}, 5, v{t0}")
    a(f"v_and_b32 v{t1}, 7, v{l}")
    a(f"v_lshl_add_u32 v{t0}, v{t1}, 2, v{t0}")
    a(f"s_and_b32 s{sT+1}, s{S_WAVE}, 1")
    a(f"s_lshl_b32 s{sT+1}, s{sT+1}, 7")
    a(f"s_add_u32 s{sT+1}, s{sT+1}, s{sT}")
    a(f"v_add_u32 v{vPUB}, s{sT+1}, v{t0}")
    a(f"s_mov_b32 s{sPUBM}, 0xFFFF")
    a(f"s_mov_b32 s{sPUBM+1}, 0xFFFF")
    a(f"s_mov_b32 s{sKMM}, 0x33333333")
    a(f"s_mov_b32 s{sKMM+1}, 0x33333333")
    a(f"v_mul_u32_u24 v{t0}, {2*RS}, v{g}")
    a(f"v_lshl_add_u32 v{t0}, v{c}, 2, v{t0}")
    a(f"s_lshl_b32 s{sT}, s{S_WAVE}, 6")
    a(f"s_add_u32 s{sT}, s{sT}, {L_Q}")
    a(f"v_add_u32 v{vQKW}, s{sT}, v{t0}")
    a(f"v_lshrrev_b32 v{t0}, 1, v{c}")
    a(f"v_mul_u32_u24 v{t0}, {RS}, v{t0}")
    a(f"v_lshl_add_u32 v{t1}, v{g}, 4, v{t0}")
    a(f"v_add_u32 v{vQR}, {L_Q}, v{t1}")
    a(f"v_and_b32 v{t2}, 1, v{c}")
    a(f"v_lshl_add_u32 v{t1}, v{t2}, 5, v{t0}")
    a(f"v_lshl_add_u32 v{t1}, v{g}, 3, v{t1}")
    a(f"s_lshl_b32 s{sT}, s{S_WAVE}, 6")
    a(f"s_add_u32 s{sT}, s{sT}, {L_O}")
    a(f"v_add_u32 v{vOW}, s{sT}, v{t1}")
    a(f"v_lshl_add_u32 v{t1}, v{g}, 5, v{t0}")
    a(f"v_lshl_add_u32 v{t1}, v{t2}, 4, v{t1}")
    a(f"v_add_u32 v{vOR}, {L_O}, v{t1}")
    a(f"v_lshrrev_b32 v{t0}, 2, v{c}")
    a(f"v_lshl_add_u32 v{t0}, v{t0}, 1, v{t2}")
    a(f"v_mul_u32_u24 v{t0}, {RS}, v{t0}")
    a(f"v_lshl_add_u32 v{t0}, v{g}, 4, v{t0}")
    a(f"v_add_u32 v{vKR}, {L_K}, v{t0}")
    r=20; ph=21
    a(f"v_lshrrev_b32 v{r}, 2, v{c}")
    a(f"v_and_b32 v{t1}, 1, v{r}")
    a(f"v_lshrrev_b32 v{t2}, 1, v{r}")
    a(f"v_lshl_add_u32 v{r}, v{t2}, 3, v{t1}")
    a(f"v_lshl_add_u32 v{ph}, v{t2}, 2, v{t1}")
    a(f"v_and_b32 v{t2}, 1, v{g}")
    a(f"v_lshl_add_u32 v{ph}, v{t2}, 1, v{ph}")
    a(f"v_lshl_add_u32 v{r}, v{t2}, 2, v{r}")
    a(f"v_lshrrev_b32 v{t2}, 1, v{g}")
    a(f"v_lshl_add_u32 v{r}, v{t2}, 4, v{r}")
    a(f"v_lshlrev_b32 v{r}, 8, v{r}")
    a(f"v_and_b32 v{t2}, 3, v{c}")
    a(f"v_lshl_add_u32 v{r}, v{t2}, 3, v{r}")
    for t in range(2):
        a(f"s_lshl_b32 s{sT}, s{S_WAVE}, 1")
        a(f"s_add_u32 s{sT}, s{sT}, {t}")
        a(f"v_xor_b32 v{t2}, s{sT}, v{ph}")
        a(f"v_lshl_add_u32 v{22+3*t}, v{t2}, 5, v{r}")
        a(f"v_add_u32 v{23+3*t}, 0x10000, v{22+3*t}")
        a(f"v_add_u32 v{24+3*t}, 0x20000, v{22+3*t}")

def tr_off(slot, m):
    return (slot & 3)*16384 + (m >> 1)*8192 + (m & 1)*512

def setup_weights(a):
    l=T
    a(f"v_lshrrev_b32 v8, 4, v{l}")
    a(f"v_bfe_u32 v9, v{l}, 1, 3")
    a(f"v_and_b32 v10, 1, v8")
    a(f"v_xor_b32 v9, v9, v10")
    a(f"v_and_b32 v10, 1, v{l}")
    a(f"v_lshlrev_b32 v10, 4, v10")
    for aa in range(4):
        a(f"v_xor_b32 v11, {aa<<1}, v9")
        a(f"v_lshl_add_u32 v11, v11, 5, v10")
        a(f"v_add_u32 v12, {4*aa}, v8")
        a(f"v_lshl_add_u32 v{aa}, v12, 13, v11")
        a(f"v_lshl_add_u32 v{4+aa}, v12, 10, v11")
    a(f"s_lshl_b32 s{sT}, s{S_VR}, 8")
    a(f"s_lshl_b32 s{sT+1}, s{S_WAVE}, 20")
    a(f"s_add_u32 s{sT}, s{sT}, s{sT+1}")
    a(f"s_lshl_b32 s{sT+1}, s{S_VR}, 17")
    a(f"s_lshl_b32 s{sT+2}, s{S_WAVE}, 14")
    a(f"s_add_u32 s{sT+1}, s{sT+1}, s{sT+2}")
    a(f"s_lshl_b32 s{sT+2}, s{S_WAVE}, 12")
    def issue(grp):
        mat = grp >> 1; half = grp & 1
        for ch in range(4):
            slot = half*4 + ch
            if mat == 3: slot += 1
            if mat == 2:
                a(f"s_add_u32 s{sT+3}, s{sT+1}, {half*65536 + ch*256}")
                base = S_WO; vo = 4
            else:
                kb = half*4 + ch
                a(f"s_add_u32 s{sT+3}, s{sT}, {kb*131072}")
                base = (S_WQ, S_WK, None, S_WV)[mat]; vo = 0
            a(f"s_add_u32 s{sT+4}, s{base}, s{sT+3}")
            a(f"s_addc_u32 s{sT+5}, s{base+1}, 0")
            for aa in range(4):
                a(f"s_add_u32 m0, s{sT+2}, {slot*16384 + aa*1024}")
                a(f"global_load_lds_dwordx4 v{vo+aa}, s[{sT+4}:{sT+5}]")
    issue(0); issue(1)
    for grp in range(6):
        a(f"s_waitcnt vmcnt(16)")
        a("s_barrier")
        mat = grp >> 1; half = grp & 1
        if mat < 2:
            for ch in range(4):
                kb = half*4 + ch
                for t in range(2):
                    dst = (WQ if mat == 0 else WK)(t, kb)
                    for m in range(4):
                        a(f"ds_read_b64_tr_b16 a[{dst+2*m}:{dst+2*m+1}], v{22+3*t+half} offset:{tr_off(kb,m)}")
        else:
            a(f"s_lshl_b32 s{sT+3}, s{S_WAVE}, 14")
            a(f"s_add_u32 s{sT+3}, s{sT+3}, {half*65536}")
            for u in range(8):
                a(f"v_xor_b32 v8, {u}, v21")
                a(f"v_lshl_add_u32 v8, v8, 5, v20")
                a(f"v_add_u32 v8, s{sT+3}, v8")
                dst = WO(u, half)
                for m in range(4):
                    a(f"ds_read_b64_tr_b16 v[{dst+2*m}:{dst+2*m+1}], v8 offset:{tr_off(0,m)}")
        a("s_waitcnt lgkmcnt(0)")
        a("s_barrier")
        if grp < 4: issue(grp + 2)
        elif grp == 4:
            pass
        elif grp == 5:
            issue(6); issue(7)
        if grp == 4:
            a("s_waitcnt vmcnt(0)")
    for kb in range(8):
        a(f"s_waitcnt vmcnt({4*(7-kb)})")
        a("s_barrier")
        slot = kb + 1
        for t in range(2):
            for m in range(4):
                a(f"ds_read_b64_tr_b16 v[{32+8*t+2*m}:{33+8*t+2*m}], v{22+3*t+(slot>>2)} offset:{tr_off(slot,m)}")
        a("s_waitcnt lgkmcnt(0)")
        for t in range(2):
            for hf in range(2):
                a(f"ds_write_b128 v{vWV+(kb>>2)}, v[{32+8*t+4*hf}:{35+8*t+4*hf}] offset:{(kb&3)*16384+t*2048+hf*1024}")
        a("s_waitcnt lgkmcnt(0)")
    a("s_barrier")

class Prof:
    def __init__(self, a, enabled):
        self.a=a; self.en=enabled; self.names=[]
    def stamp(self, name):
        if not self.en: return
        a=self.a
        a("s_memtime s[96:97]")
        a("s_waitcnt lgkmcnt(0)")
        if name in self.names: idx=self.names.index(name)
        else: self.names.append(name); idx=len(self.names)-1
        acc = 18+idx
        assert acc <= 33
        a(f"s_sub_u32 s3, s96, s2")
        a(f"s_add_u32 s{acc}, s{acc}, s3")
        a("s_mov_b32 s2, s96")

def xl(a, x, t, op):
    a(f"v_mov_b32 v{t}, v{x}")
    a(f"v_permlane32_swap_b32 v{t}, v{x}")
    a(f"{op} v{x}, v{t}, v{x}")
    a(f"v_mov_b32 v{t}, v{x}")
    a(f"v_permlane16_swap_b32 v{t}, v{x}")
    a(f"{op} v{x}, v{t}, v{x}")

def chain_main(a, sc, dump=False, prof=False, kvflags=True, guard=True):
    P = Prof(a, prof)
    C = Cnt(a)
    a(f"s_mov_b32 s{sC1}, {f2u(C1)}")
    a(f"s_mov_b32 s{sC1+1}, {f2u(C1)}")
    for i in range(8):
        a(f"s_lshl_b32 s{sT}, s{S_WAVE}, 17")
        a(f"s_add_u32 s{sT}, s{sT}, {WS_PB + i*16384}")
        sadd64(a, sPB+2*i, S_WS, f"s{sT}")
    a(f"s_lshl_b32 s{sT}, s{S_VR}, 14")
    a(f"s_and_b32 s{sT+1}, s{S_WAVE}, 1")
    a(f"s_lshl_b32 s{sT+1}, s{sT+1}, 13")
    a(f"s_add_u32 s{sT}, s{sT}, s{sT+1}")
    a(f"s_add_u32 s{sT}, s{sT}, {WS_PB}")
    sadd64(a, sPBr, S_WS, f"s{sT}")
    a(f"s_lshl_b32 s{sT}, s{S_VR}, 13")
    a(f"s_mov_b32 s{sT+1}, {WS_KF}")
    a(f"s_mov_b32 s{sVF}, {L_KT}")
    a(f"s_cmp_eq_u32 s{S_WAVE}, 3")
    a(f"s_cselect_b32 s{sT+1}, {WS_VF}, s{sT+1}")
    a(f"s_cselect_b32 s{sVF}, {L_VT}, s{sVF}")
    a(f"s_add_u32 s{sT+1}, s{sT+1}, s{sT}")
    sadd64(a, sKF, S_WS, f"s{sT+1}")
    a(f"s_lshl_b32 s{sT}, s{S_VR}, 12")
    a(f"s_add_u32 s{sT+1}, s{sT}, {WS_KM}")
    sadd64(a, sKM, S_WS, f"s{sT+1}")
    a(f"s_lshl_b32 s{sT}, s{S_VR}, 11")
    a(f"s_add_u32 s{sT+1}, s{sT}, {WS_VM - 65536}")
    a(f"s_and_b32 s{sT}, s{S_WAVE}, 1")
    a(f"s_lshl_b32 s{sT}, s{sT}, 10")
    a(f"s_add_u32 s{sT+1}, s{sT+1}, s{sT}")
    sadd64(a, sVM, S_WS, f"s{sT+1}")
    a(f"s_lshl_b32 s{sPRG}, s{S_VR}, 7")
    a(f"s_and_b32 s{sT}, s{S_WAVE}, 1")
    a(f"s_lshl_b32 s{sT}, s{sT}, 2")
    a(f"s_add_u32 s{sPRG}, s{sPRG}, s{sT}")
    a(f"s_add_u32 s{sPRG}, s{sPRG}, {F_PROG}")
    if dump: sadd64(a, sDUMP, S_WS, WS_DUMP)
    for i in range(4): sadd64(a, sMB+2*i, S_WS, WS_MB + 8192*i)
    a(f"s_mov_b32 s{sSPIN}, 0")
    a(f"s_mov_b32 s{sSTEP}, 0")
    lio = a.newlabel("c_io"); lend = a.newlabel("c_end")
    if prof:
        for r in range(18, 34): a(f"s_mov_b32 s{r}, 0")
    a(f"s_cmp_ge_u32 s{S_WAVE}, 2")
    a(f"s_cbranch_scc1 {lio}")
    tails = []
    def retry_stub(lback):
        l = a.newlabel("c_retry")
        tails.append((l, lback))
        return l
    for role in ("R", "IO"):
        if role == "IO":
            a.label(lio); a.hist=[]
        def dma_k():
            a(f"s_mov_b32 m0, s{sVF}")
            a(f"v_add_u32 v{T}, 4096, v{vL16}")
            for i in range(4):
                a(f"global_load_lds_dwordx4 v{vL16}, s[{sKF}:{sKF+1}] offset:{i*1024} sc1")
            a(f"s_add_u32 m0, s{sVF}, 4096")
            for i in range(4):
                a(f"global_load_lds_dwordx4 v{T}, s[{sKF}:{sKF+1}] offset:{i*1024} sc1")
            sadd64(a, sKF, sKF, 262144)
        def wait_flag_spin(off_sgpr):
            l = a.newlabel("c_fl")
            a(f"v_mov_b32 v{T}, s{off_sgpr}")
            a.label(l)
            a(f"global_load_dword v{vFLG}, v{T}, s[{S_WS}:{S_WS+1}] sc1")
            if guard:
                a(f"s_add_u32 s{sSPIN}, s{sSPIN}, 1")
                a(f"s_cmp_gt_u32 s{sSPIN}, 0x400000")
                a("s_cbranch_scc1 L_fail")
            a("s_waitcnt vmcnt(0)")
            a(f"v_cmp_gt_u32 vcc, 96, v{vFLG}")
            a(f"s_cbranch_vccnz {l}")
        if role == "R":
            a(f"v_bfe_u32 v{T}, v{vPUB}, 5, 3")
            a(f"v_and_b32 v{T+1}, 31, v{vPUB}")
            a(f"v_lshl_add_u32 v{T}, v{T}, 10, v{T+1}")
            a(f"s_lshl_b32 s{sT}, s{S_VR}, 5")
            a(f"v_add_u32 v{T}, s{sT}, v{T}")
            a(f"global_load_dword v{T+1}, v{T}, s[{S_MEM0}:{S_MEM0+1}]")
            a("s_waitcnt vmcnt(0)")
            a(f"v_min_u32 v{T+1}, -2, v{T+1}")
            a(f"s_mov_b64 exec, s[{sPUBM}:{sPUBM+1}]")
            a(f"global_store_dword v{vPUB}, v{T+1}, s[{sMB}:{sMB+1}] {sc}")
            if dump:
                a(f"global_store_dword v{vPUB}, v{T+1}, s[{sDUMP}:{sDUMP+1}]")
            a("s_mov_b64 exec, -1")
        else:
            a(f"s_mov_b32 s{sFOFF}, {F_KVRDY}")
            if kvflags: wait_flag_spin(sFOFF)
            dma_k()
            a(f"s_mov_b32 s{sFOFF}, {F_KVRDY+128}")
            a(f"v_mov_b32 v{T}, s{sFOFF}")
            a(f"global_load_dword v{vFLG}, v{T}, s[{S_WS}:{S_WS+1}] sc1")
        for r in range(QA, QA+24, 2): a(f"v_mov_b64 v[{r}:{r+1}], 0")
        for i, sl in enumerate([WVS, WVS+8, QB, QB+8, AF, AF+8]):
            for hf in range(2):
                a(f"ds_read_b128 v[{sl+4*hf}:{sl+4*hf+3}], v{vWV} offset:{(i>>1)*16384+(i&1)*2048+hf*1024}")
        a(f"s_memtime s[{sT0}:{sT0+1}]")
        a("s_waitcnt lgkmcnt(0)")
        if prof: a(f"s_mov_b32 s2, s{sT0}")
        lloop = a.newlabel("c_loop")
        a.flush_hazards()
        a.label(lloop)
        SL = [WVS, WVS+8, QB, QB+8, AF, AF+8]
        def wv_read(kb, t, slot, hf):
            C.lds(f"ds_read_b128 v[{slot+4*hf}:{slot+4*hf+3}], v{vWV+(kb>>2)} offset:{(kb&3)*16384+t*2048+hf*1024}", ("wv",kb,t))
        def vmf(kb, t, slot):
            C.wait_l(("wv",kb,t))
            a(f"v_smfmac_f32_16x16x64_bf16 v[{VA+4*t}:{VA+4*t+3}], v[{M(kb)}:{M(kb)+3}], v[{slot}:{slot+7}], v{vIDX}")
        def qmf(kb, t): a(f"v_smfmac_f32_16x16x64_bf16 v[{QA+4*t}:{QA+4*t+3}], v[{M(kb)}:{M(kb)+3}], a[{WQ(t,kb)}:{WQ(t,kb)+7}], v{vIDX}")
        def kmf(kb, t): a(f"v_smfmac_f32_16x16x64_bf16 v[{KA+4*t}:{KA+4*t+3}], v[{M(kb)}:{M(kb)+3}], a[{WK(t,kb)}:{WK(t,kb)+7}], v{vIDX}")
        for par in range(2):
            C.l=[]; C.v=[]
            lp = a.newlabel("c_pollm")
            a.label(lp)
            a(f"global_load_dwordx4 v[0:3], v{vMEMOFF}, s[{sMB}:{sMB+1}] sc1")
            a(f"global_load_dwordx4 v[4:7], v{vMEMOFF}, s[{sMB}:{sMB+1}] offset:1024 sc1")
            a("s_waitcnt vmcnt(0)")
            a(f"v_max3_u32 v{T}, v0, v1, v2")
            a(f"v_max3_u32 v{T+1}, v3, v4, v5")
            a(f"v_max3_u32 v{T}, v{T}, v6, v7")
            a(f"v_max_u32 v{T}, v{T}, v{T+1}")
            a(f"v_cmp_eq_u32 vcc, -1, v{T}")
            a(f"s_cbranch_vccnz {retry_stub(lp) if guard else lp}")
            a(f"ds_write_b128 v{vMSW}, v[0:3]")
            a(f"ds_write_b128 v{vMSW}, v[4:7] offset:4096")
            P.stamp("pollm")
            a("s_waitcnt lgkmcnt(0)")
            a("s_barrier")
            for kb in range(8):
                C.lds(f"ds_read_b128 v[{M(kb)}:{M(kb)+3}], v{vMSR} offset:{kb*1024}", ("m",kb))
            C.wait_l(("m",0)); qmf(0,0); qmf(0,1); kmf(0,0); kmf(0,1)
            vmf(0,0,SL[0]); vmf(0,1,SL[1])
            C.wait_l(("m",1)); qmf(1,0); wv_read(3,0,SL[0],0); qmf(1,1); wv_read(3,0,SL[0],1); kmf(1,0); wv_read(3,1,SL[1],0); kmf(1,1); wv_read(3,1,SL[1],1)
            vmf(1,0,SL[2]); vmf(1,1,SL[3])
            C.wait_l(("m",2)); qmf(2,0); wv_read(4,0,SL[2],0); qmf(2,1); wv_read(4,0,SL[2],1); kmf(2,0); wv_read(4,1,SL[3],0); kmf(2,1); wv_read(4,1,SL[3],1)
            vmf(2,0,SL[4]); vmf(2,1,SL[5])
            C.wait_l(("m",7))
            qmf(3,0); wv_read(5,0,SL[4],0); qmf(3,1); wv_read(5,0,SL[4],1); kmf(3,0); wv_read(5,1,SL[5],0); kmf(3,1); wv_read(5,1,SL[5],1)
            if role == "IO":
                qmf(4,0)
                a(f"global_store_dwordx4 v{vL16}, v[{T+2}:{T+5}], s[{sVM}:{sVM+1}] sc1")
                qmf(4,1)
                sadd64(a, sVM, sVM, 65536)
                kmf(4,0)
                a(f"s_sub_u32 s{sT}, s{sSTEP}, 1")
                a(f"s_max_i32 s{sT}, s{sT}, 0")
                kmf(4,1)
                a(f"v_mov_b32 v{T}, s{sPRG}")
                a(f"v_mov_b32 v{T+1}, s{sT}")
                qmf(5,0)
                a(f"global_store_dword v{T}, v{T+1}, s[{S_WS}:{S_WS+1}] sc1")
                if par == 0 and kvflags:
                    lok = a.newlabel("c_fok")
                    a(f"v_cmp_le_u32 vcc, 96, v{vFLG}")
                    a(f"s_cbranch_vccnz {lok}")
                    wait_flag_spin(sFOFF)
                    a.label(lok)
                qmf(5,1)
                a(f"s_add_u32 s{sT+5}, s{sSTEP}, 2")
                a(f"s_cmp_lt_u32 s{sT+5}, 64")
                kmf(5,0)
                a(f"s_cselect_b32 s{sT+4}, 0x40000, 0")
                a(f"v_lshl_add_u32 v{T}, v{vL16}, 3, s{sT+4}")
                kmf(5,1)
                a(f"s_mov_b32 m0, {L_DUM}")
                a(f"global_load_lds_dword v{T}, s[{sKF}:{sKF+1}] sc1")
                qmf(6,0)
                qmf(6,1)
                kmf(6,0)
                if par == 1 and kvflags:
                    a(f"s_add_u32 s{sFOFF}, s{sFOFF}, 128")
                    a(f"s_min_u32 s{sFOFF}, s{sFOFF}, {F_KVRDY+31*128}")
                    kmf(6,1)
                    a(f"v_mov_b32 v{T}, s{sFOFF}")
                    a(f"global_load_dword v{vFLG}, v{T}, s[{S_WS}:{S_WS+1}] sc1")
                else:
                    kmf(6,1)
                qmf(7,0); qmf(7,1); kmf(7,0); kmf(7,1)
            else:
                for kb in range(4, 8):
                    qmf(kb,0); qmf(kb,1); kmf(kb,0); kmf(kb,1)
            P.stamp("qk")
            vmf(4,0,SL[2]); vmf(4,1,SL[3])
            for t in range(2):
                a(f"v_add_f32 v{QA+4*t}, v{QA+4*t}, v{QA+4*t+1}")
                a(f"v_add_f32 v{QA+4*t+2}, v{QA+4*t+2}, v{QA+4*t+3}")
            vmf(5,0,SL[4])
            a(f"v_cvt_pk_bf16_f32 v{QA}, v{QA}, v{QA+4}")
            a(f"v_cvt_pk_bf16_f32 v{QA+1}, v{QA+2}, v{QA+6}")
            C.lds(f"ds_write2_b32 v{vQKW}, v{QA}, v{QA+1} offset0:0 offset1:{RS//4}")
            vmf(5,1,SL[5])
            for t in range(2):
                a(f"v_add_f32 v{KA+4*t}, v{KA+4*t}, v{KA+4*t+1}")
                a(f"v_add_f32 v{KA+4*t+2}, v{KA+4*t+2}, v{KA+4*t+3}")
            a(f"v_cvt_pk_bf16_f32 v{KA}, v{KA}, v{KA+4}")
            a(f"v_cvt_pk_bf16_f32 v{KA+1}, v{KA+2}, v{KA+6}")
            assert (L_K-L_Q) % 4 == 0 and (L_K-L_Q)//4 + RS//4 > 255
            C.lds(f"ds_write_b32 v{vQKW}, v{KA} offset:{L_K-L_Q}")
            C.lds(f"ds_write_b32 v{vQKW}, v{KA+1} offset:{L_K-L_Q+RS}")
            vmf(3,0,SL[0]); vmf(3,1,SL[1])
            C.all_l()
            a("s_barrier")
            P.stamp("xqk")
            S0=QA; S1=QA+4; SM=KA
            for ks in range(4):
                C.lds(f"ds_read_b128 v[{QB+4*ks}:{QB+4*ks+3}], v{vQR} offset:{64*ks}", ("q",ks))
                C.lds(f"ds_read_b128 v[{4*ks}:{4*ks+3}], v{vKT} offset:{ks*1024}", ("kt",0,ks))
            for ks in range(4):
                C.lds(f"ds_read_b128 v[{AF+4*ks}:{AF+4*ks+3}], v{vKT} offset:{4096+ks*1024}", ("kt",1,ks))
            for ks in range(4):
                C.wait_l(("kt",0,ks))
                c = "0" if ks == 0 else f"v[{S0}:{S0+3}]"
                a(f"v_mfma_f32_16x16x32_bf16 v[{S0}:{S0+3}], v[{4*ks}:{4*ks+3}], v[{QB+4*ks}:{QB+4*ks+3}], {c}")
                C.lds(f"ds_read_b128 v[{4*ks}:{4*ks+3}], v{vKR} offset:{64*ks}", ("km",ks))
            for ks in range(4):
                C.wait_l(("kt",1,ks))
                c = "0" if ks == 0 else f"v[{S1}:{S1+3}]"
                a(f"v_mfma_f32_16x16x32_bf16 v[{S1}:{S1+3}], v[{AF+4*ks}:{AF+4*ks+3}], v[{QB+4*ks}:{QB+4*ks+3}], {c}")
                wv_read(6, ks>>1, SL[ks>>1], ks&1)
            for ks in range(4):
                C.wait_l(("km",ks))
                c = "0" if ks == 0 else f"v[{SM}:{SM+3}]"
                a(f"v_mfma_f32_16x16x32_bf16 v[{SM}:{SM+3}], v[{4*ks}:{4*ks+3}], v[{QB+4*ks}:{QB+4*ks+3}], {c}")
                wv_read(7, ks>>1, SL[4+(ks>>1)], ks&1)
            if role == "IO":
                lk = a.newlabel("c_k3"); lk2 = a.newlabel("c_kd")
                a(f"s_mov_b64 exec, s[{sKMM}:{sKMM+1}]")
                a(f"s_cmp_eq_u32 s{S_WAVE}, 3")
                a(f"s_cbranch_scc1 {lk}")
                for ks in (0,1):
                    a(f"global_store_dwordx4 v{vL16}, v[{4*ks}:{4*ks+3}], s[{sKM}:{sKM+1}] offset:{1024*ks} sc1")
                a(f"s_branch {lk2}")
                a.label(lk)
                for ks in (2,3):
                    a(f"global_store_dwordx4 v{vL16}, v[{4*ks}:{4*ks+3}], s[{sKM}:{sKM+1}] offset:{1024*ks} sc1")
                a.label(lk2)
                a("s_mov_b64 exec, -1")
                sadd64(a, sKM, sKM, 131072)
                C.v += ["k","k"]
            C.lds(f"ds_read_b128 v[16:19], v{vVOFF}", "vf")
            C.lds(f"ds_read_b128 v[20:23], v{vVOFF} offset:1024", "vf")
            P.stamp("scores")
            mx=T; tt=T+1; nm=T+2; ls=T+4
            a(f"v_max3_f32 v{mx}, v{S0}, v{S0+1}, v{S0+2}")
            a(f"v_max3_f32 v{mx}, v{mx}, v{S0+3}, v{S1}")
            vmf(6,0,SL[0])
            a(f"v_max3_f32 v{mx}, v{mx}, v{S1+1}, v{S1+2}")
            a(f"v_max3_f32 v{mx}, v{mx}, v{S1+3}, v{SM}")
            vmf(6,1,SL[1])
            a(f"v_max_f32 v{mx}, v{mx}, v{SM+1}")
            a(f"v_mov_b32 v{tt}, v{mx}")
            vmf(7,0,SL[4])
            a(f"v_permlane32_swap_b32 v{tt}, v{mx}")
            a(f"v_max_f32 v{mx}, v{tt}, v{mx}")
            a(f"v_mov_b32 v{tt}, v{mx}")
            vmf(7,1,SL[5])
            a(f"v_permlane16_swap_b32 v{tt}, v{mx}")
            a(f"v_max_f32 v{mx}, v{tt}, v{mx}")
            a(f"v_mul_f32 v{nm}, s{sC1}, v{mx}")
            prs = [S0, S0+2, S1, S1+2, SM]
            regs = [S0+i for i in range(4)] + [S1+i for i in range(4)] + [SM, SM+1]
            for x in prs:
                a(f"v_pk_fma_f32 v[{x}:{x+1}], v[{x}:{x+1}], s[{sC1}:{sC1+1}], v[{nm}:{nm+1}] op_sel_hi:[1,1,0] neg_lo:[0,0,1] neg_hi:[0,0,1]")
            for r in regs: a(f"v_exp_f32 v{r}, v{r}")
            Pr=KA+4; PM=KA+2
            for i in range(4):
                a(f"v_cvt_pk_bf16_f32 v{Pr+i}, v{regs[2*i]}, v{regs[2*i+1]}")
            O=WVS
            C.wait_l("vf")
            for t in range(2):
                a(f"v_mfma_f32_16x16x32_bf16 v[{O+4*t}:{O+4*t+3}], v[{16+4*t}:{19+4*t}], v[{Pr}:{Pr+3}], 0")
            a(f"v_cvt_pk_bf16_f32 v{PM}, v{SM}, v{SM+1}")
            a(f"v_mov_b32 v{PM+1}, 0")
            for t in range(2):
                a(f"v_add_f32 v{VA+4*t}, v{VA+4*t}, v{VA+4*t+1}")
                a(f"v_add_f32 v{VA+4*t+2}, v{VA+4*t+2}, v{VA+4*t+3}")
                a(f"v_cvt_pk_bf16_f32 v{VA+4*t}, v{VA+4*t}, v{VA+4*t+2}")
                a(f"v_mov_b32 v{VA+4*t+1}, 0")
            for t in range(2):
                a(f"v_mfma_f32_16x16x16_bf16 v[{O+4*t}:{O+4*t+3}], v[{VA+4*t}:{VA+4*t+1}], v[{PM}:{PM+1}], v[{O+4*t}:{O+4*t+3}]")
            C.lds(f"ds_write2_b32 v{vVXW}, v{VA}, v{VA+4} offset0:0 offset1:64")
            if par == 1:
                a(f"s_cmp_eq_u32 s{sSTEP}, 63")
                a(f"s_cbranch_scc1 {lend}")
            a(f"v_pk_add_f32 v[{ls}:{ls+1}], v[{S0}:{S0+1}], v[{S0+2}:{S0+3}]")
            a(f"v_pk_add_f32 v[{S1}:{S1+1}], v[{S1}:{S1+1}], v[{S1+2}:{S1+3}]")
            a(f"v_pk_add_f32 v[{ls}:{ls+1}], v[{ls}:{ls+1}], v[{SM}:{SM+1}]")
            a(f"v_pk_add_f32 v[{ls}:{ls+1}], v[{ls}:{ls+1}], v[{S1}:{S1+1}]")
            a(f"v_add_f32 v{ls}, v{ls}, v{ls+1}")
            xl(a, ls, tt, "v_add_f32")
            a(f"v_rcp_f32 v{ls}, v{ls}")
            for r in range(4):
                a(f"v_cndmask_b32 v{O+r}, v{O+r}, v{O+4+r}, s[{sHALF}:{sHALF+1}]")
            a(f"v_pk_mul_f32 v[{O}:{O+1}], v[{O}:{O+1}], v[{ls}:{ls+1}] op_sel_hi:[1,0]")
            a(f"v_pk_mul_f32 v[{O+2}:{O+3}], v[{O+2}:{O+3}], v[{ls}:{ls+1}] op_sel_hi:[1,0]")
            a(f"v_cvt_pk_bf16_f32 v{O}, v{O}, v{O+1}")
            a(f"v_cvt_pk_bf16_f32 v{O+1}, v{O+2}, v{O+3}")
            C.lds(f"ds_write_b64 v{vOW}, v[{O}:{O+1}]")
            for r in range(0, 16, 2): a(f"v_mov_b64 v[{r}:{r+1}], 0")
            C.all_l()
            a("s_barrier")
            P.stamp("smax_pv")
            OA=WVS+8
            for kb2 in range(2):
                C.lds(f"ds_read_b128 v[{OA+4*kb2}:{OA+4*kb2+3}], v{vOR} offset:{128*kb2}", ("oa",kb2))
            for r in range(16, 32, 2): a(f"v_mov_b64 v[{r}:{r+1}], 0")
            if role == "IO":
                a(f"v_add_u32 v{T}, -2048, v{vMSW}")
                C.lds(f"ds_read_b128 v[{T+2}:{T+5}], v{T}", "vx")
            def fin(i):
                a(f"v_add_f32 v{4*i}, v{4*i}, v{4*i+1}")
                a(f"v_add_f32 v{4*i+1}, v{4*i+2}, v{4*i+3}")
                if par: a(f"v_or_b32 v{4*i}, 1, v{4*i}")
                else: a(f"v_and_b32 v{4*i}, -2, v{4*i}")
                a(f"global_store_dwordx2 v{vPST}, v[{4*i}:{4*i+1}], s[{sPB+2*i}:{sPB+2*i+1}] {sc}")
            C.all_l()
            def omf(i, kb2): a(f"v_smfmac_f32_16x16x64_bf16 v[{4*i}:{4*i+3}], v[{OA+4*kb2}:{OA+4*kb2+3}], v[{WO(i,kb2)}:{WO(i,kb2)+7}], v{vIDX}")
            omf(0,0); omf(1,0); omf(0,1); omf(1,1)
            for i in range(2, 8, 2):
                omf(i,0); omf(i+1,0)
                fin(i-2)
                omf(i,1); omf(i+1,1)
                fin(i-1)
            for r in range(QA, QA+24, 2): a(f"v_mov_b64 v[{r}:{r+1}], 0")
            fin(6); fin(7)
            P.stamp("outproj")
            if role == "IO":
                dma_k()
                for i in range(6):
                    for hf in range(2): wv_read(i>>1, i&1, SL[i], hf)
            else:
                for i in range(2):
                    for hf in range(2): wv_read(0, i, SL[i], hf)
                lp = a.newlabel("c_pollp")
                RB=QB
                a(f"v_add_u32 v{T}, 4096, v{vL16}")
                a.label(lp)
                for i in range(8):
                    a(f"global_load_dwordx4 v[{RB+4*i}:{RB+4*i+3}], v{vL16 if i<4 else T}, s[{sPBr}:{sPBr+1}] offset:{(i&3)*1024} sc1")
                tg = [RB+4*i+j for i in range(8) for j in (0, 2)]
                op = (lambda d,x,y,z: f"v_bitop3_b32 v{d}, v{x}, v{y}, v{z} bitop3:0x80") if par else (lambda d,x,y,z: f"v_or3_b32 v{d}, v{x}, v{y}, v{z}")
                a("s_waitcnt vmcnt(5)")
                a(op(T+1, tg[0], tg[1], tg[2]))
                a(op(T+1, T+1, tg[3], tg[4]))
                a("s_waitcnt vmcnt(2)")
                for k in range(5, 11, 2): a(op(T+1, T+1, tg[k], tg[k+1]))
                a("s_waitcnt vmcnt(0)")
                for k in range(11, 15, 2): a(op(T+1, T+1, tg[k], tg[k+1]))
                a(op(T+1, T+1, tg[15], tg[15]))
                a(f"v_and_b32 v{T+1}, 1, v{T+1}")
                a(f"v_cmp_ne_u32 vcc, {par}, v{T+1}")
                a("s_mov_b64 exec, vcc")
                a(f"s_cbranch_vccnz {retry_stub(lp) if guard else lp}")
                a("s_mov_b64 exec, -1")
                P.stamp("pollp")
                for lvl in (4, 2, 1):
                    for i in range(lvl):
                        for j in (0, 2):
                            a(f"v_pk_add_f32 v[{RB+4*i+j}:{RB+4*i+j+1}], v[{RB+4*i+j}:{RB+4*i+j+1}], v[{RB+4*(i+lvl)+j}:{RB+4*(i+lvl)+j+1}]")
                v0=RB
                a(f"v_permlane32_swap_b32 v{v0}, v{v0+1}")
                a(f"v_permlane32_swap_b32 v{v0+2}, v{v0+3}")
                a(f"v_add_f32 v{v0}, v{v0}, v{v0+1}")
                a(f"v_add_f32 v{v0+2}, v{v0+2}, v{v0+3}")
                a(f"v_permlane16_swap_b32 v{v0}, v{v0+2}")
                a(f"v_add_f32 v{v0}, v{v0}, v{v0+2}")
                a(f"v_mov_b32 v{v0+1}, v{v0}")
                a(f"v_permlane16_swap_b32 v{v0+1}, v{v0}")
                a(f"v_cvt_pk_bf16_f32 v{T}, v{v0+1}, v{v0}")
                a(f"s_mov_b64 exec, s[{sPUBM}:{sPUBM+1}]")
                a(f"v_min_u32 v{T}, -2, v{T}")
                a(f"global_store_dword v{vPUB}, v{T}, s[{sMB+2}:{sMB+3}] {sc}")
                a(f"v_mov_b32 v{T+1}, -1")
                a(f"global_store_dword v{vPUB}, v{T+1}, s[{sMB+6}:{sMB+7}] {sc}")
                if dump:
                    sadd64(a, sDUMP, sDUMP, 8192)
                    a(f"global_store_dword v{vPUB}, v{T}, s[{sDUMP}:{sDUMP+1}]")
                a("s_mov_b64 exec, -1")
                for i in range(2, 6):
                    for hf in range(2): wv_read(i>>1, i&1, SL[i], hf)
                P.stamp("reduce")
            a(f"s_mov_b64 s[{sT}:{sT+1}], s[{sMB}:{sMB+1}]")
            a(f"s_mov_b64 s[{sMB}:{sMB+1}], s[{sMB+2}:{sMB+3}]")
            a(f"s_mov_b64 s[{sMB+2}:{sMB+3}], s[{sMB+4}:{sMB+5}]")
            a(f"s_mov_b64 s[{sMB+4}:{sMB+5}], s[{sMB+6}:{sMB+7}]")
            a(f"s_mov_b64 s[{sMB+6}:{sMB+7}], s[{sT}:{sT+1}]")
            a(f"s_add_u32 s{sSTEP}, s{sSTEP}, 1")
            a.flush_hazards()
        a(f"s_branch {lloop}")
    for (l, lback) in tails:
        a.label(l)
        a(f"s_add_u32 s{sSPIN}, s{sSPIN}, 1")
        a(f"s_cmp_gt_u32 s{sSPIN}, 0x400000")
        a("s_cbranch_scc1 L_fail")
        a(f"s_branch {lback}")
    a.label(lend)
    a.flush_hazards()
    a(f"s_memtime s[{sT0+2}:{sT0+3}]")
    a("s_waitcnt lgkmcnt(0)")
    a("s_barrier")
    l0 = a.newlabel("c_fin")
    a(f"s_cmp_lt_u32 s{S_WAVE}, 2")
    a(f"s_cbranch_scc1 {l0}")
    a(f"v_add_u32 v{T}, -2048, v{vMSW}")
    a(f"ds_read_b128 v[{T+2}:{T+5}], v{T}")
    a("s_waitcnt lgkmcnt(0)")
    a(f"global_store_dwordx4 v{vL16}, v[{T+2}:{T+5}], s[{sVM}:{sVM+1}] sc1")
    a(f"v_mov_b32 v{T}, s{sPRG}")
    a(f"v_mov_b32 v{T+1}, 64")
    a("s_waitcnt vmcnt(0)")
    a(f"global_store_dword v{T}, v{T+1}, s[{S_WS}:{S_WS+1}] sc1")
    a.label(l0)
    a("s_waitcnt lgkmcnt(0) vmcnt(0)")
    return P
```

```python
from asmlib import *
from layout import *
from bulk import *
SCALE = 128 ** -0.5
sSEG=40; sSEQ=41; sEP=42; sEPr=44; sQ=46; sK=48; sV=50; sKMb=52; sVMb=54; sMASK=56
sMASK=80; sFLG=96; sFRE=97; sL2E=98; sSC=99
L_OX = 0
L_RED = 9216
L_WD = 16384
ORS = 272
vL=1; vG=2; vC=3; vL16=4; vT=5
vCON=16
vOW=26; vOR=27; vEPW=28; vEPR=29; vCOL=30; vVMO=31
QB=32; KFR=48; KMR=80; VFR=96; VMR=112
SS=120
PP=132
OO=140
OB=160
DD=32
WDF=200
WOF = lambda ti, ks: (ti*4+ks)*4

def xl(a, x, t, op):
    a(f"v_mov_b32 v{t}, v{x}")
    a(f"v_permlane32_swap_b32 v{t}, v{x}")
    a(f"{op} v{x}, v{t}, v{x}")
    a(f"v_mov_b32 v{t}, v{x}")
    a(f"v_permlane16_swap_b32 v{t}, v{x}")
    a(f"{op} v{x}, v{t}, v{x}")

def wg_sum(a, x, t, slot):
    row16_sum(a, x, None)
    xl(a, x, t, "v_add_f32")
    a(f"s_lshl_b32 s{sT}, s{S_WAVE}, 2")
    a(f"s_add_u32 s{sT}, s{sT}, {L_RED+slot*16}")
    a(f"v_mov_b32 v{t}, s{sT}")
    a(f"ds_write_b32 v{t}, v{x}")
    a(f"v_mov_b32 v{t}, {L_RED+slot*16}")
    a("s_waitcnt lgkmcnt(0)")
    a("s_barrier")
    a(f"ds_read_b128 v[{t+2}:{t+5}], v{t}")
    a("s_waitcnt lgkmcnt(0)")
    a(f"v_add_f32 v{t+2}, v{t+2}, v{t+3}")
    a(f"v_add_f32 v{t+4}, v{t+4}, v{t+5}")
    a(f"v_add_f32 v{x}, v{t+2}, v{t+4}")

def ef_setup(a):
    a("s_barrier")
    for cq in range(4):
        a(f"s_lshl_b32 s{sT+6}, s{S_VR}, 17")
        a(f"s_add_u32 s{sT+6}, s{sT+6}, {cq*256}")
        a(f"s_add_u32 s{sT+6}, s{S_WO}, s{sT+6}")
        a(f"s_addc_u32 s{sT+7}, s{S_WO+1}, 0")
        stage_rows(a, sT+6, 1024, 128, cq*32768, 2)
    cp = tr_base(a, 10, 2)
    a("v_lshrrev_b32 v12, 1, v2")
    a("v_xor_b32 v11, v11, v12")
    a("v_and_b32 v12, 1, v2")
    a("v_lshl_add_u32 v10, v12, 4, v10")
    a(f"s_lshl_b32 s{sT}, s{S_WAVE}, 15")
    a(f"v_add_u32 v10, s{sT}, v10")
    a("s_waitcnt vmcnt(0)")
    a("s_barrier")
    for p in range(4):
        a(f"v_xor_b32 v12, {2*p}, v11")
        a("v_lshl_add_u32 v12, v12, 5, v10")
        for tau in range(2):
            ti = 2*p+tau
            for ks in range(4):
                for m in range(2):
                    a(f"ds_read_b64_tr_b16 a[{WOF(ti,ks)+2*m}:{WOF(ti,ks)+2*m+1}], v12 offset:{ks*8192+m*1024+8*tau}")
    a("s_waitcnt lgkmcnt(0)")
    a("s_barrier")
    lane_ids(a, vL, vG, vC)
    a(f"v_lshlrev_b32 v{vL16}, 4, v{vL}")
    a(f"v_and_b32 v{vT}, 31, v{vL}")
    a(f"v_lshlrev_b32 v{vT}, 2, v{vT}")
    a(f"v_lshrrev_b32 v{vT+1}, 5, v{vL}")
    a(f"v_lshl_add_u32 v{vT}, v{vT+1}, 1, v{vT}")
    a(f"s_lshl_b32 s{sT}, s{S_WAVE}, 7")
    a(f"v_add_u32 v{vCOL}, s{sT}, v{vT}")
    poll_counter(a, F_MODRDY, 32, vt=vT)
    a(f"v_lshlrev_b32 v{vT}, 2, v{vCOL}")
    a(f"v_add_u32 v{vT}, {WS_MOD+4096}, v{vT}")
    a(f"v_add_u32 v{vT+1}, 4096, v{vT}")
    a(f"global_load_dwordx2 v[{vCON}:{vCON+1}], v{vT}, s[{S_WS}:{S_WS+1}] sc1")
    a(f"global_load_dwordx2 v[{vCON+2}:{vCON+3}], v{vT}, s[{S_WS}:{S_WS+1}] offset:2048 sc1")
    a(f"global_load_dwordx2 v[{vCON+4}:{vCON+5}], v{vT+1}, s[{S_WS}:{S_WS+1}] sc1")
    a(f"global_load_dwordx2 v[{vCON+6}:{vCON+7}], v{vT+1}, s[{S_WS}:{S_WS+1}] offset:2048 sc1")
    a(f"v_lshlrev_b32 v{vCOL}, 1, v{vCOL}")
    a(f"global_load_dword v{vCON+9}, v{vCOL}, s[{S_WR}:{S_WR+1}]")
    a(f"s_and_b32 s{sT}, s{S_WAVE}, 1")
    a(f"s_lshr_b32 s{sT+1}, s{S_WAVE}, 1")
    a(f"s_mul_i32 s{sT+2}, s{sT}, {16*ORS}")
    a(f"s_lshl_b32 s{sT+3}, s{sT+1}, 7")
    a(f"s_add_u32 s{sT+2}, s{sT+2}, s{sT+3}")
    a(f"v_mul_u32_u24 v{vT}, {ORS}, v{vC}")
    a(f"v_lshl_add_u32 v{vOW}, v{vG}, 3, v{vT}")
    a(f"v_add_u32 v{vOW}, s{sT+2}, v{vOW}")
    a(f"v_lshl_add_u32 v{vOR}, v{vG}, 4, v{vT}")
    a(f"v_lshlrev_b32 v{vEPW}, 16, v{vC}")
    a(f"v_lshl_add_u32 v{vEPW}, v{vG}, 5, v{vEPW}")
    a(f"s_lshl_b32 s{sT+2}, s{S_VR}, 11")
    a(f"s_lshl_b32 s{sT+3}, s{S_WAVE}, 9")
    a(f"s_add_u32 s{sT+2}, s{sT+2}, s{sT+3}")
    a(f"v_add_u32 v{vEPW}, s{sT+2}, v{vEPW}")
    a(f"v_lshrrev_b32 v{vT}, 5, v{vL}")
    a(f"v_lshlrev_b32 v{vT}, 11, v{vT}")
    a(f"v_and_b32 v{vT+1}, 31, v{vL}")
    a(f"v_lshl_add_u32 v{vT}, v{vT+1}, 4, v{vT}")
    a(f"s_lshl_b32 s{sT+2}, s{S_VR}, 16")
    a(f"s_add_u32 s{sT+2}, s{sT+2}, s{sT+3}")
    a(f"v_add_u32 v{vEPR}, s{sT+2}, v{vT}")
    a(f"s_lshl_b32 s{sT+2}, s{sT+1}, 10")
    a(f"v_lshl_add_u32 v{vVMO}, v{vL}, 2, s{sT+2}")
    a(f"s_lshl_b32 s{sT+2}, s{sT}, 4")
    a(f"v_add_u32 v{vT}, s{sT+2}, v{vC}")
    a(f"v_lshlrev_b32 v{vT+1}, 2, v{vG}")
    a(f"v_sub_u32 v{vT}, v{vT}, v{vT+1}")
    for kt in range(2):
        for r in range(4):
            a(f"v_cmp_gt_i32 s[{sMASK+2*(4*kt+r)}:{sMASK+2*(4*kt+r)+1}], {16*kt+r}, v{vT}")
    a(f"s_lshl_b32 s{sT+2}, s{S_VX}, 21")
    a(f"s_add_u32 s{sT+2}, s{sT+2}, {WS_EP}")
    sadd64(a, sEP, S_WS, f"s{sT+2}")
    a(f"s_lshl_b32 s{sT+2}, s{S_VX}, 7")
    a(f"s_add_u32 s{sFLG}, s{sT+2}, {F_EPF}")
    a(f"s_add_u32 s{sFRE}, s{sT+2}, {F_EPFREE}")
    a(f"s_mov_b32 s{sL2E}, {f2u(LOG2E)}")
    a(f"s_mov_b32 s{sSC}, {f2u(SCALE)}")
    for i in range(4): a(f"v_mov_b32 v{VMR+2*i+1}, 0")
    a(f"v_mov_b32 v{PP+5}, 0")
    a("s_waitcnt vmcnt(0)")
    a(f"v_lshlrev_b32 v{vCON+8}, 16, v{vCON+9}")
    a(f"v_and_b32 v{vCON+9}, 0xffff0000, v{vCON+9}")

def poll_flags32(a, soff, sval):
    l = a.newlabel("pf")
    a(f"v_and_b32 v{vT}, 31, v{vL}")
    a(f"v_lshl_add_u32 v{vT}, v{vT}, 2, s{soff}")
    a(f"s_mov_b32 s{sT+9}, 0")
    a.label(l)
    a(f"global_load_dword v{vT+1}, v{vT}, s[{S_WS}:{S_WS+1}] sc1")
    a(f"s_add_u32 s{sT+9}, s{sT+9}, 1")
    a(f"s_cmp_gt_u32 s{sT+9}, 0x400000")
    a("s_cbranch_scc1 L_fail")
    a("s_waitcnt vmcnt(0)")
    a(f"v_cmp_gt_u32 vcc, s{sval}, v{vT+1}")
    a(f"s_cbranch_vccnz {l}")

def set_flag(a, soff, sval, sc):
    l = a.newlabel("sf")
    a(f"s_cmp_lg_u32 s{S_WAVE}, 0")
    a(f"s_cbranch_scc1 {l}")
    a(f"s_lshl_b32 s{sT}, s{S_VR}, 2")
    a(f"s_add_u32 s{sT}, s{sT}, s{soff}")
    a(f"v_mov_b32 v{vT}, s{sT}")
    a(f"v_mov_b32 v{vT+1}, s{sval}")
    a("s_mov_b64 exec, 1")
    a(f"global_store_dword v{vT}, v{vT+1}, s[{S_WS}:{S_WS+1}] {sc}")
    a("s_mov_b64 exec, -1")
    a.label(l)

def ef_loop(a, sc):
    a(f"s_sub_u32 s{sSEG}, s{S_VX}, 1")
    a(f"s_mov_b32 s{sSEQ}, 0")
    lloop = a.newlabel("efloop")
    a.flush_hazards()
    a.label(lloop)
    a(f"s_lshl_b32 s{sT+4}, s{sSEG}, 5")
    a(f"s_add_u32 s{sT+4}, s{sT+4}, s{S_VR}")
    a(f"s_lshl_b32 s{sT+5}, s{sT+4}, 10")
    a(f"v_add_u32 v{vT+9}, s{sT+5}, v{vCOL}")
    a(f"global_load_dword v{vT+10}, v{vT+9}, s[{S_X}:{S_X+1}]")
    a(f"s_lshl_b32 s{sT}, s{sSEG}, 18")
    a(f"s_lshl_b32 s{sT+1}, s{S_VR}, 13")
    a(f"s_add_u32 s{sT}, s{sT}, s{sT+1}")
    a(f"s_and_b32 s{sT+2}, s{S_WAVE}, 1")
    a(f"s_lshl_b32 s{sT+2}, s{sT+2}, 12")
    a(f"s_add_u32 s{sT+2}, s{sT+2}, s{sT}")
    a(f"s_add_u32 s{sT+2}, s{sT+2}, {WS_QF}")
    sadd64(a, sQ, S_WS, f"s{sT+2}")
    a(f"s_add_u32 s{sT+2}, s{sT}, {WS_KF}")
    sadd64(a, sK, S_WS, f"s{sT+2}")
    a(f"s_lshr_b32 s{sT+2}, s{S_WAVE}, 1")
    a(f"s_lshl_b32 s{sT+2}, s{sT+2}, 12")
    a(f"s_add_u32 s{sT+2}, s{sT+2}, s{sT}")
    a(f"s_add_u32 s{sT+2}, s{sT+2}, {WS_VF}")
    sadd64(a, sV, S_WS, f"s{sT+2}")
    a(f"s_lshr_b32 s{sT+2}, s{sT}, 1")
    a(f"s_add_u32 s{sT+2}, s{sT+2}, {WS_KM}")
    sadd64(a, sKMb, S_WS, f"s{sT+2}")
    a(f"s_lshr_b32 s{sT+2}, s{sT}, 2")
    a(f"s_add_u32 s{sT+2}, s{sT+2}, {WS_VM}")
    sadd64(a, sVMb, S_WS, f"s{sT+2}")
    a(f"s_lshr_b32 s{sT+2}, s{sSEG}, 1")
    a(f"s_lshl_b32 s{sT+2}, s{sT+2}, 7")
    a(f"s_add_u32 s{sT+2}, s{sT+2}, {F_KVRDY}")
    poll_counter(a, f"s{sT+2}", 96, vt=vT)
    a(f"v_add_u32 v{vT+2}, 4096, v{vL16}")
    for ks in range(4):
        a(f"global_load_dwordx4 v[{QB+4*ks}:{QB+4*ks+3}], v{vL16}, s[{sQ}:{sQ+1}] offset:{1024*ks} sc1")
    for kt in range(2):
        for ks in range(4):
            a(f"global_load_dwordx4 v[{KFR+16*kt+4*ks}:{KFR+16*kt+4*ks+3}], v{vL16 if kt==0 else vT+2}, s[{sK}:{sK+1}] offset:{1024*ks} sc1")
    for i in range(4):
        a(f"global_load_dwordx4 v[{VFR+4*i}:{VFR+4*i+3}], v{vL16}, s[{sV}:{sV+1}] offset:{1024*i} sc1")
    l = a.newlabel("pp")
    a(f"s_lshl_b32 s{sT+2}, s{S_VR}, 7")
    a(f"s_add_u32 s{sT+2}, s{sT+2}, {F_PROG}")
    a(f"v_mov_b32 v{vT}, s{sT+2}")
    a(f"s_add_u32 s{sT+3}, s{sSEG}, 1")
    a(f"s_mov_b32 s{sT+9}, 0")
    a.label(l)
    a(f"global_load_dwordx2 v[{vT+3}:{vT+4}], v{vT}, s[{S_WS}:{S_WS+1}] sc1")
    a(f"s_add_u32 s{sT+9}, s{sT+9}, 1")
    a(f"s_cmp_gt_u32 s{sT+9}, 0x400000")
    a("s_cbranch_scc1 L_fail")
    a("s_waitcnt vmcnt(0)")
    a(f"v_min_u32 v{vT+3}, v{vT+3}, v{vT+4}")
    a(f"v_cmp_gt_u32 vcc, s{sT+3}, v{vT+3}")
    a(f"s_cbranch_vccnz {l}")
    for ks in range(4):
        a(f"global_load_dwordx4 v[{KMR+4*ks}:{KMR+4*ks+3}], v{vL16}, s[{sKMb}:{sKMb+1}] offset:{1024*ks} sc1")
    for i in range(4):
        a(f"global_load_dword v{VMR+2*i}, v{vVMO}, s[{sVMb}:{sVMb+1}] offset:{256*i} sc1")
    SM=SS; S0=SS+4; S1=SS+8
    for kt, Sx in ((0,S0),(1,S1)):
        for ks in range(4):
            c = "0" if ks==0 else f"v[{Sx}:{Sx+3}]"
            a(f"v_mfma_f32_16x16x32_bf16 v[{Sx}:{Sx+3}], v[{KFR+16*kt+4*ks}:{KFR+16*kt+4*ks+3}], v[{QB+4*ks}:{QB+4*ks+3}], {c}")
    a("s_waitcnt vmcnt(0)")
    for ks in range(4):
        c = "0" if ks==0 else f"v[{SM}:{SM+3}]"
        a(f"v_mfma_f32_16x16x32_bf16 v[{SM}:{SM+3}], v[{KMR+4*ks}:{KMR+4*ks+3}], v[{QB+4*ks}:{QB+4*ks+3}], {c}")
    pairs = [S0, S0+2, S1, S1+2, SM]
    regs = [S0+i for i in range(4)] + [S1+i for i in range(4)] + [SM, SM+1]
    for x in pairs:
        rnd_pair(a, x)
        a(f"v_mul_f32 v{x}, s{sSC}, v{x}")
        a(f"v_mul_f32 v{x+1}, s{sSC}, v{x+1}")
        rnd_pair(a, x)
    a(f"v_mov_b32 v{vT}, {f2u(-1e9)}")
    for i in range(8):
        a(f"v_cndmask_b32 v{regs[i]}, v{regs[i]}, v{vT}, s[{sMASK+2*i}:{sMASK+2*i+1}]")
    mx=vT; tt=vT+1; ls=vT+2
    a(f"v_max3_f32 v{mx}, v{regs[0]}, v{regs[1]}, v{regs[2]}")
    for i in (3,5,7): a(f"v_max3_f32 v{mx}, v{mx}, v{regs[i]}, v{regs[i+1]}")
    a(f"v_max_f32 v{mx}, v{mx}, v{regs[9]}")
    xl(a, mx, tt, "v_max_f32")
    for r in regs:
        a(f"v_sub_f32 v{r}, v{r}, v{mx}")
        a(f"v_mul_f32 v{r}, s{sL2E}, v{r}")
        a(f"v_exp_f32 v{r}, v{r}")
    a(f"v_add_f32 v{ls}, v{regs[0]}, v{regs[1]}")
    for r in regs[2:]: a(f"v_add_f32 v{ls}, v{ls}, v{r}")
    xl(a, ls, tt, "v_add_f32")
    a(f"v_rcp_f32 v{ls}, v{ls}")
    for r in regs: a(f"v_mul_f32 v{r}, v{r}, v{ls}")
    for i in range(5):
        a(f"v_cvt_pk_bf16_f32 v{PP+i}, v{regs[2*i]}, v{regs[2*i+1]}")
    for i in range(4):
        a(f"v_mfma_f32_16x16x32_bf16 v[{OO+4*i}:{OO+4*i+3}], v[{VFR+4*i}:{VFR+4*i+3}], v[{PP}:{PP+3}], 0")
    for i in range(4):
        a(f"v_mfma_f32_16x16x16_bf16 v[{OO+4*i}:{OO+4*i+3}], v[{VMR+2*i}:{VMR+2*i+1}], v[{PP+4}:{PP+5}], v[{OO+4*i}:{OO+4*i+3}]")
    for i in range(4):
        a(f"v_cvt_pk_bf16_f32 v{OO+4*i}, v{OO+4*i}, v{OO+4*i+1}")
        a(f"v_cvt_pk_bf16_f32 v{OO+4*i+1}, v{OO+4*i+2}, v{OO+4*i+3}")
        a(f"ds_write_b64 v{vOW}, v[{OO+4*i}:{OO+4*i+1}] offset:{32*i}")
    poll_flags32(a, sFRE, sSEQ)
    a("s_waitcnt lgkmcnt(0)")
    a("s_barrier")
    for qt in range(2):
        for ks in range(4):
            a(f"ds_read_b128 v[{OB+16*qt+4*ks}:{OB+16*qt+4*ks+3}], v{vOR} offset:{qt*16*ORS+64*ks}")
    a(f"v_add_u32 v{vT+2}, {16*65536}, v{vEPW}")
    a("s_waitcnt lgkmcnt(0)")
    for qt in range(2):
        for p in range(4):
            for tau in range(2):
                d = DD + (qt*8+2*p+tau)*4
                for ks in range(4):
                    c = "0" if ks==0 else f"v[{d}:{d+3}]"
                    a(f"v_mfma_f32_16x16x32_bf16 v[{d}:{d+3}], a[{WOF(2*p+tau,ks)}:{WOF(2*p+tau,ks)+3}], v[{OB+16*qt+4*ks}:{OB+16*qt+4*ks+3}], {c}")
            if p > 0 or qt > 0:
                pq, pp = (qt, p-1) if p > 0 else (qt-1, 3)
                for tau in range(2):
                    d = DD + (pq*8+2*pp+tau)*4
                    a(f"global_store_dwordx4 v{vEPW if pq==0 else vT+2}, v[{d}:{d+3}], s[{sEP}:{sEP+1}] offset:{128*pp+16*tau} {sc}")
    for tau in range(2):
        d = DD + (8+6+tau)*4
        a(f"global_store_dwordx4 v{vT+2}, v[{d}:{d+3}], s[{sEP}:{sEP+1}] offset:{128*3+16*tau} {sc}")
    a(f"s_add_u32 s{sSEQ}, s{sSEQ}, 1")
    a("s_waitcnt vmcnt(0)")
    a("s_barrier")
    set_flag(a, sFLG, sSEQ, sc)
    poll_flags32(a, sFLG, sSEQ)
    a(f"v_mov_b32 v{vT+2}, v{vEPR}")
    for i in range(16):
        a(f"global_load_dwordx4 v[{DD+4*i}:{DD+4*i+3}], v{vT+2}, s[{sEP}:{sEP+1}] sc1")
        if i < 15: a(f"v_add_u32 v{vT+2}, 4096, v{vT+2}")
    for i in range(1, 16):
        a(f"s_waitcnt vmcnt({15-i})")
        for j in (0, 2):
            a(f"v_pk_add_f32 v[{DD+j}:{DD+j+1}], v[{DD+j}:{DD+j+1}], v[{DD+4*i+j}:{DD+4*i+j+1}]")
    a("s_barrier")
    set_flag(a, sFRE, sSEQ, sc)
    X=DD+8
    a(f"v_permlane32_swap_b32 v{DD}, v{DD+2}")
    a(f"v_permlane32_swap_b32 v{DD+1}, v{DD+3}")
    a(f"v_add_f32 v{DD}, v{DD}, v{DD+2}")
    a(f"v_add_f32 v{DD+1}, v{DD+1}, v{DD+3}")
    rnd_pair(a, DD)
    a(f"v_pk_mul_f32 v[{DD}:{DD+1}], v[{DD}:{DD+1}], v[{vCON}:{vCON+1}]")
    rnd_pair(a, DD)
    a(f"v_lshlrev_b32 v{X}, 16, v{vT+10}")
    a(f"v_and_b32 v{X+1}, 0xffff0000, v{vT+10}")
    a(f"v_pk_add_f32 v[{X}:{X+1}], v[{X}:{X+1}], v[{DD}:{DD+1}]")
    a(f"v_cvt_pk_bf16_f32 v{DD+4}, v{X}, v{X+1}")
    a(f"v_add_u32 v{DD+5}, {WS_X1}, v{vT+9}")
    a(f"global_store_dword v{DD+5}, v{DD+4}, s[{S_WS}:{S_WS+1}] sc1")
    a(f"v_lshlrev_b32 v{X}, 16, v{DD+4}")
    a(f"v_and_b32 v{X+1}, 0xffff0000, v{DD+4}")
    m=DD+10; q=DD+12; t=DD+16
    a(f"v_add_f32 v{m}, v{X}, v{X+1}")
    wg_sum(a, m, t, 0)
    a(f"v_mul_f32 v{m}, {f2u(1/512)}, v{m}")
    a(f"v_sub_f32 v{q}, v{X}, v{m}")
    a(f"v_sub_f32 v{q+1}, v{X+1}, v{m}")
    a(f"v_mul_f32 v{q}, v{q}, v{q}")
    a(f"v_fmac_f32 v{q}, v{q+1}, v{q+1}")
    wg_sum(a, q, t, 1)
    a(f"v_mul_f32 v{q}, {f2u(1/512)}, v{q}")
    rnd1(a, q)
    a(f"v_add_f32 v{q}, {f2u(1e-5)}, v{q}")
    rnd1(a, q)
    a(f"v_sqrt_f32 v{q}, v{q}")
    rnd1(a, q)
    a(f"v_rcp_f32 v{q}, v{q}")
    rnd1(a, m)
    H=DD
    a(f"v_sub_f32 v{H}, v{X}, v{m}")
    a(f"v_sub_f32 v{H+1}, v{X+1}, v{m}")
    rnd_pair(a, H)
    a(f"v_mul_f32 v{H}, v{H}, v{q}")
    a(f"v_mul_f32 v{H+1}, v{H+1}, v{q}")
    rnd_pair(a, H)
    a(f"v_pk_mul_f32 v[{H}:{H+1}], v[{H}:{H+1}], v[{vCON+4}:{vCON+5}]")
    rnd_pair(a, H)
    a(f"v_pk_add_f32 v[{H}:{H+1}], v[{H}:{H+1}], v[{vCON+2}:{vCON+3}]")
    a(f"v_cvt_pk_bf16_f32 v{DD+4}, v{H}, v{H+1}")
    a(f"v_add_u32 v{DD+5}, {WS_H2}, v{vT+9}")
    a(f"global_store_dword v{DD+5}, v{DD+4}, s[{S_WS}:{S_WS+1}] sc1")
    a(f"v_lshlrev_b32 v{H}, 16, v{DD+4}")
    a(f"v_and_b32 v{H+1}, 0xffff0000, v{DD+4}")
    a(f"v_mul_f32 v{m}, v{H}, v{vCON+8}")
    a(f"v_fmac_f32 v{m}, v{H+1}, v{vCON+9}")
    a(f"v_pk_mul_f32 v[{H}:{H+1}], v[{H}:{H+1}], v[{vCON+6}:{vCON+7}]")
    rnd_pair(a, H)
    a(f"v_pk_add_f32 v[{H}:{H+1}], v[{H}:{H+1}], v[{X}:{X+1}]")
    a(f"v_cvt_pk_bf16_f32 v{DD+4}, v{H}, v{H+1}")
    a(f"global_store_dword v{vT+9}, v{DD+4}, s[{S_OUT}:{S_OUT+1}] sc1")
    wg_sum(a, m, t, 2)
    rnd1(a, m)
    a(f"v_ashrrev_i32 v{t}, 31, v{m}")
    a(f"v_or_b32 v{t}, 0x80000000, v{t}")
    a(f"v_xor_b32 v{m}, v{m}, v{t}")
    a(f"v_and_b32 v{m}, 0xffff0000, v{m}")
    a(f"s_sub_u32 s{sT+5}, 2047, s{sT+4}")
    a(f"v_or_b32 v{m}, s{sT+5}, v{m}")
    a(f"s_lshl_b32 s{sT+4}, s{sT+4}, 2")
    a(f"s_add_u32 s{sT+4}, s{sT+4}, {WS_R}")
    a(f"v_mov_b32 v{t}, s{sT+4}")
    a("s_mov_b64 exec, 1")
    a(f"global_store_dword v{t}, v{m}, s[{S_WS}:{S_WS+1}] sc1")
    a("s_mov_b64 exec, -1")
    a("s_waitcnt vmcnt(0)")
    a("s_barrier")
    signal_add(a, F_SEGDONE, vt=vT)
    a(f"s_add_u32 s{sSEG}, s{sSEG}, 7")
    a(f"s_cmp_lt_u32 s{sSEG}, 64")
    a.flush_hazards()
    a(f"s_cbranch_scc1 {lloop}")
```

```python
from asmlib import *
from layout import *
from bulk import *
import ef
from ef import vL, vG, vC, vL16, vT, WDF
GF = lambda ks: 128 + 4*ks
UF = lambda ks: 192 + 4*ks

def ffn_preload(a):
    a("s_barrier")
    lskip = a.newlabel("ffn_skip1")
    a(f"s_cmp_ge_u32 s{S_VR}, 22")
    a(f"s_cbranch_scc1 {lskip}")
    lane_ids(a, 2, 3, 4)
    a("v_lshrrev_b32 v5, 1, v4")
    a("v_xor_b32 v5, v5, v3")
    a(f"s_lshl_b32 s{sT+6}, s{S_VR}, 7")
    for (o, x, sm) in ((6, 0, 40), (7, 4, 42)):
        a(f"v_xor_b32 v8, {x}, v5")
        a(f"v_cmp_gt_u32 s[{sm}:{sm+1}], 4, v8")
        a("v_and_b32 v8, 3, v8")
        a("v_lshlrev_b32 v8, 5, v8")
        a("v_and_b32 v9, 1, v4")
        a("v_lshl_add_u32 v8, v9, 4, v8")
        a(f"v_add_u32 v8, s{sT+6}, v8")
        a("v_subrev_u32 v9, 128, v8")
        a("v_cmp_lt_u32 vcc, 2736, v8")
        a("v_cndmask_b32 v8, v8, v9, vcc")
        a(f"s_mov_b32 s{sT}, 2752")
        a(f"v_mad_u32_u24 v{o}, v3, s{sT}, v8")
    a(f"s_mul_i32 s{sT}, s{S_WAVE}, {128*2752}")
    a(f"s_add_u32 s{sT+2}, s{S_WG}, s{sT}")
    a(f"s_addc_u32 s{sT+3}, s{S_WG+1}, 0")
    a(f"s_add_u32 s{sT+4}, s{S_WU}, s{sT}")
    a(f"s_addc_u32 s{sT+5}, s{S_WU+1}, 0")
    a(f"s_lshl_b32 s{sT+1}, s{S_WAVE}, 15")
    for i in range(32):
        var = (i >> 1) & 1
        sm = 42 if var else 40
        a(f"s_add_u32 m0, s{sT+1}, {i*1024}")
        a(f"s_mov_b64 exec, s[{sm}:{sm+1}]")
        a(f"global_load_lds_dwordx4 v{6+var}, s[{sT+2}:{sT+3}]")
        a(f"s_not_b64 exec, s[{sm}:{sm+1}]")
        a(f"global_load_lds_dwordx4 v{6+var}, s[{sT+4}:{sT+5}]")
        if i < 31:
            a(f"s_add_u32 s{sT+2}, s{sT+2}, {4*2752}")
            a(f"s_addc_u32 s{sT+3}, s{sT+3}, 0")
            a(f"s_add_u32 s{sT+4}, s{sT+4}, {4*2752}")
            a(f"s_addc_u32 s{sT+5}, s{sT+5}, 0")
        if i == 24:
            a("s_waitcnt vmcnt(20)")
    a("s_mov_b64 exec, -1")
    cp = tr_base(a, 10, 2)
    a(f"v_lshl_add_u32 v10, v{cp}, 3, v10")
    a("s_waitcnt vmcnt(0)")
    a("s_barrier")
    for (F, add) in ((GF, 0), (UF, 4)):
        a(f"s_add_u32 s{sT}, s{S_WAVE}, {add}")
        a(f"v_xor_b32 v14, s{sT}, v11")
        a("v_lshl_add_u32 v14, v14, 5, v10")
        a("v_add_u32 v15, 0x10000, v14")
        for ks in range(16):
            for m in range(2):
                a(f"ds_read_b64_tr_b16 a[{F(ks)+2*m}:{F(ks)+2*m+1}], v{14+(ks>>3)} offset:{(ks&7)*8192+m*1024}")
    a("s_waitcnt lgkmcnt(0)")
    a("s_barrier")
    a.label(lskip)
    a.flush_hazards()
    lane_ids(a, 2, 3, 4)
    a("v_lshrrev_b32 v5, 1, v2")
    a("v_lshlrev_b32 v5, 10, v5")
    a("v_and_b32 v6, 1, v2")
    a("v_lshl_add_u32 v5, v6, 4, v5")
    a(f"s_lshl_b32 s{sT}, s{S_VR}, 5")
    a(f"s_lshl_b32 s{sT+1}, s{S_WAVE}, 15")
    a(f"s_add_u32 s{sT}, s{sT}, s{sT+1}")
    a(f"s_add_u32 s{sT+2}, s{S_WD}, s{sT}")
    a(f"s_addc_u32 s{sT+3}, s{S_WD+1}, 0")
    a(f"s_lshl_b32 s{sT+1}, s{S_WAVE}, 10")
    for j in range(11):
        l = None
        if j == 10:
            l = a.newlabel("wd3")
            a(f"s_cmp_eq_u32 s{S_WAVE}, 3")
            a(f"s_cbranch_scc1 {l}")
        a(f"s_add_u32 m0, s{sT+1}, {j*4096}")
        a(f"global_load_lds_dwordx4 v5, s[{sT+2}:{sT+3}]")
        a(f"s_add_u32 s{sT+2}, s{sT+2}, {4*32768}")
        a(f"s_addc_u32 s{sT+3}, s{sT+3}, 0")
        if l: a.label(l)
    a("v_lshrrev_b32 v5, 2, v4")
    a("v_lshl_add_u32 v5, v3, 3, v5")
    a("v_lshlrev_b32 v5, 5, v5")
    a("v_and_b32 v6, 3, v4")
    a("v_lshl_add_u32 v5, v6, 3, v5")
    a(f"v_add_u32 v5, s{sT+1}, v5")
    a("s_waitcnt vmcnt(0)")
    for j in range(11):
        for m in range(2):
            a(f"ds_read_b64_tr_b16 v[{WDF+4*j+2*m}:{WDF+4*j+2*m+1}], v5 offset:{j*4096+m*128}")
    a("s_waitcnt lgkmcnt(0)")

def top2_merge(a, m1, m2, p1, p2):
    a(f"v_min_u32 v{p1+2}, v{m1}, v{p1}")
    a(f"v_max_u32 v{m1}, v{m1}, v{p1}")
    a(f"v_max3_u32 v{m2}, v{p1+2}, v{m2}, v{p2}")

def final_stage(a, sc):
    poll_counter(a, F_SEGDONE, 2048, vt=vT, base=S_WS, sleep=1)
    K=32
    a(f"s_lshl_b32 s{sT}, s{S_WAVE}, 11")
    a(f"s_add_u32 s{sT}, s{sT}, {WS_R}")
    a(f"v_add_u32 v{vT}, s{sT}, v{vL16}")
    a(f"global_load_dwordx4 v[{K}:{K+3}], v{vT}, s[{S_WS}:{S_WS+1}] sc1")
    a(f"global_load_dwordx4 v[{K+4}:{K+7}], v{vT}, s[{S_WS}:{S_WS+1}] offset:1024 sc1")
    m1=K+8; m2=K+9; p1=K+10; p2=K+11
    a("s_waitcnt vmcnt(0)")
    a(f"v_max_u32 v{m1}, v{K}, v{K+1}")
    a(f"v_min_u32 v{m2}, v{K}, v{K+1}")
    for i in range(2, 8):
        a(f"v_med3_u32 v{m2}, v{m1}, v{m2}, v{K+i}")
        a(f"v_max_u32 v{m1}, v{m1}, v{K+i}")
    for sh in (8, 4, 2, 1):
        a(f"v_mov_b32_dpp v{p1}, v{m1} row_ror:{sh} row_mask:0xf bank_mask:0xf")
        a(f"v_mov_b32_dpp v{p2}, v{m2} row_ror:{sh} row_mask:0xf bank_mask:0xf")
        top2_merge(a, m1, m2, p1, p2)
    for sw in ("v_permlane16_swap_b32", "v_permlane32_swap_b32"):
        a(f"v_mov_b32 v{p1}, v{m1}")
        a(f"v_mov_b32 v{p2}, v{m2}")
        a(f"{sw} v{p1}, v{m1}")
        a(f"{sw} v{p2}, v{m2}")
        top2_merge(a, m1, m2, p1, p2)
    a(f"s_lshl_b32 s{sT}, s{S_WAVE}, 3")
    a(f"s_add_u32 s{sT}, s{sT}, {ef.L_RED+64}")
    a(f"v_mov_b32 v{vT}, s{sT}")
    a(f"ds_write_b64 v{vT}, v[{m1}:{m2}]")
    a(f"v_mov_b32 v{vT}, {ef.L_RED+64}")
    a("s_waitcnt lgkmcnt(0)")
    a("s_barrier")
    a(f"ds_read_b128 v[{K}:{K+3}], v{vT}")
    a(f"ds_read_b128 v[{K+4}:{K+7}], v{vT} offset:16")
    a("s_waitcnt lgkmcnt(0)")
    a(f"v_mov_b32 v{m1}, v{K}")
    a(f"v_mov_b32 v{m2}, v{K+1}")
    for i in (2, 4, 6):
        a(f"v_mov_b32 v{p1}, v{K+i}")
        a(f"v_mov_b32 v{p2}, v{K+i+1}")
        top2_merge(a, m1, m2, p1, p2)
    sK1=40; sK2=41; sI1=42; sI2=43
    a(f"v_readfirstlane_b32 s{sK1}, v{m1}")
    a(f"v_readfirstlane_b32 s{sK2}, v{m2}")
    for (k, i) in ((sK1, sI1), (sK2, sI2)):
        a(f"s_and_b32 s{i}, s{k}, 0x7ff")
        a(f"s_sub_u32 s{i}, 2047, s{i}")
        a(f"s_lshl_b32 s{i}, s{i}, 10")
    a(f"v_mov_b32 v{vT}, s{sI1}")
    a(f"v_mov_b32 v{vT+1}, s{sI2}")
    a(f"v_and_b32 v{vT+2}, 1, v{vC}")
    a(f"v_cmp_eq_u32 vcc, 1, v{vT+2}")
    a(f"v_cndmask_b32 v{vT+3}, v{vT}, v{vT+1}, vcc")
    lskip = a.newlabel("ffn_s1")
    a(f"s_lshl_b32 s{sT+6}, s{S_VR}, 2")
    a(f"s_add_u32 s{sT+6}, s{sT+6}, s{S_WAVE}")
    a(f"s_cmp_ge_u32 s{sT+6}, 86")
    a(f"s_cbranch_scc1 {lskip}")
    a(f"v_lshl_add_u32 v{vT+4}, v{vG}, 4, v{vT+3}")
    a(f"v_add_u32 v{vT+4}, {WS_H2}, v{vT+4}")
    AFR=48
    for ks in range(16):
        a(f"global_load_dwordx4 v[{AFR+4*ks}:{AFR+4*ks+3}], v{vT+4}, s[{S_WS}:{S_WS+1}] offset:{64*ks} sc1")
    G=K; U=K+4
    for ks in range(16):
        a(f"s_waitcnt vmcnt({15-ks})")
        for (D, F) in ((G, GF), (U, UF)):
            c = "0" if ks == 0 else f"v[{D}:{D+3}]"
            a(f"v_mfma_f32_16x16x32_bf16 v[{D}:{D+3}], v[{AFR+4*ks}:{AFR+4*ks+3}], a[{F(ks)}:{F(ks)+3}], {c}")
    rnd_pair(a, G); rnd_pair(a, U)
    a(f"s_mov_b32 s{sT}, {f2u(-LOG2E)}")
    for r in range(2):
        a(f"v_mul_f32 v{G+2+r}, s{sT}, v{G+r}")
        a(f"v_exp_f32 v{G+2+r}, v{G+2+r}")
        a(f"v_add_f32 v{G+2+r}, 1.0, v{G+2+r}")
        a(f"v_rcp_f32 v{G+2+r}, v{G+2+r}")
        a(f"v_mul_f32 v{G+r}, v{G+r}, v{G+2+r}")
    rnd_pair(a, G)
    a(f"v_pk_mul_f32 v[{G}:{G+1}], v[{G}:{G+1}], v[{U}:{U+1}]")
    for r in range(2):
        a(f"v_mov_b32_dpp v{G+2+r}, v{G+r} quad_perm:[1,0,3,2] row_mask:0xf bank_mask:0xf")
        a(f"v_cvt_pk_bf16_f32 v{G+r}, v{G+r}, v{G+2+r}")
        a(f"v_min_u32 v{G+r}, -2, v{G+r}")
    a(f"s_lshl_b32 s{sT}, s{sT+6}, 5")
    a(f"s_add_u32 s{sT}, s{sT}, {WS_ACT}")
    a(f"v_lshl_add_u32 v{vT+4}, v{vC}, 1, s{sT}")
    a("s_mov_b64 exec, 0x5555")
    a(f"global_store_dword v{vT+4}, v{G}, s[{S_WS}:{S_WS+1}] {sc}")
    a(f"global_store_dword v{vT+4}, v{G+1}, s[{S_WS}:{S_WS+1}] offset:2752 {sc}")
    a("s_mov_b64 exec, -1")
    a.label(lskip)
    a.flush_hazards()
    a(f"s_lshl_b32 s{sT}, s{S_VR}, 5")
    a(f"v_lshl_add_u32 v{vT+5}, v{vC}, 1, s{sT}")
    E=112
    for r, sI in ((0, sI1), (1, sI2)):
        a(f"v_add_u32 v{E+8+r}, s{sI}, v{vT+5}")
        a(f"v_add_u32 v{vT+6}, {WS_H2}, v{E+8+r}")
        a(f"global_load_ushort v{E+r}, v{vT+6}, s[{S_WS}:{S_WS+1}] sc1")
        a(f"v_add_u32 v{vT+6}, {WS_X1}, v{E+8+r}")
        a(f"global_load_ushort v{E+2+r}, v{vT+6}, s[{S_WS}:{S_WS+1}] sc1")
    a(f"v_lshlrev_b32 v{vT+6}, 1, v{vT+5}")
    a(f"v_add_u32 v{vT+6}, {WS_MOD+5*2048}, v{vT+6}")
    a(f"global_load_dword v{E+4}, v{vT+6}, s[{S_WS}:{S_WS+1}] sc1")
    a(f"v_mul_u32_u24 v{vT+4}, 2752, v{vT+2}")
    a(f"v_lshl_add_u32 v{vT+4}, v{vG}, 4, v{vT+4}")
    a(f"s_lshl_b32 s{sT}, s{S_WAVE}, 6")
    a(f"s_add_u32 s{sT}, s{sT}, {WS_ACT}")
    a(f"v_add_u32 v{vT+4}, s{sT}, v{vT+4}")
    a(f"s_cmp_eq_u32 s{S_WAVE}, 3")
    a(f"s_cselect_b32 s{sT+7}, {9*256}, {10*256}" if False else f"s_cselect_b32 s{sT+7}, 0, 256")
    a(f"v_add_u32 v{vT+6}, s{sT+7}, v{vT+4}")
    lp = a.newlabel("actpoll")
    a(f"s_mov_b32 s{sT+9}, 0")
    a.label(lp)
    for j in range(10):
        a(f"global_load_dwordx4 v[{AFR+4*j}:{AFR+4*j+3}], v{vT+4}, s[{S_WS}:{S_WS+1}] offset:{256*j} sc1")
    a(f"global_load_dwordx4 v[{AFR+40}:{AFR+43}], v{vT+6}, s[{S_WS}:{S_WS+1}] offset:{256*9} sc1")
    a(f"s_add_u32 s{sT+9}, s{sT+9}, 1")
    a(f"s_cmp_gt_u32 s{sT+9}, 0x80000")
    a("s_cbranch_scc1 L_fail")
    a("s_waitcnt vmcnt(0)")
    a(f"v_max3_u32 v{vT+7}, v{AFR}, v{AFR+1}, v{AFR+2}")
    for r in range(AFR+3, AFR+43, 2):
        a(f"v_max3_u32 v{vT+7}, v{vT+7}, v{r}, v{r+1}")
    a(f"v_max_u32 v{vT+7}, v{vT+7}, v{AFR+43}")
    a(f"v_cmp_eq_u32 vcc, -1, v{vT+7}")
    a(f"s_cbranch_vccnz {lp}")
    Y=K
    for j in range(11):
        l = None
        if j == 10:
            l = a.newlabel("y3")
            a(f"s_cmp_eq_u32 s{S_WAVE}, 3")
            a(f"s_cbranch_scc1 {l}")
        c = "0" if j == 0 else f"v[{Y}:{Y+3}]"
        a(f"v_mfma_f32_16x16x32_bf16 v[{Y}:{Y+3}], v[{AFR+4*j}:{AFR+4*j+3}], v[{WDF+4*j}:{WDF+4*j+3}], {c}")
        if l: a.label(l)
    a.flush_hazards()
    a(f"s_lshl_b32 s{sT}, s{S_WAVE}, 7")
    a(f"s_add_u32 s{sT}, s{sT}, {ef.L_RED+128}")
    a(f"v_lshl_add_u32 v{vT+4}, v{vC}, 3, s{sT}")
    a("s_mov_b64 exec, 0xffff")
    a(f"ds_write_b64 v{vT+4}, v[{Y}:{Y+1}]")
    a("s_mov_b64 exec, -1")
    a(f"v_lshlrev_b32 v{vT+4}, 3, v{vC}")
    a(f"v_add_u32 v{vT+4}, {ef.L_RED+128}, v{vT+4}")
    a("s_waitcnt lgkmcnt(0)")
    a("s_barrier")
    ldone = a.newlabel("fdone")
    a(f"s_cmp_lg_u32 s{S_WAVE}, 0")
    a(f"s_cbranch_scc1 {ldone}")
    for w in range(4):
        a(f"ds_read_b64 v[{Y+2*w}:{Y+2*w+1}], v{vT+4} offset:{128*w}")
    a("s_waitcnt lgkmcnt(0)")
    a(f"v_pk_add_f32 v[{Y}:{Y+1}], v[{Y}:{Y+1}], v[{Y+2}:{Y+3}]")
    a(f"v_pk_add_f32 v[{Y+4}:{Y+5}], v[{Y+4}:{Y+5}], v[{Y+6}:{Y+7}]")
    a(f"v_pk_add_f32 v[{Y}:{Y+1}], v[{Y}:{Y+1}], v[{Y+4}:{Y+5}]")
    rnd_pair(a, Y)
    for r, k in ((0, sK1), (1, sK2)):
        a(f"s_and_b32 s{sT}, s{k}, 0xffff0000")
        a(f"s_xor_b32 s{sT+1}, s{sT}, 0x80000000")
        a(f"s_not_b32 s{sT+2}, s{sT}")
        a(f"s_and_b32 s{sT+2}, s{sT+2}, 0xffff0000")
        a(f"s_bitcmp1_b32 s{sT}, 31")
        a(f"s_cselect_b32 s{sT}, s{sT+1}, s{sT+2}")
        a(f"v_mov_b32 v{Y+2+r}, s{sT}")
        a(f"v_mul_f32 v{Y+2+r}, {f2u(-LOG2E)}, v{Y+2+r}")
        a(f"v_exp_f32 v{Y+2+r}, v{Y+2+r}")
        a(f"v_add_f32 v{Y+2+r}, 1.0, v{Y+2+r}")
        a(f"v_rcp_f32 v{Y+2+r}, v{Y+2+r}")
    rnd_pair(a, Y+2)
    a(f"v_pk_mul_f32 v[{Y}:{Y+1}], v[{Y}:{Y+1}], v[{Y+2}:{Y+3}]")
    rnd_pair(a, Y)
    for r in range(4): a(f"v_lshlrev_b32 v{E+r}, 16, v{E+r}")
    a(f"v_pk_add_f32 v[{Y}:{Y+1}], v[{Y}:{Y+1}], v[{E}:{E+1}]")
    rnd_pair(a, Y)
    a(f"v_mul_f32 v{Y}, v{Y}, v{E+4}")
    a(f"v_mul_f32 v{Y+1}, v{Y+1}, v{E+4}")
    rnd_pair(a, Y)
    a(f"v_pk_add_f32 v[{Y}:{Y+1}], v[{Y}:{Y+1}], v[{E+2}:{E+3}]")
    a(f"v_cvt_pk_bf16_f32 v{Y}, v{Y}, v{Y+1}")
    a(f"v_lshrrev_b32 v{Y+1}, 16, v{Y}")
    a("s_mov_b64 exec, 0xffff")
    a(f"global_store_short v{E+8}, v{Y}, s[{S_OUT}:{S_OUT+1}] sc1")
    a(f"global_store_short v{E+9}, v{Y+1}, s[{S_OUT}:{S_OUT+1}] sc1")
    a("s_mov_b64 exec, -1")
    a.label(ldone)
```

```python
WS_FLAGS = 0x0
F_KVRDY  = 0x0
F_HRDY   = 0x1000
F_MODRDY = 0x2000
F_PROG   = 0x3000
F_SEGDONE= 0x4000
F_EPF    = 0x5000
F_EPFREE = 0x6000
F_FFN    = 0x7000
WS_MOD   = 0x10000
WS_R     = 0x14000
WS_MB    = 0x18000
WS_ACT   = 0x20000
WS_PB    = 0x80000
WS_H     = 0x100000
WS_X1    = 0x300000
WS_H2    = 0x500000
WS_DUMP  = 0x700000
WS_KM    = 0x800000
WS_VM    = 0x1000000
WS_QF    = 0x2000000
WS_KF    = 0x3000000
WS_VF    = 0x4000000
WS_EP    = 0x5000000
WS_END   = 0x6000000
K_X,K_MEM0,K_WQ,K_WK,K_WV,K_WO,K_SEG,K_BX,K_WR,K_WG,K_WU,K_WD,K_C,K_WMOD,K_OUT,K_DBG,K_WS = [8*i for i in range(17)]
S_WS=4; S_DBG=6; S_WQ=8; S_WK=10; S_WV=12; S_WO=14; S_MEM0=16; S_X=18; S_OUT=20; S_WMOD=22; S_C=24; S_WR=26; S_WG=28; S_WU=30; S_WD=32
S_WAVE=34; S_VX=35; S_VR=36; S_MODE=37; S_WGID=38

SENT = 0x7F817F81
```

```python
import sys
from asmlib import *
from layout import *
import bulk, ef, final
import chain3 as chain
from bulk import S_XCC, S_G, sT
KNAME = "adaLN_cond__memory_aug_recurrent_mem_tr__moe_arch_mod__prompt"
def gen(force_fallback=False, dump=False):
    a = Asm()
    bulk.startup(a)
    a(f"s_cmp_lg_u32 s{S_VX}, 0")
    a("s_cbranch_scc1 L_decide")
    a(f"s_cmp_ge_u32 s{S_VR}, 32")
    a("s_cbranch_scc1 L_decide")
    chain.lane_consts(a)
    chain.setup_weights(a)
    bulk.decide(a, "c", force_fallback)
    a(f"s_cmp_eq_u32 s{S_MODE}, 0")
    a("s_cbranch_scc1 L_chain0")
    a("s_branch L_fb")
    a.label("L_decide")
    a.flush_hazards()
    bulk.decide(a, "b", force_fallback)
    a(f"s_cmp_eq_u32 s{S_MODE}, 0")
    a("s_cbranch_scc1 L_bulk")
    a.label("L_fb")
    a.flush_hazards()
    a("s_barrier")
    a(f"s_lshr_b32 s{S_VX}, s{S_G}, 5")
    a(f"s_and_b32 s{S_VR}, s{S_G}, 31")
    a(f"s_cmp_lg_u32 s{S_VX}, 0")
    a("s_cbranch_scc1 L_bulk")
    chain.lane_consts(a)
    chain.setup_weights(a)
    chain.chain_main(a, "sc1", dump=dump)
    a("s_endpgm")
    a.label("L_chain0")
    a.flush_hazards()
    chain.chain_main(a, "", dump=dump)
    a("s_endpgm")
    a.label("L_bulk")
    a.flush_hazards()
    sB = 2
    a(f"s_sub_u32 s{sB}, s{S_VX}, 1")
    a(f"s_lshl_b32 s{sB}, s{sB}, 5")
    a(f"s_add_u32 s{sB}, s{sB}, s{S_VR}")
    a("v_mbcnt_lo_u32_b32 v0, -1, 0")
    a("v_mbcnt_hi_u32_b32 v0, -1, v0")
    a(f"s_lshl_b32 s{sT}, s{S_WAVE}, 6")
    a(f"v_add_u32 v0, s{sT}, v0")
    a(f"s_cmp_ge_u32 s{sB}, 192")
    a("s_cbranch_scc1 L_front")
    a(f"s_cmp_ge_u32 s{sB}, 128")
    a("s_cbranch_scc1 L_gonly")
    bulk.ln1_pre(a, sB)
    n = bulk.gemm_pre(a, sB)
    bulk.ln1_stage(a, sB, n)
    a("s_branch L_gemm")
    a.label("L_gonly")
    a.flush_hazards()
    bulk.gemm_pre(a, sB)
    a.label("L_gemm")
    a.flush_hazards()
    bulk.gemm_stage(a)
    a("s_branch L_ef")
    a.label("L_front")
    a.flush_hazards()
    bulk.mod_stage(a)
    final.ffn_preload(a)
    a.label("L_ef")
    a.flush_hazards()
    ef.ef_setup(a)
    a(f"s_cmp_lg_u32 s{S_MODE}, 0")
    a("s_cbranch_scc1 L_ef1")
    for sc, lab in (("", None), ("sc1", "L_ef1")):
        if lab: a.label(lab); a.flush_hazards()
        ef.ef_loop(a, sc)
        a(f"s_cmp_lg_u32 s{S_VX}, 7")
        a("s_cbranch_scc1 L_exit")
        final.final_stage(a, sc)
        a("s_endpgm")
    a.label("L_fail")
    a("s_mov_b64 exec, -1")
    a("v_mov_b32 v1, 0")
    a("v_mov_b32 v2, 0xdead")
    a(f"global_store_dword v1, v2, s[{S_DBG}:{S_DBG+1}] offset:252")
    a.label("L_exit")
    a("s_endpgm")
    return a
def write(path, a):
    hdr = open(f"cdna_kernels/{KNAME}.s.ref").read().split("; Override launch geometry")[0]
    txt = hdr + f"""; @launch grid=(256,1,1) block=(256,1,1) lds=163840
.amdgcn_target "amdgcn-amd-amdhsa--gfx950"
.text
.globl {KNAME}_kernel
.p2align 8
.type {KNAME}_kernel,@function
{KNAME}_kernel:
{a.text()}
.section .rodata,"a"
.p2align 6
.amdhsa_kernel {KNAME}_kernel
  .amdhsa_next_free_vgpr 512
  .amdhsa_next_free_sgpr 102
  .amdhsa_accum_offset 256
  .amdhsa_group_segment_fixed_size 0
  .amdhsa_kernarg_size 136
  .amdhsa_user_sgpr_count 2
  .amdhsa_user_sgpr_kernarg_segment_ptr 1
  .amdhsa_system_sgpr_workgroup_id_x 1
.end_amdhsa_kernel
"""
    open(path, "w").write(txt)
if __name__ == "__main__":
    fb = "fb" in sys.argv; dump = "dump" in sys.argv
    a = gen(fb, dump)
    print("instrs", a.ninstr, "nops", a.nops_inserted)
    out = [x for x in sys.argv[1:] if x.endswith(".s")]
    write(out[0] if out else f"cdna_kernels/{KNAME}.s", a)
```

```python
import re

def _expand(tok):
    tok = tok.strip()
    tok = tok.lstrip('-')
    m = re.match(r'^abs\((.*)\)$', tok)
    if m: tok = m.group(1)
    m = re.match(r'^\|(.*)\|$', tok)
    if m: tok = m.group(1)
    m = re.match(r'^([vas])(\d+)$', tok)
    if m: return [(m.group(1), int(m.group(2)))]
    m = re.match(r'^([vas])\[(\d+):(\d+)\]$', tok)
    if m: return [(m.group(1), i) for i in range(int(m.group(2)), int(m.group(3)) + 1)]
    if tok == 'vcc': return [('s', 106), ('s', 107)]
    if tok == 'vcc_lo': return [('s', 106)]
    if tok == 'vcc_hi': return [('s', 107)]
    if tok == 'exec': return [('s', 126), ('s', 127)]
    if tok == 'm0': return [('s', 124)]
    return []

def R(kind, lo, n=1):
    return f"{kind}{lo}" if n == 1 else f"{kind}[{lo}:{lo+n-1}]"
def V(lo, n=1): return R('v', lo, n)
def A(lo, n=1): return R('a', lo, n)
def S(lo, n=1): return R('s', lo, n)

TRANS = ('v_exp_f32', 'v_log_f32', 'v_rcp_f32', 'v_rsq_f32', 'v_sqrt_f32', 'v_sin_f32', 'v_cos_f32')

class Ins:
    __slots__ = ('text', 'mn', 'cls', 'wr', 'rd', 'passes', 'srcc', 'ab', 'states', 'dpp', 'wide_store_data')

class Asm:
    def __init__(self):
        self.lines = []
        self.hist = []
        self.nlabel = 0
        self.ninstr = 0
        self.nops_inserted = 0

    def label(self, name):
        self.lines.append(f"{name}:")
    def newlabel(self, base='L'):
        self.nlabel += 1
        return f"{base}_{self.nlabel}"
    def comment(self, t):
        self.lines.append(f"    ; {t}")
    def raw(self, t):
        self.lines.append(t)

    def _classify(self, text):
        ins = Ins()
        ins.text = text
        body = text.split(';')[0].strip()
        parts = body.split(None, 1)
        mn = parts[0]
        ins.mn = mn
        rest = parts[1] if len(parts) > 1 else ''
        ops = []
        cur = ''; depth = 0
        for ch in rest:
            if ch in '[(': depth += 1
            if ch in '])': depth -= 1
            if ch == ',' and depth == 0:
                ops.append(cur.strip()); cur = ''
            else: cur += ch
        if cur.strip(): ops.append(cur.strip())
        mods = ''
        if ops:
            l = ops[-1].split(None, 1)
            ops[-1] = l[0]
            if len(l) > 1: mods = l[1]
        ins.wr = set(); ins.rd = set(); ins.passes = 0; ins.srcc = set(); ins.ab = set(); ins.states = 1
        ins.dpp = ('quad_perm' in mods or 'row_' in mods or mn.endswith('_dpp'))
        ins.wide_store_data = set()
        ex = lambda t: set(_expand(t))
        if mn.startswith('v_mfma') or mn.startswith('v_smfmac'):
            ins.cls = 'mfma'
            if '32x32' in mn: ins.passes = 8
            elif '16x16' in mn: ins.passes = 4
            else: raise ValueError(mn)
            if mn.endswith('_f32') and 'x4_f32' in mn: ins.passes = 8
            ins.wr = ex(ops[0]); ins.ab = ex(ops[1]) | ex(ops[2])
            if mn.startswith('v_smfmac'):
                ins.ab |= ex(ops[3]); ins.srcc = ex(ops[0])
            else:
                ins.srcc = ex(ops[3])
            ins.rd = ins.ab | ins.srcc
        elif mn.startswith('v_'):
            ins.cls = 'valu'
            if mn.startswith('v_cmp'):
                ins.wr = ex(ops[0]);
                for o in ops[1:]: ins.rd |= ex(o)
            elif mn.startswith('v_permlane') and 'swap' in mn:
                ins.wr = ex(ops[0]) | ex(ops[1]); ins.rd = set(ins.wr)
            elif mn in ('v_add_co_u32', 'v_sub_co_u32', 'v_addc_co_u32', 'v_subb_co_u32'):
                ins.wr = ex(ops[0]) | ex(ops[1])
                for o in ops[2:]: ins.rd |= ex(o)
            else:
                ins.wr = ex(ops[0])
                for o in ops[1:]: ins.rd |= ex(o)
                if mn.startswith('v_fmac') or mn.startswith('v_dot2c') or mn.startswith('v_pk_fmac') or ins.dpp or mn.startswith('v_writelane'):
                    ins.rd |= ins.wr
                if mn.startswith('v_cndmask') and len(ops) == 3:
                    ins.rd |= ex('vcc')
        elif mn.startswith('ds_'):
            ins.cls = 'ds'
            if mn.startswith('ds_read') or mn.startswith('ds_bpermute') or mn.startswith('ds_permute') or mn.startswith('ds_swizzle') or ('_rtn' in mn):
                ins.wr = ex(ops[0])
                for o in ops[1:]: ins.rd |= ex(o)
            else:
                for o in ops: ins.rd |= ex(o)
        elif mn.startswith('global_') or mn.startswith('buffer_') or mn.startswith('flat_'):
            ins.cls = 'vmem'
            if 'load_lds' in mn or ' lds' in (' ' + mods):
                for o in ops: ins.rd |= ex(o)
                ins.rd |= ex('m0')
                ins.cls = 'vmem_lds'
            elif '_load' in mn:
                ins.wr = ex(ops[0])
                for o in ops[1:]: ins.rd |= ex(o)
            elif '_atomic' in mn:
                if 'sc0' in mods and mn.startswith('global_'):
                    ins.wr = ex(ops[0])
                    for o in ops[1:]: ins.rd |= ex(o)
                else:
                    for o in ops: ins.rd |= ex(o)
            elif '_store' in mn:
                for o in ops: ins.rd |= ex(o)
                if 'x4' in mn or 'x3' in mn:
                    d = ops[1] if mn.startswith('global_') else ops[0]
                    ins.wide_store_data = ex(d)
            else:
                pass
        elif mn.startswith('s_'):
            ins.cls = 'salu'
            if mn == 's_nop':
                ins.states = int(ops[0], 0) + 1
            elif mn.startswith('s_cmp') or mn.startswith('s_cbranch') or mn in ('s_branch', 's_barrier', 's_waitcnt', 's_endpgm', 's_sleep', 's_setprio', 's_bitcmp1_b32', 's_bitcmp0_b32'):
                for o in ops: ins.rd |= ex(o)
            else:
                if ops: ins.wr = ex(ops[0])
                for o in ops[1:]: ins.rd |= ex(o)
                if 'saveexec' in mn: ins.wr |= ex('exec')
        else:
            raise ValueError("unknown instr " + text)
        return ins

    def _need(self, p, c):
        need = 0
        isv = lambda s: {r for r in s if r[0] in 'va'}
        iss = lambda s: {r for r in s if r[0] == 's'}
        if p.cls == 'valu':
            if c.cls == 'mfma' and (isv(p.wr) & c.rd): need = max(need, 2)
            if c.cls == 'valu':
                if p.mn in TRANS and (p.wr & c.rd): need = max(need, 1)
                if (c.mn.startswith('v_permlane') or c.dpp) and (isv(p.wr) & c.rd): need = max(need, 2)
                if (c.mn.startswith('v_readlane') or c.mn.startswith('v_readfirstlane')) and (isv(p.wr) & c.rd): need = max(need, 1)
                if iss(p.wr) & c.rd: need = max(need, 4 if c.mn.startswith(('v_readlane', 'v_writelane')) else 2)
            if p.mn in TRANS and c.cls in ('vmem', 'ds', 'vmem_lds', 'mfma') and (p.wr & c.rd): need = max(need, 2)
            if c.cls in ('vmem', 'vmem_lds') and (iss(p.wr) & c.rd): need = max(need, 5)
            if c.cls == 'salu' and (iss(p.wr) & c.rd): need = max(need, 1)
        if p.cls == 'mfma':
            t = {2: (5, 4, 1), 4: (8, 6, 3), 8: (12, 10, 7), 16: (20, 18, 15)}[p.passes]
            if c.cls == 'mfma':
                if p.wr & c.ab: need = max(need, t[0])
                if p.wr & c.srcc:
                    if p.wr == c.srcc and p.mn == c.mn: need = max(need, 0)
                    else: need = max(need, t[1])
                elif p.wr & c.wr: need = max(need, t[0])
            else:
                if p.wr & (c.rd | c.wr): need = max(need, t[0])
                if c.cls == 'valu' and (p.srcc & c.wr): need = max(need, t[2])
        if p.wide_store_data and (p.wide_store_data & c.wr):
            need = max(need, 2 if c.cls == 'valu' else 1)
        if p.cls == 'salu' and (('s', 124) in p.wr) and c.cls == 'vmem_lds': need = max(need, 1)
        return need

    def __call__(self, text):
        ins = self._classify(text)
        dist = 0; pad = 0
        for p in reversed(self.hist):
            n = self._need(p, ins)
            if n > dist: pad = max(pad, n - dist)
            dist += p.states
            if dist > 24: break
        while pad > 0:
            k = min(pad, 16)
            nop = self._classify(f"s_nop {k-1}")
            self.hist.append(nop); self.lines.append(f"    s_nop {k-1}"); self.nops_inserted += 1
            pad -= k
        self.hist.append(ins)
        if len(self.hist) > 64: self.hist = self.hist[-40:]
        self.lines.append("    " + text)
        self.ninstr += 1

    def flush_hazards(self, n=20):
        dist = 0; pad = 0
        for p in reversed(self.hist):
            worst = 0
            if p.cls == 'mfma': worst = {2: 5, 4: 8, 8: 12, 16: 20}[p.passes]
            elif p.cls == 'valu': worst = 5 if any(r[0] == 's' for r in p.wr) else 2
            elif p.wide_store_data: worst = 2
            elif p.cls == 'salu' and ('s', 124) in p.wr: worst = 1
            if worst > dist: pad = max(pad, worst - dist)
            dist += p.states
            if dist > 24: break
        while pad > 0:
            k = min(pad, 16)
            self(f"s_nop {k-1}")
            pad -= k
        self.hist = []

    def text(self):
        return "\n".join(self.lines) + "\n"

class Cnt:
    def __init__(self, a):
        self.a = a; self.l = []; self.v = []
    def lds(self, text, tag=None):
        self.a(text); self.l.append(tag)
    def vm(self, text, tag=None):
        self.a(text); self.v.append(tag)
    def wait_l(self, tag):
        if tag not in self.l: return
        i = len(self.l) - 1 - self.l[::-1].index(tag)
        n = len(self.l) - 1 - i
        if getattr(self, 'full', False): n = 0; i = len(self.l) - 1
        self.a(f"s_waitcnt lgkmcnt({min(n,15)})")
        self.l = self.l[i+1:] if n <= 15 else self.l[len(self.l)-15:]
    def wait_v(self, tag):
        if tag not in self.v: return
        i = len(self.v) - 1 - self.v[::-1].index(tag)
        n = len(self.v) - 1 - i
        self.a(f"s_waitcnt vmcnt({min(n,63)})")
        self.v = self.v[i+1:]
    def all_l(self):
        self.a("s_waitcnt lgkmcnt(0)"); self.l = []
    def all_v(self):
        self.a("s_waitcnt vmcnt(0)"); self.v = []
    def all(self):
        self.a("s_waitcnt vmcnt(0) lgkmcnt(0)"); self.l = []; self.v = []

import struct
def f2u(x): return struct.unpack('<I', struct.pack('<f', x))[0]
def sadd64(a, dst, src, off):
    a(f"s_add_u32 s{dst}, s{src}, {off}")
    a(f"s_addc_u32 s{dst+1}, s{src+1}, 0")

TS_ENABLED = [False]
def TS(a, slot, vt=250):
    if not TS_ENABLED[0]: return
    from layout import S_WS, S_WAVE, S_VX, S_VR, WS_DUMP
    l = a.newlabel("ts")
    a(f"s_cmp_lg_u32 s{S_WAVE}, 0")
    a(f"s_cbranch_scc1 {l}")
    a("s_memrealtime vcc")
    a(f"s_lshl_b32 s78, s{S_VX}, 5")
    a(f"s_add_u32 s78, s78, s{S_VR}")
    a(f"s_lshl_b32 s78, s78, 9")
    if isinstance(slot, int):
        a(f"s_add_u32 s78, s78, {WS_DUMP + 0x80000 + 4*slot}")
    else:
        a(f"s_add_u32 s78, s78, {WS_DUMP + 0x80000}")
        a(f"s_lshl_b32 s77, {slot}, 2")
        a(f"s_add_u32 s78, s78, s77")
    a(f"v_mov_b32 v{vt}, s78")
    a("s_waitcnt lgkmcnt(0)")
    a(f"v_mov_b32 v{vt+1}, vcc_lo")
    a(f"global_store_dword v{vt}, v{vt+1}, s[{S_WS}:{S_WS+1}]")
    a.label(l)
```

```python
from asmlib import *
from layout import *
S_XCC=39
sT=70
F_HALL = F_FFN

def load_args(a):
    for (reg, off) in ((S_WS,K_WS),(S_DBG,K_DBG),(S_WQ,K_WQ),(S_WK,K_WK),(S_WV,K_WV),(S_WO,K_WO),(S_MEM0,K_MEM0),(S_X,K_X),(S_OUT,K_OUT),
                       (S_WMOD,K_WMOD),(S_C,K_C),(S_WR,K_WR),(S_WG,K_WG),(S_WU,K_WU),(S_WD,K_WD)):
        a(f"s_load_dwordx2 s[{reg}:{reg+1}], s[0:1], {off}")

def startup(a, force_fallback=False):
    a("s_cmp_ge_u32 s2, 256")
    a("s_cbranch_scc1 L_exit")
    load_args(a)
    a(f"s_mov_b32 s{S_WGID}, s2")
    a(f"s_getreg_b32 s{S_XCC}, hwreg(HW_REG_XCC_ID, 0, 4)")
    a("v_lshrrev_b32 v1, 6, v0")
    a(f"v_readfirstlane_b32 s{S_WAVE}, v1")
    a(f"s_and_b32 s{S_XCC}, s{S_XCC}, 7")
    a(f"s_lshl_b32 s{sT}, s{S_XCC}, 3")
    a(f"s_lshl_b64 s[{sT+2}:{sT+3}], 1, s{sT}")
    a("v_mov_b32 v1, 0")
    a("v_mov_b32 v2, 1")
    a(f"v_mov_b32 v10, s{sT+2}")
    a(f"v_mov_b32 v11, s{sT+3}")
    a("v_mov_b32 v9, 0xffff")
    a("v_and_b32 v3, 63, v0")
    a(f"s_lshl_b32 s{sT+1}, s{S_WGID}, 8")
    a(f"v_lshl_add_u32 v4, v3, 2, s{sT+1}")
    a("s_waitcnt lgkmcnt(0)")
    a(f"s_cmp_lg_u32 s{S_WAVE}, 0")
    a("s_cbranch_scc1 L_st1")
    a("s_mov_b64 exec, 1")
    a(f"s_cmp_lg_u32 s{S_XCC}, 0")
    a("s_cbranch_scc1 L_st0")
    a(f"global_atomic_add v8, v1, v2, s[{S_DBG}:{S_DBG+1}] sc0")
    a("s_waitcnt vmcnt(0)")
    a("v_cmp_gt_u32 vcc, 32, v8")
    a("s_cbranch_vccnz L_st0b")
    a.label("L_st0")
    a(f"global_atomic_add_x2 v[12:13], v1, v[10:11], s[{S_DBG}:{S_DBG+1}] offset:{D_PACK} sc0")
    a("s_waitcnt vmcnt(0)")
    a(f"v_lshrrev_b64 v[14:15], s{sT}, v[12:13]")
    a("v_and_b32 v8, 0xff, v14")
    a("v_sad_u8 v9, v12, 0, 0")
    a("v_sad_u8 v9, v13, 0, v9")
    a.label("L_st0b")
    a("ds_write_b64 v1, v[8:9]")
    a("s_mov_b64 exec, -1")
    a("s_branch L_st3")
    a.label("L_st1")
    a(f"s_cmp_lg_u32 s{S_WAVE}, 1")
    a("s_cbranch_scc1 L_st2")
    a("v_mov_b32 v6, 0")
    a(f"global_store_dword v4, v6, s[{S_WS}:{S_WS+1}] sc1")
    a("v_mov_b32 v6, -1")
    a(f"v_add_u32 v4, {WS_MB}, v4")
    a(f"global_store_dword v4, v6, s[{S_WS}:{S_WS+1}] sc1")
    a("s_branch L_st3")
    a.label("L_st2")
    a(f"s_lshl_b32 s{sT+1}, s{S_WGID}, 11")
    a(f"s_and_b32 s{sT}, s{S_WAVE}, 1")
    a(f"s_lshl_b32 s{sT}, s{sT}, 10")
    a(f"s_add_u32 s{sT+1}, s{sT+1}, s{sT}")
    a(f"s_add_u32 s{sT+1}, s{sT+1}, {WS_PB}")
    a(f"v_lshl_add_u32 v5, v3, 4, s{sT+1}")
    for r in range(12, 16): a(f"v_mov_b32 v{r}, {SENT}")
    a(f"global_store_dwordx4 v5, v[12:15], s[{S_WS}:{S_WS+1}] sc1")
    a.label("L_st3")
    a("s_waitcnt vmcnt(0) lgkmcnt(0)")
    a("s_barrier")
    a("v_mov_b32 v1, 0")
    a("ds_read_b64 v[8:9], v1")
    a(f"s_cmp_lg_u32 s{S_WAVE}, 1")
    a("s_cbranch_scc1 L_st4")
    a("s_mov_b64 exec, 1")
    a(f"v_mov_b32 v1, {D_TOTAL}")
    a(f"global_atomic_add v1, v2, s[{S_DBG}:{S_DBG+1}]")
    a("s_mov_b64 exec, -1")
    a.label("L_st4")
    a("s_waitcnt lgkmcnt(0)")
    a(f"v_readfirstlane_b32 s{S_RANK}, v8")
    a(f"v_readfirstlane_b32 s{S_TK}, v9")
    a(f"s_mov_b32 s{S_VX}, s{S_XCC}")
    a(f"s_mov_b32 s{S_VR}, s{S_RANK}")
    a("s_barrier")

def decide(a, force_fallback=False):
    poll_counter(a, D_TOTAL, 256, vt=2)
    a("v_mov_b32 v1, 0")
    a(f"global_load_dwordx2 v[4:5], v1, s[{S_DBG}:{S_DBG+1}] offset:{D_PACK} sc1")
    a(f"global_load_dword v6, v1, s[{S_DBG}:{S_DBG+1}] sc1")
    a("s_waitcnt vmcnt(0)")
    a(f"v_readfirstlane_b32 s{sT+8}, v6")
    a("v_xor_b32 v4, 0x20202000, v4")
    a("v_xor_b32 v5, 0x20202020, v5")
    a("v_xor_b32 v6, 32, v6")
    a("v_or3_b32 v4, v4, v5, v6")
    a(f"v_readfirstlane_b32 s{S_MODE}, v4")
    a(f"s_cmp_lg_u32 s{S_MODE}, 0")
    a(f"s_cselect_b32 s{S_MODE}, 1, 0")
    if force_fallback:
        a(f"s_mov_b32 s{S_MODE}, 1")

def poll_counter(a, off, val, vt=1, base=S_DBG, sleep=4):
    l = a.newlabel("poll"); ld = a.newlabel("polld")
    a(f"s_cmp_lg_u32 s{S_WAVE}, 0")
    a(f"s_cbranch_scc1 {ld}")
    a(f"v_mov_b32 v{vt}, {off}")
    a(f"s_mov_b32 s{sT+9}, 0")
    a("s_mov_b64 exec, 1")
    a.label(l)
    a(f"global_load_dword v{vt+1}, v{vt}, s[{base}:{base+1}] sc1")
    a(f"s_add_u32 s{sT+9}, s{sT+9}, 1")
    a(f"s_cmp_gt_u32 s{sT+9}, 0x80000")
    a("s_cbranch_scc1 L_fail")
    a("s_waitcnt vmcnt(0)")
    a(f"v_cmp_le_u32 vcc, {val}, v{vt+1}")
    a(f"s_cbranch_vccnz {ld}")
    if sleep: a(f"s_sleep {sleep}")
    a(f"s_branch {l}")
    a.label(ld)
    a("s_mov_b64 exec, -1")
    a("s_barrier")

def signal_add(a, off, vt=1, base=S_DBG):
    l = a.newlabel("sig")
    a(f"s_cmp_lg_u32 s{S_WAVE}, 0")
    a(f"s_cbranch_scc1 {l}")
    a(f"v_mov_b32 v{vt}, {off}")
    a(f"v_mov_b32 v{vt+1}, 1")
    a("s_mov_b64 exec, 1")
    a(f"global_atomic_add v{vt}, v{vt+1}, s[{base}:{base+1}]")
    a("s_mov_b64 exec, -1")
    a.label(l)

def lane_ids(a, l, g, c):
    a(f"v_mbcnt_lo_u32_b32 v{l}, -1, 0")
    a(f"v_mbcnt_hi_u32_b32 v{l}, -1, v{l}")
    a(f"v_lshrrev_b32 v{g}, 4, v{l}")
    a(f"v_and_b32 v{c}, 15, v{l}")

def stage_rows(a, sbase, row_shift_or_stride, nrows, lds_base, v0, clamp12=False):
    stride = row_shift_or_stride
    l=v0; g=v0+1; c=v0+2; t=v0+3; o0=v0+4; o1=v0+5
    lane_ids(a, l, g, c)
    a(f"v_lshrrev_b32 v{t}, 1, v{c}")
    a(f"v_xor_b32 v{t}, v{t}, v{g}")
    for (o, x) in ((o0, 0), (o1, 4)):
        a(f"v_xor_b32 v{o}, {x}, v{t}")
        if clamp12:
            a(f"v_subrev_u32 v{l}, 2, v{o}")
            a(f"v_cmp_lt_u32 vcc, 5, v{o}")
            a(f"v_cndmask_b32 v{o}, v{o}, v{l}, vcc")
        a(f"v_lshlrev_b32 v{o}, 5, v{o}")
        a(f"v_and_b32 v{l}, 1, v{c}")
        a(f"v_lshl_add_u32 v{o}, v{l}, 4, v{o}")
        a(f"s_mov_b32 s{sT}, {stride}")
        a(f"v_mad_u32_u24 v{o}, v{g}, s{sT}, v{o}")
    per = nrows // 4
    a(f"s_mul_i32 s{sT}, s{S_WAVE}, {per*stride}")
    a(f"s_add_u32 s{sT+2}, s{sbase}, s{sT}")
    a(f"s_addc_u32 s{sT+3}, s{sbase+1}, 0")
    a(f"s_mul_i32 s{sT+1}, s{S_WAVE}, {per*256}")
    a(f"s_add_u32 s{sT+1}, s{sT+1}, {lds_base}")
    n = per // 4
    for i in range(n):
        a(f"s_add_u32 m0, s{sT+1}, {i*1024}")
        a(f"global_load_lds_dwordx4 v{o1 if (i>>1)&1 else o0}, s[{sT+2}:{sT+3}]")
        if i < n-1:
            a(f"s_add_u32 s{sT+2}, s{sT+2}, {4*stride}")
            a(f"s_addc_u32 s{sT+3}, s{sT+3}, 0")
    return n

def tr_base(a, dst, v0, unit_expr=None):
    l=v0; g=v0+1; c=v0+2; t=v0+3
    lane_ids(a, l, g, c)
    a(f"v_lshrrev_b32 v{t}, 2, v{c}")
    a(f"v_lshl_add_u32 v{dst}, v{g}, 3, v{t}")
    a(f"v_lshlrev_b32 v{dst}, 8, v{dst}")
    a(f"v_and_b32 v{l}, 1, v{g}")
    a(f"v_lshl_add_u32 v{dst+1}, v{l}, 2, v{t}")
    a(f"v_and_b32 v{l}, 3, v{c}")
    return l

def rnd_pair(a, x, tmp=None):
    a(f"v_cvt_pk_bf16_f32 v{x+1}, v{x}, v{x+1}")
    a(f"v_lshlrev_b32 v{x}, 16, v{x+1}")
    a(f"v_and_b32 v{x+1}, 0xffff0000, v{x+1}")
def rnd1(a, x):
    a(f"v_cvt_pk_bf16_f32 v{x}, v{x}, v{x}")
    a(f"v_lshlrev_b32 v{x}, 16, v{x}")

LOG2E = 1.4426950408889634
def mod_stage(a):
    L_S = 131072; L_Z = L_S + 1024
    a(f"s_mul_i32 s{sT+6}, s{S_TK}, 192")
    a(f"s_add_u32 s{sT+6}, s{S_WMOD}, s{sT+6}")
    a(f"s_addc_u32 s{sT+7}, s{S_WMOD+1}, 0")
    a("v_lshlrev_b32 v20, 2, v0")
    a(f"global_load_dword v21, v20, s[{S_C}:{S_C+1}]")
    n = stage_rows(a, sT+6, 6144, 512, 0, 2, clamp12=True)
    a(f"s_waitcnt vmcnt({n})")
    a("v_lshlrev_b32 v22, 16, v21")
    a("v_and_b32 v23, 0xffff0000, v21")
    a(f"s_mov_b32 s{sT}, {f2u(-LOG2E)}")
    for r in (22, 23):
        a(f"v_mul_f32 v{r+2}, s{sT}, v{r}")
        a(f"v_exp_f32 v{r+2}, v{r+2}")
        a(f"v_add_f32 v{r+2}, 1.0, v{r+2}")
        a(f"v_rcp_f32 v{r+2}, v{r+2}")
        a(f"v_mul_f32 v{r}, v{r}, v{r+2}")
    a("v_cvt_pk_bf16_f32 v22, v22, v23")
    a(f"v_add_u32 v20, {L_S}, v20")
    a("v_mov_b32 v23, 0")
    a("ds_write_b32 v20, v22")
    a("ds_write_b32 v20, v23 offset:1024")
    cp = tr_base(a, 10, 2)
    a(f"v_lshl_add_u32 v10, v{cp}, 3, v10")
    a(f"v_lshlrev_b32 v12, 4, v3")
    a(f"v_add_u32 v12, {L_S}, v12")
    a(f"v_mov_b32 v13, {L_Z}")
    a("v_cmp_eq_u32 vcc, 0, v4")
    a("v_cndmask_b32 v12, v13, v12, vcc")
    a("s_waitcnt vmcnt(0) lgkmcnt(0)")
    a("s_barrier")
    for ks in range(16):
        a(f"ds_read_b128 v[{32+4*ks}:{35+4*ks}], v12 offset:{64*ks}")
    for rep in range(2):
        lskip = a.newlabel("modskip")
        if rep == 1:
            a(f"s_cmp_ge_u32 s{S_WAVE}, 2")
            a(f"s_cbranch_scc1 {lskip}")
        a(f"s_add_u32 s{sT}, s{S_WAVE}, {4*rep}")
        a(f"v_xor_b32 v14, s{sT}, v11")
        a("v_lshl_add_u32 v14, v14, 5, v10")
        a("v_add_u32 v15, 0x10000, v14")
        for half in range(2):
            for k8 in range(8):
                for m in range(2):
                    a(f"ds_read_b64_tr_b16 v[{96+4*k8+2*m}:{97+4*k8+2*m}], v{14+half} offset:{k8*8192+m*1024}")
            a("s_waitcnt lgkmcnt(0)")
            for k8 in range(8):
                ks = half*8 + k8
                c = "0" if ks == 0 else "v[16:19]"
                a(f"v_mfma_f32_16x16x32_bf16 v[16:19], v[{32+4*ks}:{35+4*ks}], v[{96+4*k8}:{99+4*k8}], {c}")
        a(f"s_mul_i32 s{sT+1}, s{S_TK}, 96")
        a(f"s_lshl_b32 s{sT+2}, s{sT}, 4")
        a(f"s_add_u32 s{sT+1}, s{sT+1}, s{sT+2}")
        rnd1(a, 16)
        a(f"s_lshr_b32 s{sT+2}, s{sT+1}, 9")
        a(f"s_cmp_eq_u32 s{sT+2}, 1")
        a(f"s_cselect_b32 s{sT+3}, 1.0, 0")
        a(f"s_cmp_eq_u32 s{sT+2}, 4")
        a(f"s_cselect_b32 s{sT+3}, 1.0, s{sT+3}")
        a(f"v_add_f32 v16, s{sT+3}, v16")
        rnd1(a, 16)
        a(f"s_lshl_b32 s{sT+1}, s{sT+1}, 2")
        a(f"s_add_u32 s{sT+1}, s{sT+1}, {WS_MOD}")
        a(f"v_lshl_add_u32 v17, v4, 2, s{sT+1}")
        a("s_mov_b64 exec, 0xffff")
        a(f"global_store_dword v17, v16, s[{S_WS}:{S_WS+1}] sc1")
        a("s_mov_b64 exec, -1")
        if rep == 1: a.label(lskip)
        a.flush_hazards()
    a("s_waitcnt vmcnt(0)")
    a("s_barrier")
    signal_add(a, D_MODRDY)

def row16_sum(a, x, t):
    for sh in (8, 4, 2, 1):
        a(f"v_add_f32_dpp v{x}, v{x}, v{x} row_ror:{sh} row_mask:0xf bank_mask:0xf")

def ln_rows(a, X, MV, T0):
    s=T0; q=T0+2
    a(f"v_pk_add_f32 v[{s}:{s+1}], v[{X}:{X+1}], v[{X+2}:{X+3}]")
    for i in range(4, 32, 2):
        a(f"v_pk_add_f32 v[{s}:{s+1}], v[{s}:{s+1}], v[{X+i}:{X+i+1}]")
    a(f"v_add_f32 v{s}, v{s}, v{s+1}")
    row16_sum(a, s, None)
    a(f"v_mul_f32 v{s}, {f2u(1/512)}, v{s}")
    a(f"v_mov_b32 v{s+1}, v{s}")
    a(f"v_mov_b64 v[{q}:{q+1}], 0")
    for i in range(0, 32, 2):
        a(f"v_pk_add_f32 v[{T0+4}:{T0+5}], v[{X+i}:{X+i+1}], v[{s}:{s+1}] neg_lo:[0,1] neg_hi:[0,1]")
        a(f"v_pk_fma_f32 v[{q}:{q+1}], v[{T0+4}:{T0+5}], v[{T0+4}:{T0+5}], v[{q}:{q+1}]")
    a(f"v_add_f32 v{q}, v{q}, v{q+1}")
    row16_sum(a, q, None)
    a(f"v_mul_f32 v{q}, {f2u(1/512)}, v{q}")
    rnd1(a, q)
    a(f"v_add_f32 v{q}, {f2u(1e-5)}, v{q}")
    rnd1(a, q)
    a(f"v_sqrt_f32 v{q}, v{q}")
    rnd1(a, q)
    a(f"v_rcp_f32 v{s+1}, v{q}")
    rnd1(a, s)

def ln_apply(a, X, s, CA, SA, OUT):
    a(f"v_mov_b32 v{s+2}, v{s}")
    a(f"v_mov_b32 v{s+3}, v{s}")
    a(f"v_mov_b32 v{s+4}, v{s+1}")
    a(f"v_mov_b32 v{s+5}, v{s+1}")
    for i in range(0, 32, 2):
        x = X+i
        a(f"v_pk_add_f32 v[{x}:{x+1}], v[{x}:{x+1}], v[{s+2}:{s+3}] neg_lo:[0,1] neg_hi:[0,1]")
        rnd_pair(a, x)
        a(f"v_pk_mul_f32 v[{x}:{x+1}], v[{x}:{x+1}], v[{s+4}:{s+5}]")
        rnd_pair(a, x)
        a(f"v_pk_mul_f32 v[{x}:{x+1}], v[{x}:{x+1}], v[{CA+i}:{CA+i+1}]")
        rnd_pair(a, x)
        a(f"v_pk_add_f32 v[{x}:{x+1}], v[{x}:{x+1}], v[{SA+i}:{SA+i+1}]")
        a(f"v_cvt_pk_bf16_f32 v{OUT+i//2}, v{x}, v{x+1}")

def ln1_pre(a, sB):
    lane_ids(a, 120, 121, 122)
    a(f"s_lshl_b32 s{sT}, s{sB}, 4")
    a(f"s_lshl_b32 s{sT+1}, s{S_WAVE}, 2")
    a(f"s_add_u32 s{sT}, s{sT}, s{sT+1}")
    a(f"v_add_u32 v123, s{sT}, v121")
    a("v_lshlrev_b32 v123, 10, v123")
    a("v_lshl_add_u32 v123, v122, 4, v123")
    for j in range(4):
        a(f"global_load_dwordx4 v[{128+4*j}:{131+4*j}], v123, s[{S_X}:{S_X+1}] offset:{256*j}")

def ln1_stage(a, sB, nyounger):
    X=144; CA=176; SA=208; T0=240; OUT=128
    a(f"s_waitcnt vmcnt({nyounger})")
    for i in range(16):
        a(f"v_lshlrev_b32 v{X+2*i}, 16, v{128+i}")
        a(f"v_and_b32 v{X+2*i+1}, 0xffff0000, v{128+i}")
    ln_rows(a, X, None, T0)
    poll_counter(a, D_MODRDY, 32, vt=124)
    a("v_lshlrev_b32 v124, 5, v122")
    a(f"v_add_u32 v124, {WS_MOD}, v124")
    for j in range(4):
        for h in range(2):
            a(f"global_load_dwordx4 v[{SA+8*j+4*h}:{SA+8*j+4*h+3}], v124, s[{S_WS}:{S_WS+1}] offset:{512*j+16*h} sc1")
            a(f"global_load_dwordx4 v[{CA+8*j+4*h}:{CA+8*j+4*h+3}], v124, s[{S_WS}:{S_WS+1}] offset:{2048+512*j+16*h} sc1")
    a("s_waitcnt vmcnt(0)")
    ln_apply(a, X, T0, CA, SA, OUT)
    a("v_lshrrev_b32 v124, 2, v122")
    a("v_lshlrev_b32 v124, 10, v124")
    a("v_and_b32 v125, 3, v122")
    a("v_lshl_add_u32 v124, v125, 8, v124")
    a(f"s_lshl_b32 s{sT+1}, s{S_WAVE}, 2")
    a(f"v_add_u32 v125, s{sT+1}, v121")
    a("v_lshl_add_u32 v124, v125, 4, v124")
    a(f"s_lshl_b32 s{sT}, s{sB}, 14")
    a(f"s_add_u32 s{sT}, s{sT}, {WS_H}")
    a(f"v_add_u32 v124, s{sT}, v124")
    for j in range(4):
        if j: a("v_add_u32 v124, 4096, v124")
        a(f"global_store_dwordx4 v124, v[{OUT+4*j}:{OUT+4*j+3}], s[{S_WS}:{S_WS+1}] sc1")
    a("s_waitcnt vmcnt(0)")
    a("s_barrier")
    poll_counter(a, D_TOTAL, 256, vt=124)
    a(f"s_lshr_b32 s{sT+8}, s{sB}, 2")
    a(f"s_lshl_b32 s{sT+8}, s{sT+8}, 7")
    a(f"s_add_u32 s{sT+8}, s{sT+8}, {F_HRDY}")
    signal_add(a, f"s{sT+8}", vt=124, base=S_WS)
    signal_add(a, F_HALL, vt=124, base=S_WS)

sNT=40; sMH=41; sMTX=42; sHEAD=43; sOUTB=44; sHB=46; sIT=48; sSIG=49
def gemm_pre(a, sB):
    a(f"s_cmp_ge_u32 s{sB}, 96")
    a(f"s_cselect_b32 s{sMH}, 1, 0")
    a(f"s_mul_i32 s{sT}, s{sMH}, 96")
    a(f"s_sub_u32 s{sNT}, s{sB}, s{sT}")
    a(f"s_lshr_b32 s{sMTX}, s{sNT}, 5")
    a(f"s_and_b32 s{sHEAD}, s{sNT}, 31")
    a(f"s_mov_b64 s[{sT+6}:{sT+7}], s[{S_WK}:{S_WK+1}]")
    a(f"s_cmp_eq_u32 s{sMTX}, 1")
    a(f"s_cselect_b64 s[{sT+6}:{sT+7}], s[{S_WV}:{S_WV+1}], s[{sT+6}:{sT+7}]")
    a(f"s_cmp_eq_u32 s{sMTX}, 2")
    a(f"s_cselect_b64 s[{sT+6}:{sT+7}], s[{S_WQ}:{S_WQ+1}], s[{sT+6}:{sT+7}]")
    a(f"s_lshl_b32 s{sT}, s{sHEAD}, 8")
    a(f"s_add_u32 s{sT+6}, s{sT+6}, s{sT}")
    a(f"s_addc_u32 s{sT+7}, s{sT+7}, 0")
    return stage_rows(a, sT+6, 8192, 512, 0, 2)

def gemm_stage(a):
    C = Cnt(a)
    a("s_waitcnt vmcnt(0)")
    a("s_barrier")
    cp = tr_base(a, 10, 2)
    a(f"v_lshl_add_u32 v10, v{cp}, 3, v10")
    WF = lambda t, ks: (t*16+ks)*4
    for t in range(2):
        a(f"s_lshl_b32 s{sT}, s{S_WAVE}, 1")
        a(f"s_add_u32 s{sT}, s{sT}, {t}")
        a(f"v_xor_b32 v14, s{sT}, v11")
        a("v_lshl_add_u32 v14, v14, 5, v10")
        a("v_add_u32 v15, 0x10000, v14")
        for ks in range(16):
            for m in range(2):
                a(f"ds_read_b64_tr_b16 a[{WF(t,ks)+2*m}:{WF(t,ks)+2*m+1}], v{14+(ks>>3)} offset:{(ks&7)*8192+m*1024}")
    a("s_waitcnt lgkmcnt(0)")
    a(f"s_mov_b32 s{sT}, {WS_KF}")
    a(f"s_cmp_eq_u32 s{sMTX}, 1")
    a(f"s_cselect_b32 s{sT}, {WS_VF}, s{sT}")
    a(f"s_cmp_eq_u32 s{sMTX}, 2")
    a(f"s_cselect_b32 s{sT}, {WS_QF}, s{sT}")
    a(f"s_lshl_b32 s{sT+1}, s{sHEAD}, 13")
    a(f"s_add_u32 s{sT}, s{sT}, s{sT+1}")
    a(f"s_lshl_b32 s{sT+1}, s{sMH}, 19")
    a(f"s_add_u32 s{sT}, s{sT}, s{sT+1}")
    sadd64(a, sOUTB, S_WS, f"s{sT}")
    a(f"s_lshl_b32 s{sT}, s{sMH}, 16")
    a(f"s_lshl_b32 s{sT+1}, s{S_WAVE}, 14")
    a(f"s_add_u32 s{sT}, s{sT}, s{sT+1}")
    a(f"s_add_u32 s{sT}, s{sT}, {WS_H}")
    sadd64(a, sHB, S_WS, f"s{sT}")
    lane_ids(a, 2, 3, 4)
    a("v_lshlrev_b32 v5, 4, v2")
    a("v_add_u32 v6, 0x10000, v5")
    for i in range(1, 4): a(f"v_add_u32 v{6+i}, {4096*i}, v5")
    a(f"s_lshl_b32 s{sT}, s{S_WAVE}, 10")
    a(f"v_add_u32 v12, s{sT}, v5")
    a(f"s_lshl_b32 s{sT}, s{S_WAVE}, 11")
    a(f"v_add_u32 v13, s{sT}, v5")
    a(f"v_add_u32 v14, 0x40000, v12")
    a(f"v_add_u32 v15, 0x40000, v13")
    a(f"v_add_u32 v19, 4096, v12")
    a(f"v_add_u32 v20, 4096, v14")
    poll_counter(a, D_TOTAL, 256, vt=16)
    a(f"s_lshl_b32 s{sT+8}, s{sMH}, 7")
    a(f"s_add_u32 s{sT+8}, s{sT+8}, {F_HRDY}")
    poll_counter(a, f"s{sT+8}", 4, vt=16, base=S_WS, sleep=2)
    TS(a, 3)
    a("s_barrier")
    def dma(buf):
        a(f"s_lshl_b32 s{sT}, s{S_WAVE}, 14")
        for q in range(4):
            a(f"s_add_u32 m0, s{sT}, {buf*65536 + q*4096}")
            for i in range(4):
                a(f"global_load_lds_dwordx4 v{5 if q==0 else 6+q}, s[{sHB}:{sHB+1}] offset:{i*1024} sc1")
        sadd64(a, sHB, sHB, 131072)
    dma(0)
    poll_counter(a, F_HALL, 128, vt=16, base=S_WS, sleep=8)
    a("s_waitcnt vmcnt(0)")
    a(f"s_mov_b32 s{sIT}, 0")
    a(f"s_lshl_b32 s{sSIG}, s{sMH}, 7")
    a(f"s_add_u32 s{sSIG}, s{sSIG}, {F_KVRDY - 256}")
    lv = a.newlabel("gemmV"); ldone = a.newlabel("gemmdone")
    a(f"s_cmp_eq_u32 s{sMTX}, 1")
    a(f"s_cbranch_scc1 {lv}")
    ACC=32; HF=64
    for isV in (0, 1):
        if isV: a.label(lv)
        a.flush_hazards()
        lloop = a.newlabel("gloop")
        a.label(lloop)
        for buf in range(2):
            a("s_waitcnt vmcnt(4)")
            a("s_barrier")
            ls = a.newlabel("gs")
            a(f"s_cmp_lt_u32 s{sIT}, 3")
            a(f"s_cbranch_scc1 {ls}")
            a(f"s_sub_u32 s{sT+8}, s{sSIG}, 256")
            signal_add(a, f"s{sT+8}", vt=16, base=S_WS)
            a.label(ls)
            ln = a.newlabel("gn")
            a(f"s_cmp_ge_u32 s{sIT}, 15")
            a(f"s_cbranch_scc1 {ln}")
            dma(1-buf)
            a.label(ln)
            C.l = []
            order = [(ks, mt) for ks in range(16) for mt in range(4)]
            PF = 6
            def rd(n):
                ks, mt = order[n]
                C.lds(f"ds_read_b128 v[{HF+4*(n%8)}:{HF+4*(n%8)+3}], v{5+buf} offset:{mt*16384+ks*1024}", n)
            for n in range(PF): rd(n)
            for n, (ks, mt) in enumerate(order):
                C.wait_l(n)
                for t in range(2):
                    d = ACC + (mt*2+t)*4
                    c = "0" if ks == 0 else f"v[{d}:{d+3}]"
                    w = f"a[{WF(t,ks)}:{WF(t,ks)+3}]"; h = f"v[{HF+4*(n%8)}:{HF+4*(n%8)+3}]"
                    if isV: a(f"v_mfma_f32_16x16x32_bf16 v[{d}:{d+3}], {h}, {w}, {c}")
                    else: a(f"v_mfma_f32_16x16x32_bf16 v[{d}:{d+3}], {w}, {h}, {c}")
                    if t == 0 and n + PF < 64: rd(n + PF)
            E=96
            if not isV:
                for mt in range(4):
                    for r in range(4):
                        a(f"v_cvt_pk_bf16_f32 v{E+4*mt+r}, v{ACC+mt*8+r}, v{ACC+mt*8+4+r}")
                    a(f"global_store_dwordx4 v{(12,19,14,20)[mt]}, v[{E+4*mt}:{E+4*mt+3}], s[{sOUTB}:{sOUTB+1}] sc1")
            else:
                for sg in range(2):
                    for t in range(2):
                        e = E + (sg*2+t)*4
                        for kt in range(2):
                            d = ACC + ((2*sg+kt)*2+t)*4
                            a(f"v_cvt_pk_bf16_f32 v{e+2*kt}, v{d}, v{d+1}")
                            a(f"v_cvt_pk_bf16_f32 v{e+2*kt+1}, v{d+2}, v{d+3}")
                        a(f"global_store_dwordx4 v{13 if sg==0 else 15}, v[{e}:{e+3}], s[{sOUTB}:{sOUTB+1}] offset:{t*1024} sc1")
            sadd64(a, sOUTB, sOUTB, 1048576)
            a(f"s_add_u32 s{sSIG}, s{sSIG}, 256")
            if buf == 0:
                lf = a.newlabel("gfirst")
                a(f"s_cmp_lg_u32 s{sIT}, 0")
                a(f"s_cbranch_scc1 {lf}")
                a("s_waitcnt vmcnt(0)")
                a("s_barrier")
                signal_add(a, f"s{sSIG}", vt=16, base=S_WS)
                a.label(lf)
            a(f"s_add_u32 s{sIT}, s{sIT}, 1")
            a.flush_hazards()
        a(f"s_cmp_lt_u32 s{sIT}, 16")
        a(f"s_cbranch_scc1 {lloop}")
        if not isV: a(f"s_branch {ldone}")
    a.label(ldone)
    a.flush_hazards()
    a("s_waitcnt vmcnt(0)")
    a("s_barrier")
    a(f"s_sub_u32 s{sT+8}, s{sSIG}, 256")
    signal_add(a, f"s{sT+8}", vt=16, base=S_WS)
    signal_add(a, f"s{sSIG}", vt=16, base=S_WS)
```

```python
from asmlib import *
from layout import *

L_WV   = 0
L_X    = 131072
L_KT   = L_X
L_VT   = L_X + 8192
L_MS   = L_X + 16384
L_Q    = L_X + 24576
RS = 288
L_K    = L_Q + 2304
L_O    = L_K + 2304
L_VX   = L_Q
L_DUM  = L_O + 2304
L_END  = L_DUM + 256
assert L_END <= 163840

M = lambda kb: 4*kb
QA=32; KA=40; VA=48; WVS=56; QB=72; AF=88
vIDX=104; vL16=105; vMEMOFF=106; vPST=107; vPUB=108; vQKW=109; vQR=110; vKR=111; vOW=112; vOR=113; vWV=114
vKT=116; vMSW=117; vPRD=118; vVOFF=119; vFLG=120; vVXW=121
vSELX=vFLG
T=122
vTR=254
WO = lambda i,kb2: 128 + (i*2+kb2)*8
WQ = lambda t,kb: (t*8+kb)*8
WK = lambda t,kb: 128 + (t*8+kb)*8
sHALF=40; sPUBM=42; sPB=44
sSEL=52
sHALF2=92
sMB=60
sSTEP=68; sSPIN=69
sT=70
sKF=80; sVF=82; sKM=84; sVM=86; sC1=88
sDUMP=90; sPBr=48; sT0=94; sKMM=98; sPRG=100; sFOFF=101
C1 = 0.08838834764831845 * 1.4426950408889634

def lane_consts(a):
    l=T; g=T+1; c=T+2; t0=T+3; t1=T+4; t2=T+5
    a(f"v_mbcnt_lo_u32_b32 v{l}, -1, 0")
    a(f"v_mbcnt_hi_u32_b32 v{l}, -1, v{l}")
    a(f"v_lshrrev_b32 v{g}, 4, v{l}")
    a(f"v_and_b32 v{c}, 15, v{l}")
    a(f"v_lshlrev_b32 v{vL16}, 4, v{l}")
    a(f"v_add_u32 v{vKT}, {L_KT}, v{vL16}")
    a(f"s_lshl_b32 s{sT}, s{S_WAVE}, 10")
    a(f"s_add_u32 s{sT}, s{sT}, {L_MS}")
    a(f"v_add_u32 v{vMSW}, s{sT}, v{vL16}")
    a(f"s_lshl_b32 s{sT}, s{S_WAVE}, 11")
    a(f"s_add_u32 s{sT}, s{sT}, {L_VT}")
    a(f"v_add_u32 v{vVOFF}, s{sT}, v{vL16}")
    a(f"s_lshl_b32 s{sT}, s{S_WAVE}, 12")
    a(f"v_add_u32 v{vWV}, s{sT}, v{vL16}")
    a(f"v_add_u32 v{vWV+1}, 0x10000, v{vWV}")
    a(f"s_lshl_b32 s{sT}, s{S_WAVE}, 9")
    a(f"v_lshl_add_u32 v{vVXW}, v{l}, 2, s{sT}")
    a(f"s_mov_b32 s{sHALF}, 0xAAAAAAAA")
    a(f"s_mov_b32 s{sHALF+1}, 0xAAAAAAAA")
    a(f"v_mov_b32 v{t0}, 0x4444")
    a(f"v_mov_b32 v{t1}, 0xEEEE")
    a(f"s_mov_b32 s{sHALF2}, 0xCCCCCCCC")
    a(f"s_mov_b32 s{sHALF2+1}, 0xCCCCCCCC")
    a(f"v_cndmask_b32 v{vIDX}, v{t0}, v{t1}, s[{sHALF2}:{sHALF2+1}]")
    a(f"v_lshrrev_b32 v30, 2, v{c}")
    a(f"v_and_b32 v31, 1, v{c}")
    a(f"v_lshl_add_u32 v30, v30, 1, v31")
    a(f"v_bfe_u32 v31, v{c}, 1, 1")
    a(f"v_lshlrev_b32 v{t0}, 11, v{g}")
    a(f"v_lshl_add_u32 v{t0}, v30, 5, v{t0}")
    a(f"v_lshl_add_u32 v{t0}, v31, 4, v{t0}")
    a(f"s_lshl_b32 s{sT}, s{S_WAVE}, 8")
    a(f"v_add_u32 v{vMEMOFF}, s{sT}, v{t0}")
    a(f"s_lshl_b32 s{sT}, s{S_VR}, 10")
    a(f"s_lshl_b32 s{sT+1}, s{S_WAVE}, 16")
    a(f"s_add_u32 s{sT}, s{sT}, s{sT+1}")
    a(f"v_add_u32 v{vPST}, s{sT}, v{vL16}")
    a(f"s_lshr_b32 s{sT}, s{S_VR}, 2")
    a(f"s_lshl_b32 s{sT}, s{sT}, 15")
    a(f"s_and_b32 s{sT+1}, s{S_VR}, 3")
    a(f"s_lshl_b32 s{sT+2}, s{sT+1}, 8")
    a(f"s_add_u32 s{sT}, s{sT}, s{sT+2}")
    a(f"v_lshlrev_b32 v{t0}, 10, v{g}")
    a(f"v_lshl_add_u32 v{t0}, v{c}, 4, v{t0}")
    a(f"v_add_u32 v{vPRD}, s{sT}, v{t0}")
    a(f"v_lshrrev_b32 v{t0}, 1, v{c}")
    a(f"v_lshlrev_b32 v{t0}, 8, v{t0}")
    a(f"v_and_b32 v{t1}, 1, v{c}")
    a(f"v_lshl_add_u32 v{t0}, v{t1}, 5, v{t0}")
    a(f"v_lshl_add_u32 v{t0}, v{g}, 3, v{t0}")
    a(f"s_lshr_b32 s{sT}, s{S_VR}, 2")
    a(f"s_lshl_b32 s{sT}, s{sT}, 10")
    a(f"s_lshl_b32 s{sT+1}, s{sT+1}, 6")
    a(f"s_add_u32 s{sT}, s{sT}, s{sT+1}")
    a(f"v_add_u32 v{vPUB}, s{sT}, v{t0}")
    a(f"s_mov_b32 s{sPUBM}, 0x00FF00FF")
    a(f"s_mov_b32 s{sPUBM+1}, 0x00FF00FF")
    a(f"v_lshlrev_b32 v{t1}, 4, v{t1}")
    a(f"v_mov_b32 v{t0}, 0x3F80")
    a(f"v_lshlrev_b32 v{vSELX}, v{t1}, v{t0}")
    for d in range(4):
        m = 0x3 << (2*d); m = m | (m << 16)
        a(f"s_mov_b32 s{sSEL+2*d}, {m}")
        a(f"s_mov_b32 s{sSEL+2*d+1}, {m}")
    a(f"s_mov_b32 s{sKMM}, 0x33333333")
    a(f"s_mov_b32 s{sKMM+1}, 0x33333333")
    a(f"v_mul_u32_u24 v{t0}, {2*RS}, v{g}")
    a(f"v_lshl_add_u32 v{t0}, v{c}, 2, v{t0}")
    a(f"s_lshl_b32 s{sT}, s{S_WAVE}, 6")
    a(f"s_add_u32 s{sT}, s{sT}, {L_Q}")
    a(f"v_add_u32 v{vQKW}, s{sT}, v{t0}")
    a(f"v_lshrrev_b32 v{t0}, 1, v{c}")
    a(f"v_mul_u32_u24 v{t0}, {RS}, v{t0}")
    a(f"v_lshl_add_u32 v{t1}, v{g}, 4, v{t0}")
    a(f"v_add_u32 v{vQR}, {L_Q}, v{t1}")
    a(f"v_and_b32 v{t2}, 1, v{c}")
    a(f"v_lshl_add_u32 v{t1}, v{t2}, 5, v{t0}")
    a(f"v_lshl_add_u32 v{t1}, v{g}, 3, v{t1}")
    a(f"s_lshl_b32 s{sT}, s{S_WAVE}, 6")
    a(f"s_add_u32 s{sT}, s{sT}, {L_O}")
    a(f"v_add_u32 v{vOW}, s{sT}, v{t1}")
    a(f"v_mul_u32_u24 v{t1}, {RS}, v30")
    a(f"v_lshl_add_u32 v{t1}, v{g}, 5, v{t1}")
    a(f"v_lshl_add_u32 v{t1}, v31, 4, v{t1}")
    a(f"v_add_u32 v{vOR}, {L_O}, v{t1}")
    a(f"v_lshrrev_b32 v{t0}, 2, v{c}")
    a(f"v_lshl_add_u32 v{t0}, v{t0}, 1, v{t2}")
    a(f"v_mul_u32_u24 v{t0}, {RS}, v{t0}")
    a(f"v_lshl_add_u32 v{t0}, v{g}, 4, v{t0}")
    a(f"v_add_u32 v{vKR}, {L_K}, v{t0}")
    r=20; ph=21
    a(f"v_lshrrev_b32 v{r}, 2, v{c}")
    a(f"v_and_b32 v{t1}, 1, v{r}")
    a(f"v_lshrrev_b32 v{t2}, 1, v{r}")
    a(f"v_lshl_add_u32 v{r}, v{t2}, 3, v{t1}")
    a(f"v_lshl_add_u32 v{ph}, v{t2}, 2, v{t1}")
    a(f"v_and_b32 v{t2}, 1, v{g}")
    a(f"v_lshl_add_u32 v{ph}, v{t2}, 1, v{ph}")
    a(f"v_lshl_add_u32 v{r}, v{t2}, 2, v{r}")
    a(f"v_lshrrev_b32 v{t2}, 1, v{g}")
    a(f"v_lshl_add_u32 v{r}, v{t2}, 4, v{r}")
    a(f"v_lshlrev_b32 v{r}, 8, v{r}")
    a(f"v_and_b32 v{t2}, 3, v{c}")
    a(f"v_lshl_add_u32 v{r}, v{t2}, 3, v{r}")
    for t in range(2):
        a(f"s_lshl_b32 s{sT}, s{S_WAVE}, 1")
        a(f"s_add_u32 s{sT}, s{sT}, {t}")
        a(f"v_xor_b32 v{t2}, s{sT}, v{ph}")
        a(f"v_lshl_add_u32 v{22+3*t}, v{t2}, 5, v{r}")
        a(f"v_add_u32 v{23+3*t}, 0x10000, v{22+3*t}")
        a(f"v_add_u32 v{24+3*t}, 0x20000, v{22+3*t}")

def tr_off(slot, m):
    return (slot & 3)*16384 + (m >> 1)*8192 + (m & 1)*512

def setup_weights(a):
    l=T
    a(f"v_lshrrev_b32 v8, 4, v{l}")
    a(f"v_bfe_u32 v9, v{l}, 1, 3")
    a(f"v_and_b32 v10, 1, v8")
    a(f"v_xor_b32 v9, v9, v10")
    a(f"v_and_b32 v10, 1, v{l}")
    a(f"v_lshlrev_b32 v10, 4, v10")
    for aa in range(4):
        a(f"v_xor_b32 v11, {aa<<1}, v9")
        a(f"v_lshl_add_u32 v11, v11, 5, v10")
        a(f"v_add_u32 v12, {4*aa}, v8")
        a(f"v_lshl_add_u32 v{aa}, v12, 13, v11")
        a(f"v_lshl_add_u32 v{4+aa}, v12, 10, v11")
    a(f"s_lshl_b32 s{sT}, s{S_VR}, 8")
    a(f"s_lshl_b32 s{sT+1}, s{S_WAVE}, 20")
    a(f"s_add_u32 s{sT}, s{sT}, s{sT+1}")
    a(f"s_lshl_b32 s{sT+1}, s{S_VR}, 17")
    a(f"s_lshl_b32 s{sT+2}, s{S_WAVE}, 14")
    a(f"s_add_u32 s{sT+1}, s{sT+1}, s{sT+2}")
    a(f"s_lshl_b32 s{sT+2}, s{S_WAVE}, 12")
    def issue(grp):
        mat = grp >> 1; half = grp & 1
        for ch in range(4):
            slot = half*4 + ch
            if mat == 3: slot += 1
            if mat == 2:
                a(f"s_add_u32 s{sT+3}, s{sT+1}, {half*65536 + ch*256}")
                base = S_WO; vo = 4
            else:
                kb = half*4 + ch
                a(f"s_add_u32 s{sT+3}, s{sT}, {kb*131072}")
                base = (S_WQ, S_WK, None, S_WV)[mat]; vo = 0
            a(f"s_add_u32 s{sT+4}, s{base}, s{sT+3}")
            a(f"s_addc_u32 s{sT+5}, s{base+1}, 0")
            for aa in range(4):
                a(f"s_add_u32 m0, s{sT+2}, {slot*16384 + aa*1024}")
                a(f"global_load_lds_dwordx4 v{vo+aa}, s[{sT+4}:{sT+5}]")
    issue(0); issue(1)
    for grp in range(6):
        a(f"s_waitcnt vmcnt(16)")
        a("s_barrier")
        mat = grp >> 1; half = grp & 1
        if mat < 2:
            for ch in range(4):
                kb = half*4 + ch
                for t in range(2):
                    dst = (WQ if mat == 0 else WK)(t, kb)
                    for m in range(4):
                        a(f"ds_read_b64_tr_b16 a[{dst+2*m}:{dst+2*m+1}], v{22+3*t+half} offset:{tr_off(kb,m)}")
        else:
            a(f"s_lshl_b32 s{sT+3}, s{S_WAVE}, 14")
            a(f"s_add_u32 s{sT+3}, s{sT+3}, {half*65536}")
            for u in range(8):
                a(f"v_xor_b32 v8, {u}, v21")
                a(f"v_lshl_add_u32 v8, v8, 5, v20")
                a(f"v_add_u32 v8, s{sT+3}, v8")
                dst = WO(u, half)
                for m in range(4):
                    a(f"ds_read_b64_tr_b16 v[{dst+2*m}:{dst+2*m+1}], v8 offset:{tr_off(0,m)}")
        a("s_waitcnt lgkmcnt(0)")
        a("s_barrier")
        if grp < 4: issue(grp + 2)
        elif grp == 4:
            pass
        elif grp == 5:
            issue(6); issue(7)
        if grp == 4:
            a("s_waitcnt vmcnt(0)")
    for kb in range(8):
        a(f"s_waitcnt vmcnt({4*(7-kb)})")
        a("s_barrier")
        slot = kb + 1
        for t in range(2):
            for m in range(4):
                a(f"ds_read_b64_tr_b16 v[{32+8*t+2*m}:{33+8*t+2*m}], v{22+3*t+(slot>>2)} offset:{tr_off(slot,m)}")
        a("s_waitcnt lgkmcnt(0)")
        for t in range(2):
            for hf in range(2):
                a(f"ds_write_b128 v{vWV+(kb>>2)}, v[{32+8*t+4*hf}:{35+8*t+4*hf}] offset:{(kb&3)*16384+t*2048+hf*1024}")
        a("s_waitcnt lgkmcnt(0)")
    a("s_barrier")

TRACE=[False]
WI=set()
def trace(a, slot):
    if not TRACE[0]: return
    a(f"s_memrealtime s[{18+2*slot}:{19+2*slot}]")
def trace_flush(a):
    if not TRACE[0]: return
    a(f"s_lshl_b32 s3, s{sSTEP}, 12")
    a(f"s_lshl_b32 s2, s{S_VR}, 7")
    a("s_add_u32 s3, s3, s2")
    a(f"s_lshl_b32 s2, s{S_WAVE}, 5")
    a("s_add_u32 s3, s3, s2")
    a(f"s_add_u32 s3, s3, {WS_X1}")
    a(f"v_lshrrev_b32 v{T}, 2, v{vL16}")
    a(f"v_add_u32 v{T}, s3, v{T}")
    a("s_waitcnt lgkmcnt(0)")
    for sl in range(8):
        a(f"v_writelane_b32 v{T+1}, s{18+2*sl}, {sl}")
    a("s_mov_b64 exec, 0xff")
    a(f"global_store_dword v{T}, v{T+1}, s[{S_WS}:{S_WS+1}]")
    a("s_mov_b64 exec, -1")
class Prof:
    def __init__(self, a, enabled):
        self.a=a; self.en=enabled; self.names=[]
    def stamp(self, name):
        if not self.en: return
        a=self.a
        a("s_memtime s[96:97]")
        a("s_waitcnt lgkmcnt(0)")
        if name in self.names: idx=self.names.index(name)
        else: self.names.append(name); idx=len(self.names)-1
        acc = 18+idx
        assert acc <= 33
        a(f"s_sub_u32 s3, s96, s2")
        a(f"s_add_u32 s{acc}, s{acc}, s3")
        a("s_mov_b32 s2, s96")

def xl(a, x, t, op):
    a(f"v_mov_b32 v{t}, v{x}")
    a(f"v_permlane32_swap_b32 v{t}, v{x}")
    a(f"{op} v{x}, v{t}, v{x}")
    a(f"v_mov_b32 v{t}, v{x}")
    a(f"v_permlane16_swap_b32 v{t}, v{x}")
    a(f"{op} v{x}, v{t}, v{x}")

import os
SPEC_T=int(os.environ.get('SPEC_T','1'))
R0=56; R1=72; R2=88
sFLW=8; sFLR=10
def chain_main(a, sc, dump=False, prof=False, kvflags=True, guard=True):
    P = Prof(a, prof)
    KVSC = '' if 'nosc' in WI else 'sc1'
    C = Cnt(a)
    a(f"s_mov_b32 s{sC1}, {f2u(C1)}")
    a(f"s_mov_b32 s{sC1+1}, {f2u(C1)}")
    for i in range(2):
        sadd64(a, sPB+2*i, S_WS, WS_PB + i*262144)
        sadd64(a, sPBr+2*i, S_WS, WS_PB + i*262144 + 4096)
    a(f"s_lshl_b32 s{sT}, s{S_VR}, 13")
    a(f"s_mov_b32 s{sT+1}, {WS_KF}")
    a(f"s_mov_b32 s{sVF}, {L_KT}")
    a(f"s_cmp_eq_u32 s{S_WAVE}, 3")
    a(f"s_cselect_b32 s{sT+1}, {WS_VF}, s{sT+1}")
    a(f"s_cselect_b32 s{sVF}, {L_VT}, s{sVF}")
    a(f"s_add_u32 s{sT+1}, s{sT+1}, s{sT}")
    sadd64(a, sKF, S_WS, f"s{sT+1}")
    a(f"s_lshl_b32 s{sT}, s{S_VR}, 12")
    a(f"s_add_u32 s{sT+1}, s{sT}, {WS_KM}")
    sadd64(a, sKM, S_WS, f"s{sT+1}")
    a(f"s_lshl_b32 s{sT}, s{S_VR}, 11")
    a(f"s_add_u32 s{sT+1}, s{sT}, {WS_VM}")
    sadd64(a, sVM, S_WS, f"s{sT+1}")
    a(f"s_lshl_b32 s{sPRG}, s{S_VR}, 7")
    a(f"s_add_u32 s{sPRG}, s{sPRG}, {F_PROG}")
    if dump: sadd64(a, sDUMP, S_WS, WS_DUMP)
    a(f"s_lshl_b32 s{sT}, s{S_WAVE}, 8")
    a(f"s_lshl_b32 s{sT+1}, s{S_VR}, 2")
    a(f"s_add_u32 s{sT}, s{sT}, s{sT+1}")
    a(f"s_add_u32 s{sT}, s{sT}, {F_PFL}")
    sadd64(a, sFLW, S_WS, f"s{sT}")
    a(f"s_lshr_b32 s{sT}, s{S_VR}, 2")
    a(f"s_lshl_b32 s{sT}, s{sT}, 7")
    a(f"s_add_u32 s{sT}, s{sT}, {F_PFL}")
    sadd64(a, sFLR, S_WS, f"s{sT}")
    for i in range(4): sadd64(a, sMB+2*i, S_WS, WS_MB + 8192*i)
    a(f"s_mov_b32 s{sSPIN}, 0")
    a(f"s_mov_b32 s{sSTEP}, 0")
    if prof:
        for r in range(18, 34): a(f"s_mov_b32 s{r}, 0")
    lw = [a.newlabel(f"c_w{i}") for i in range(4)]; lend = a.newlabel("c_end")
    for i in range(1, 4):
        a(f"s_cmp_eq_u32 s{S_WAVE}, {i}")
        a(f"s_cbranch_scc1 {lw[i]}")
    tails = []; slow = []; fbk = []; redo = []; ptail = []
    def retry_stub(lback):
        l = a.newlabel("c_retry"); tails.append((l, lback)); return l
    I = lambda txt: (lambda: a(txt))
    for w in range(4):
        role = ("R", "PUB", "DMA", "DMA")[w]
        if w: a.label(lw[w]); a.hist=[]
        KB = [w, w+4] + [k for k in range(8) if k not in (w, w+4)]
        VB = KB
        def wait_flag_spin(off_sgpr):
            l = a.newlabel("c_fl")
            a(f"v_mov_b32 v{T}, s{off_sgpr}")
            a.label(l)
            a(f"global_load_dword v{vFLG}, v{T}, s[{S_WS}:{S_WS+1}] sc1")
            a(f"s_add_u32 s{sSPIN}, s{sSPIN}, 1")
            a(f"s_cmp_gt_u32 s{sSPIN}, 0x80000")
            a("s_cbranch_scc1 L_fail")
            a("s_waitcnt vmcnt(0)")
            a(f"v_cmp_gt_u32 vcc, {KV_TARGET}, v{vFLG}")
            a(f"s_cbranch_vccnz {l}")
        def wv_read(kb, t, slot, hf):
            C.lds(f"ds_read_b128 v[{slot+4*hf}:{slot+4*hf+3}], v{vWV+(kb>>2)} offset:{(kb&3)*16384+t*2048+hf*1024}", ("wv",kb,t))
        def wv4(kb, R): return [(lambda t=t, hf=hf: wv_read(kb, t, R+8*t, hf)) for t in range(2) for hf in range(2)]
        def vmf(kb, t, R):
            C.wait_l(("wv",kb,t))
            a(f"v_smfmac_f32_16x16x64_bf16 v[{VA+4*t}:{VA+4*t+3}], v[{M(kb)}:{M(kb)+3}], v[{R+8*t}:{R+8*t+7}], v{vIDX}")
        def qmf(kb, t):
            C.wait_l(("m",kb))
            a(f"v_smfmac_f32_16x16x64_bf16 v[{QA+4*t}:{QA+4*t+3}], v[{M(kb)}:{M(kb)+3}], a[{WQ(t,kb)}:{WQ(t,kb)+7}], v{vIDX}")
        def kmf(kb, t): a(f"v_smfmac_f32_16x16x64_bf16 v[{KA+4*t}:{KA+4*t+3}], v[{M(kb)}:{M(kb)+3}], a[{WK(t,kb)}:{WK(t,kb)+7}], v{vIDX}")
        def weave(mf, fill, per=1, drain=True):
            for m in mf:
                m()
                for _ in range(per):
                    if fill: fill.pop(0)()
            if drain:
                while fill: fill.pop(0)()
        if role == "R":
            a(f"v_bfe_u32 v{T}, v{vPUB}, 5, 3")
            a(f"v_lshrrev_b32 v{T+1}, 8, v{vPUB}")
            a(f"v_lshlrev_b32 v{T}, 10, v{T}")
            a(f"v_lshl_add_u32 v{T}, v{T+1}, 5, v{T}")
            a(f"v_and_b32 v{T+1}, 31, v{vPUB}")
            a(f"v_add_u32 v{T}, v{T}, v{T+1}")
            a(f"s_mov_b64 exec, s[{sPUBM}:{sPUBM+1}]")
            a(f"global_load_dwordx2 v[{T+2}:{T+3}], v{T}, s[{S_MEM0}:{S_MEM0+1}]")
            a("s_waitcnt vmcnt(0)")
            a(f"v_min_u32 v{T+2}, -2, v{T+2}")
            a(f"v_min_u32 v{T+3}, -2, v{T+3}")
            a(f"global_store_dwordx2 v{vPUB}, v[{T+2}:{T+3}], s[{sMB}:{sMB+1}] {sc}")
            if dump: a(f"global_store_dwordx2 v{vPUB}, v[{T+2}:{T+3}], s[{sDUMP}:{sDUMP+1}]")
            a("s_mov_b64 exec, -1")
        elif role == "DMA":
            a(f"s_mov_b32 s{sFOFF}, {F_KVRDY}")
            if kvflags: wait_flag_spin(sFOFF)
            a(f"s_mov_b32 m0, {L_DUM}")
            a(f"v_lshlrev_b32 v{T}, 3, v{vL16}")
            a(f"global_load_lds_dword v{T}, s[{sKF}:{sKF+1}] sc1")
            a(f"v_add_u32 v{T}, 0x40000, v{T}")
            a(f"global_load_lds_dword v{T}, s[{sKF}:{sKF+1}] sc1")
            a(f"v_add_u32 v{T+5}, 0x40000, v{T}")
            a(f"s_mov_b32 s{sFOFF}, {F_KVRDY+128}")
            if kvflags: wait_flag_spin(sFOFF)
            a(f"s_mov_b32 s{sFOFF}, {F_KVRDY+256}")
        for r in range(QA, QA+24, 2): a(f"v_mov_b64 v[{r}:{r+1}], 0")
        for i, R in enumerate((R0, R1, R2)):
            for f in wv4(VB[i], R): f()
        a(f"s_memtime s[{sT0}:{sT0+1}]")
        a("s_waitcnt lgkmcnt(0)")
        if prof: a(f"s_mov_b32 s2, s{sT0}")
        lloop = a.newlabel("c_loop"); lchk0 = a.newlabel("c_chk0")
        A_=M(KB[0]); B_=M(KB[1])
        def mloads(A_=A_, B_=B_):
            a(f"global_load_dwordx4 v[{A_}:{A_+3}], v{vMEMOFF}, s[{sMB}:{sMB+1}] sc1")
            a(f"global_load_dwordx4 v[{B_}:{B_+3}], v{vMEMOFF}, s[{sMB}:{sMB+1}] offset:1024 sc1")
        def rotate():
            a(f"s_mov_b64 s[{sT}:{sT+1}], s[{sMB}:{sMB+1}]")
            a(f"s_mov_b64 s[{sMB}:{sMB+1}], s[{sMB+2}:{sMB+3}]")
            a(f"s_mov_b64 s[{sMB+2}:{sMB+3}], s[{sMB+4}:{sMB+5}]")
            a(f"s_mov_b64 s[{sMB+4}:{sMB+5}], s[{sMB+6}:{sMB+7}]")
            a(f"s_mov_b64 s[{sMB+6}:{sMB+7}], s[{sT}:{sT+1}]")
        mloads()
        a.flush_hazards()
        a.label(lloop)
        for par in range(2):
            C.l=[]; C.v=[]
            lp = a.newlabel("c_pollm")
            if par == 0:
                a(f"s_branch {lchk0}")
                a.label(lp)
                mloads()
                a.label(lchk0)
            else:
                lc1 = a.newlabel("c_chk1")
                ptail.append((lp, lc1, mloads))
                a.label(lc1)
            a("s_waitcnt vmcnt(1)")
            a(f"v_max3_u32 v{T}, v{A_}, v{A_+1}, v{A_+2}")
            a("s_waitcnt vmcnt(0)")
            a(f"v_max3_u32 v{T+1}, v{A_+3}, v{B_}, v{B_+1}")
            a(f"v_max3_u32 v{T}, v{T}, v{B_+2}, v{B_+3}")
            a(f"v_max_u32 v{T}, v{T}, v{T+1}")
            a(f"v_cmp_eq_u32 vcc, -1, v{T}")
            a(f"ds_write_b128 v{vMSW}, v[{A_}:{A_+3}]")
            a(f"ds_write_b128 v{vMSW}, v[{B_}:{B_+3}] offset:4096")
            a(f"s_cbranch_vccnz {retry_stub(lp)}")
            trace(a, 0); P.stamp("pollm")
            rf = []
            if role == "DMA":
                rf += [I(f"s_mov_b32 m0, s{sVF}")]
                rf += [I(f"global_load_lds_dwordx4 v{vL16}, s[{sKF}:{sKF+1}] offset:{i*1024} {KVSC}") for i in range(4)]
                rf += [I(f"v_add_u32 v{T}, 4096, v{vL16}"), I(f"s_add_u32 m0, s{sVF}, 4096")]
                rf += [I(f"global_load_lds_dwordx4 v{T}, s[{sKF}:{sKF+1}] offset:{i*1024} {KVSC}") for i in range(4)]
            elif role == "R":
                slr = sPB + 2*(par^1); slr2 = sPBr + 2*(par^1)
                rf += [I(f"v_mov_b32 v{T+2+i}, {SENT}") for i in range(4)]
                rf += [I(f"global_store_dwordx4 v{vPRD}, v[{T+2}:{T+5}], s[{slr}:{slr+1}] {sc}"),
                       I(f"global_store_dwordx4 v{vPRD}, v[{T+2}:{T+5}], s[{slr2}:{slr2+1}] {sc}")]
                for i in range(1, 4):
                    rf += [I(f"v_add_u32 v{T}, {8192*i}, v{vPRD}"),
                           I(f"global_store_dwordx4 v{T}, v[{T+2}:{T+5}], s[{slr}:{slr+1}] {sc}"),
                           I(f"global_store_dwordx4 v{T}, v[{T+2}:{T+5}], s[{slr2}:{slr2+1}] {sc}")]
            if 'nodma' in WI and role == "DMA": rf = []
            weave([lambda: qmf(KB[0],0), lambda: qmf(KB[0],1), lambda: qmf(KB[1],0)], rf, 1, False)
            a("s_waitcnt lgkmcnt(0)")
            a("s_barrier")
            P.stamp("barMS")
            mr = [(lambda kb=kb: C.lds(f"ds_read_b128 v[{M(kb)}:{M(kb)+3}], v{vKT} offset:{L_MS-L_KT+kb*1024}", ("m",kb))) for kb in KB[2:]]
            mr[0](); mr[1]()
            qmf(KB[1],1); mr[2]()
            kmf(KB[0],0); mr[3]()
            kmf(KB[0],1); mr[4]()
            kmf(KB[1],0); mr[5]()
            mf = []
            for kb in KB[2:]: mf += [lambda kb=kb: qmf(kb,0), lambda kb=kb: qmf(kb,1)]
            weave(mf, rf, 1, True)
            P.stamp("q")
            late = []
            if role == "DMA":
                late += [I(f"s_mov_b32 m0, {L_DUM}"), I(f"global_load_lds_dword v{T+5}, s[{sKF}:{sKF+1}] {KVSC}")]
                if par == 0 and kvflags:
                    late += [I(f"v_mov_b32 v{T}, s{sFOFF}"), I(f"global_load_dword v{vFLG}, v{T}, s[{S_WS}:{S_WS+1}] sc1")]
            qpost = [I(f"v_add_f32 v{QA}, v{QA}, v{QA+2}"), I(f"v_add_f32 v{QA+1}, v{QA+1}, v{QA+3}"),
                     I(f"v_add_f32 v{QA+4}, v{QA+4}, v{QA+6}"), I(f"v_add_f32 v{QA+5}, v{QA+5}, v{QA+7}"),
                     I(f"v_cvt_pk_bf16_f32 v{QA}, v{QA}, v{QA+4}"), I(f"v_cvt_pk_bf16_f32 v{QA+1}, v{QA+1}, v{QA+5}"),
                     lambda: C.lds(f"ds_write2_b32 v{vQKW}, v{QA}, v{QA+1} offset0:0 offset1:{RS//4}")]
            vmf(VB[0],0,R0); vmf(VB[0],1,R0)
            weave([lambda: vmf(VB[1],0,R1), lambda: vmf(VB[1],1,R1), lambda: vmf(VB[2],0,R2), lambda: vmf(VB[2],1,R2)], qpost, 2, True)
            kmf(KB[1],1); kmf(KB[2],0); kmf(KB[2],1)
            P.stamp("vq")
            if role == "DMA": a("s_waitcnt vmcnt(0) lgkmcnt(0)"); C.l=[]
            else: C.all_l()
            a("s_barrier")
            trace(a, 1); P.stamp("barQ")
            QBr=R0
            rd = []
            for ks in range(4):
                rd += [lambda ks=ks: C.lds(f"ds_read_b128 v[{QBr+4*ks}:{QBr+4*ks+3}], v{vQR} offset:{64*ks}", ("q",ks)),
                       lambda ks=ks: C.lds(f"ds_read_b128 v[{R1+4*ks}:{R1+4*ks+3}], v{vKT} offset:{ks*1024}", ("kt",0,ks))]
            rd += [(lambda ks=ks: C.lds(f"ds_read_b128 v[{R2+4*ks}:{R2+4*ks+3}], v{vKT} offset:{4096+ks*1024}", ("kt",1,ks))) for ks in range(4)]
            rd[0](); rd[1](); rd = rd[2:]
            mf = []
            for kb in KB[3:]: mf += [lambda kb=kb: kmf(kb,0), lambda kb=kb: kmf(kb,1)]
            weave(mf, rd + late, 1, True)
            P.stamp("k")
            S0=QA; S1=QA+4; SM=KA
            kpost = [I(f"v_add_f32 v{KA}, v{KA}, v{KA+2}"), I(f"v_add_f32 v{KA+1}, v{KA+1}, v{KA+3}"),
                     I(f"v_add_f32 v{KA+4}, v{KA+4}, v{KA+6}"), I(f"v_add_f32 v{KA+5}, v{KA+5}, v{KA+7}"),
                     I(f"v_cvt_pk_bf16_f32 v{KA}, v{KA}, v{KA+4}"), I(f"v_cvt_pk_bf16_f32 v{KA+1}, v{KA+1}, v{KA+5}"),
                     lambda: C.lds(f"ds_write_b32 v{vQKW}, v{KA} offset:{L_K-L_Q}"),
                     lambda: C.lds(f"ds_write_b32 v{vQKW}, v{KA+1} offset:{L_K-L_Q+RS}", "kw")]
            def smf(kt, ks):
                Sx = (S0, S1)[kt]; R = (R1, R2)[kt]
                C.wait_l(("kt",kt,ks))
                c = "0" if ks == 0 else f"v[{Sx}:{Sx+3}]"
                a(f"v_mfma_f32_16x16x32_bf16 v[{Sx}:{Sx+3}], v[{R+4*ks}:{R+4*ks+3}], v[{QBr+4*ks}:{QBr+4*ks+3}], {c}")
            smf(0,0); smf(0,1)
            weave([lambda: smf(0,2), lambda: smf(0,3), lambda: smf(1,0), lambda: smf(1,1)], kpost, 2, True)
            w3 = wv4(VB[3], R1)
            weave([lambda: smf(1,2), lambda: smf(1,3)], w3, 2, True)
            C.wait_l("kw")
            a("s_barrier")
            trace(a, 5); P.stamp("barK")
            for ks in range(4):
                C.lds(f"ds_read_b128 v[{R2+4*ks}:{R2+4*ks+3}], v{vKR} offset:{64*ks}", ("km",ks))
            VF0=M(VB[0]); VF1=M(VB[1]); O0=M(VB[2]); O1=M(VB[3])
            C.lds(f"ds_read_b128 v[{VF0}:{VF0+3}], v{vVOFF}", "vf")
            C.lds(f"ds_read_b128 v[{VF1}:{VF1+3}], v{vVOFF} offset:1024", "vf")
            mx=T; tt=T+1; nm=T+2; ls=T+4
            Pr=KA+4; PM=KA+2
            a(f"v_max3_f32 v{mx}, v{S0}, v{S0+1}, v{S0+2}")
            a(f"v_max3_f32 v{mx}, v{mx}, v{S0+3}, v{S1}")
            vmf(VB[3],0,R1)
            a(f"v_max3_f32 v{mx}, v{mx}, v{S1+1}, v{S1+2}")
            vmf(VB[3],1,R1)
            a(f"v_max_f32 v{mx}, v{mx}, v{S1+3}")
            w4 = wv4(VB[4], R1)
            a(f"v_mov_b32 v{tt}, v{mx}")
            w4[0](); w4[1]()
            a(f"v_permlane32_swap_b32 v{tt}, v{mx}")
            a(f"v_max_f32 v{mx}, v{tt}, v{mx}")
            a(f"v_mov_b32 v{tt}, v{mx}")
            w4[2](); w4[3]()
            a(f"v_permlane16_swap_b32 v{tt}, v{mx}")
            a(f"v_max_f32 v{mx}, v{tt}, v{mx}")
            a(f"v_mul_f32 v{nm}, s{sC1}, v{mx}")
            def mmf(ks):
                C.wait_l(("km",ks))
                c = "0" if ks == 0 else f"v[{SM}:{SM+3}]"
                a(f"v_mfma_f32_16x16x32_bf16 v[{SM}:{SM+3}], v[{R2+4*ks}:{R2+4*ks+3}], v[{QBr+4*ks}:{QBr+4*ks+3}], {c}")
            tok = [S0+i for i in range(4)] + [S1+i for i in range(4)]
            fm = [I(f"v_fma_f32 v{r}, v{r}, s{sC1}, -v{nm}") for r in tok]
            weave([lambda ks=ks: mmf(ks) for ks in range(4)], fm, 2, True)
            if role == "PUB" and 'nopub' not in WI and 'nokpub' not in WI:
                a(f"s_mov_b64 exec, s[{sKMM}:{sKMM+1}]")
                for ks in range(4):
                    a(f"global_store_dwordx4 v{vL16}, v[{R2+4*ks}:{R2+4*ks+3}], s[{sKM}:{sKM+1}] offset:{1024*ks} sc1")
                a("s_mov_b64 exec, 1")
                a(f"v_mov_b32 v{ls}, s{sPRG}")
                a(f"v_mov_b32 v{ls+1}, s{sSTEP}")
                a(f"global_store_dword v{ls}, v{ls+1}, s[{S_WS}:{S_WS+1}] sc1")
                a("s_mov_b64 exec, -1")
            P.stamp("memS")
            w5 = wv4(VB[5], R2); w6 = wv4(VB[6], R0)
            ex = [I(f"v_exp_f32 v{r}, v{r}") for r in tok]
            ex[0](); w5[0](); ex[1](); w5[1](); ex[2](); w5[2](); ex[3](); w5[3]()
            vmf(VB[4],0,R1); ex[4](); vmf(VB[4],1,R1); ex[5]()
            w6[0](); ex[6](); w6[1](); ex[7](); w6[2](); w6[3]()
            w7 = wv4(VB[7], R1)
            a(f"v_fma_f32 v{SM}, v{SM}, s{sC1}, -v{nm}")
            a(f"v_fma_f32 v{SM+1}, v{SM+1}, s{sC1}, -v{nm}")
            w7[0](); w7[1]()
            a(f"v_max_f32 v{tt}, v{SM}, v{SM+1}")
            a(f"v_cmp_lt_f32 vcc, 0x42800000, v{tt}")
            w7[2](); w7[3]()
            cv = [I(f"v_cvt_pk_bf16_f32 v{Pr+i}, v{tok[2*i]}, v{tok[2*i+1]}") for i in range(4)]
            vmf(VB[5],0,R2); cv[0](); vmf(VB[5],1,R2); cv[1](); cv[2](); cv[3]()
            lfb = a.newlabel("c_fb"); lfr = a.newlabel("c_fr")
            a(f"s_cbranch_vccnz {lfb}")
            a.label(lfr)
            fbk.append((lfb, lfr))
            P.stamp("exp"); trace(a, 7)
            C.wait_l("vf")
            a(f"v_mfma_f32_16x16x32_bf16 v[{O0}:{O0+3}], v[{VF0}:{VF0+3}], v[{Pr}:{Pr+3}], 0")
            a(f"v_exp_f32 v{SM}, v{SM}")
            a(f"v_mfma_f32_16x16x32_bf16 v[{O1}:{O1+3}], v[{VF1}:{VF1+3}], v[{Pr}:{Pr+3}], 0")
            a(f"v_exp_f32 v{SM+1}, v{SM+1}")
            sm = [I(f"v_add_f32 v{ls}, v{S0}, v{S0+1}"), I(f"v_add_f32 v{ls+1}, v{S0+2}, v{S0+3}"),
                  I(f"v_add_f32 v{ls}, v{ls}, v{S1}"), I(f"v_add_f32 v{ls+1}, v{ls+1}, v{S1+1}"),
                  I(f"v_add_f32 v{ls}, v{ls}, v{S1+2}"), I(f"v_add_f32 v{ls+1}, v{ls+1}, v{S1+3}"),
                  I(f"v_add_f32 v{ls}, v{ls}, v{SM}"), I(f"v_add_f32 v{ls+1}, v{ls+1}, v{SM+1}"),
                  I(f"v_add_f32 v{ls}, v{ls}, v{ls+1}"), I(f"v_cvt_pk_bf16_f32 v{PM}, v{SM}, v{SM+1}"), I(f"v_mov_b32 v{PM+1}, 0"),
                  I(f"v_mov_b32 v{tt}, v{ls}")]
            weave([lambda: vmf(VB[6],0,R0), lambda: vmf(VB[6],1,R0), lambda: vmf(VB[7],0,R1), lambda: vmf(VB[7],1,R1)], sm, 2, True)
            a(f"v_permlane32_swap_b32 v{tt}, v{ls}")
            a(f"v_add_f32 v{ls}, v{tt}, v{ls}")
            a(f"v_mov_b32 v{tt}, v{ls}")
            a(f"v_pk_add_f32 v[{VA}:{VA+1}], v[{VA}:{VA+1}], v[{VA+2}:{VA+3}]")
            a(f"v_permlane16_swap_b32 v{tt}, v{ls}")
            a(f"v_pk_add_f32 v[{VA+4}:{VA+5}], v[{VA+4}:{VA+5}], v[{VA+6}:{VA+7}]")
            a(f"v_cvt_pk_bf16_f32 v{VA}, v{VA}, v{VA+1}")
            a(f"v_mov_b32 v{VA+1}, 0")
            a(f"v_cvt_pk_bf16_f32 v{VA+4}, v{VA+4}, v{VA+5}")
            a(f"v_mov_b32 v{VA+5}, 0")
            a(f"v_add_f32 v{ls}, v{tt}, v{ls}")
            a(f"v_mfma_f32_16x16x16_bf16 v[{O0}:{O0+3}], v[{VA}:{VA+1}], v[{PM}:{PM+1}], v[{O0}:{O0+3}]")
            a(f"v_rcp_f32 v{ls}, v{ls}")
            a(f"v_mfma_f32_16x16x16_bf16 v[{O1}:{O1+3}], v[{VA+4}:{VA+5}], v[{PM}:{PM+1}], v[{O1}:{O1+3}]")
            if 'nopub' not in WI and 'novpub' not in WI:
                a(f"global_store_dword v{vVXW}, v{VA}, s[{sVM}:{sVM+1}] sc1")
                a(f"global_store_dword v{vVXW}, v{VA+4}, s[{sVM}:{sVM+1}] offset:256 sc1")
            P.stamp("pv")
            a(f"v_mov_b64 v[{R0}:{R0+1}], 0"); a(f"v_mov_b64 v[{R0+2}:{R0+3}], 0")
            for r in range(4):
                a(f"v_cndmask_b32 v{QA+r}, v{O0+r}, v{O1+r}, s[{sHALF}:{sHALF+1}]")
            a(f"v_pk_mul_f32 v[{QA}:{QA+1}], v[{QA}:{QA+1}], v[{ls}:{ls+1}] op_sel_hi:[1,0]")
            a(f"v_pk_mul_f32 v[{QA+2}:{QA+3}], v[{QA+2}:{QA+3}], v[{ls}:{ls+1}] op_sel_hi:[1,0]")
            a(f"v_cvt_pk_bf16_f32 v{QA}, v{QA}, v{QA+1}")
            a(f"v_cvt_pk_bf16_f32 v{QA+1}, v{QA+2}, v{QA+3}")
            C.lds(f"ds_write_b64 v{vOW}, v[{QA}:{QA+1}]")
            a(f"v_mfma_f32_32x32x16_bf16 v[0:15], v[{R0}:{R0+3}], v[{R0}:{R0+3}], 0")
            a(f"v_mfma_f32_32x32x16_bf16 v[16:31], v[{R0}:{R0+3}], v[{R0}:{R0+3}], 0")
            trace(a, 6)
            C.all_l()
            a("s_barrier")
            trace(a, 2); P.stamp("barO")
            OA=KA
            for kb2 in range(2):
                C.lds(f"ds_read_b128 v[{OA+4*kb2}:{OA+4*kb2+3}], v{vOR} offset:{128*kb2}", ("oa",kb2))
            a(f"v_add_u32 v{T}, 32768, v{vPST}")
            a(f"s_add_u32 s{sT+6}, s{sSTEP}, 1")
            a(f"v_mov_b32 v{T+1}, 0")
            a(f"v_mov_b32 v{T+2}, s{sT+6}")
            if par == 1:
                a(f"s_cmp_eq_u32 s{sSTEP}, 63")
                a(f"s_cbranch_scc1 {lend}")
            pf = wv4(VB[0], R0) + wv4(VB[1], R1) + wv4(VB[2], R2)
            C.wait_l(("oa",0))
            def omf(i, kb2):
                if kb2: C.wait_l(("oa",1))
                a(f"v_smfmac_f32_16x16x64_bf16 v[{4*i}:{4*i+3}], v[{OA+4*kb2}:{OA+4*kb2+3}], v[{WO(i,kb2)}:{WO(i,kb2)+7}], v{vIDX}")
            PK = QA
            def fin(i):
                return [I(f"v_add_f32 v{4*i}, v{4*i}, v{4*i+2}"), I(f"v_add_f32 v{4*i+1}, v{4*i+1}, v{4*i+3}"),
                        I(f"v_cvt_pk_bf16_f32 v{PK+i}, v{4*i}, v{4*i+1}")]
            sl = sPB + 2*par
            order = [(0,0),(1,0),(0,1),(1,1),(2,0),(3,0),(2,1),(3,1),(4,0),(5,0),(4,1),(5,1),(6,0),(7,0),(6,1),(7,1)]
            fq = []
            for n, (i, kb2) in enumerate(order):
                omf(i, kb2)
                if n in (5, 9, 13):
                    fq += fin((n-5)//2) + fin((n-5)//2+1)
                    if n == 9: fq += [I(f"global_store_dwordx4 v{vPST}, v[{PK}:{PK+3}], s[{sl}:{sl+1}] {sc}"),
                                      I(f"global_store_dword v{T+1}, v{T+2}, s[{sFLW}:{sFLW+1}] {sc}")]
                for _ in range(2 if n >= 5 else 1):
                    if fq: fq.pop(0)()
            for f in fq: f()
            a(f"v_pk_add_f32 v[24:25], v[24:25], v[26:27]")
            a(f"v_pk_add_f32 v[28:29], v[28:29], v[30:31]")
            a(f"v_cvt_pk_bf16_f32 v{PK+6}, v24, v25")
            a(f"v_cvt_pk_bf16_f32 v{PK+7}, v28, v29")
            a(f"global_store_dwordx4 v{T}, v[{PK+4}:{PK+7}], s[{sl}:{sl+1}] {sc}")
            a(f"global_store_dword v{T+1}, v{T+2}, s[{sFLW}:{sFLW+1}] offset:128 {sc}")
            trace(a, 3); P.stamp("outp")
            if role == "R":
                for f in pf: f()
            if role == "R":
                RB=0; BS=VA; D=KA
                a(f"v_lshrrev_b32 v{T+4}, 2, v{vL16}")
                a(f"v_and_b32 v{T+4}, 127, v{T+4}")
                a(f"global_load_dword v{T+5}, v{T+4}, s[{sFLR}:{sFLR+1}] sc1")
                for d in range(4):
                    a(f"v_cndmask_b32 v{BS+d}, 0, v{vSELX}, s[{sSEL+2*d}:{sSEL+2*d+1}]")
                for i in range(1, 4): a(f"v_add_u32 v{T+i}, {8192*i}, v{vPRD}")
                for r in range(QA, QA+8, 2): a(f"v_mov_b64 v[{r}:{r+1}], 0")
                a(f"v_mov_b64 v[{VA+4}:{VA+5}], 0"); a(f"v_mov_b64 v[{VA+6}:{VA+7}], 0")
                rotate()
                sadd64(a, sVM, sVM, 65536)
                lp = a.newlabel("c_pollp"); lslow = a.newlabel("c_slow"); lok = a.newlabel("c_ok")
                if 'nortt' in WI:
                    trace(a, 1)
                    a("s_waitcnt vmcnt(0)")
                    trace(a, 5)
                ll = a.newlabel("c_light"); lgo = a.newlabel("c_go")
                LT = T+5
                a.label(ll)
                a("s_waitcnt vmcnt(0)")
                a(f"v_cmp_eq_u32 vcc, s{sT+6}, v{LT}")
                a(f"global_load_dword v{LT}, v{T+4}, s[{sFLR}:{sFLR+1}] sc1")
                a(f"s_bcnt1_i32_b32 s{sT}, vcc_lo")
                a(f"s_cmp_lt_u32 s{sT}, {SPEC_T}")
                a(f"s_cbranch_scc1 {retry_stub(ll)}")
                a.label(lp)
                for i in range(8):
                    base = vPRD if i < 2 else T + (i >> 1)
                    sb = sl if (i & 1) == 0 else sPBr + 2*par
                    a(f"global_load_dwordx4 v[{RB+4*i}:{RB+4*i+3}], v{base}, s[{sb}:{sb+1}] sc1")
                a("s_waitcnt vmcnt(8)")
                a(f"v_cmp_ne_u32 vcc, s{sT+6}, v{LT}")
                lre = a.newlabel("c_re")
                a(f"s_cbranch_vccnz {lre}")
                redo.append((lre, lp, T+4, LT))
                for i in range(8):
                    a(f"s_waitcnt vmcnt({7-i})")
                    c = "0" if i == 0 else f"v[{D}:{D+3}]"
                    a(f"v_mfma_f32_16x16x32_bf16 v[{D}:{D+3}], v[{RB+4*i}:{RB+4*i+3}], v[{BS}:{BS+3}], {c}")
                a(f"s_mov_b64 exec, s[{sPUBM}:{sPUBM+1}]")
                a(f"v_pk_add_f32 v[{D+4}:{D+5}], v[{D}:{D+1}], v[{D+2}:{D+3}]")
                a(f"v_cmp_u_f32 vcc, v{D+4}, v{D+5}")
                a(f"v_cvt_pk_bf16_f32 v{D}, v{D}, v{D+1}")
                a(f"v_cvt_pk_bf16_f32 v{D+1}, v{D+2}, v{D+3}")
                a(f"v_min_u32 v{D}, -2, v{D}")
                a(f"v_min_u32 v{D+1}, -2, v{D+1}")
                a(f"s_cbranch_vccnz {lslow}")
                a.label(lok)
                a(f"global_store_dwordx2 v{vPUB}, v[{D}:{D+1}], s[{sMB}:{sMB+1}] {sc}")
                trace(a, 4)
                a("s_barrier")
                a(f"v_mov_b64 v[{D+2}:{D+3}], -1")
                a(f"global_store_dwordx2 v{vPUB}, v[{D+2}:{D+3}], s[{sMB+4}:{sMB+5}] {sc}")
                if dump:
                    sadd64(a, sDUMP, sDUMP, 8192)
                    a(f"global_store_dwordx2 v{vPUB}, v[{D}:{D+1}], s[{sDUMP}:{sDUMP+1}]")
                a("s_mov_b64 exec, -1")
                trace_flush(a)
                mloads()
                for r in range(KA, KA+12, 2): a(f"v_mov_b64 v[{r}:{r+1}], 0")
                a(f"s_add_u32 s{sSTEP}, s{sSTEP}, 1")
                slow.append((lslow, lp, lok))
            else:
                if role == "PUB": sadd64(a, sKM, sKM, 131072)
                if role == "DMA":
                    sadd64(a, sKF, sKF, 262144)
                    a(f"s_add_u32 s{sT+5}, s{sSTEP}, 3")
                    a(f"s_cmp_lt_u32 s{sT+5}, 64")
                    a(f"s_cselect_b32 s{sT+4}, 0x80000, 0")
                    a(f"v_lshl_add_u32 v{T+5}, v{vL16}, 3, s{sT+4}")
                    if par == 1 and kvflags:
                        lok2 = a.newlabel("c_fok")
                        a(f"v_cmp_le_u32 vcc, {KV_TARGET}, v{vFLG}")
                        a(f"s_cbranch_vccnz {lok2}")
                        wait_flag_spin(sFOFF)
                        a.label(lok2)
                        a(f"s_add_u32 s{sFOFF}, s{sFOFF}, 128")
                        a(f"s_min_u32 s{sFOFF}, s{sFOFF}, {F_KVRDY+31*128}")
            if role != "R":
                sadd64(a, sVM, sVM, 65536)
                rotate()
                trace_flush(a)
                a(f"s_add_u32 s{sSTEP}, s{sSTEP}, 1")
                a(f"v_mfma_f32_32x32x16_bf16 v[{QA}:{QA+15}], v[{R0}:{R0+3}], v[{R0}:{R0+3}], 0")
                a(f"v_mfma_f32_16x16x32_bf16 v[{VA}:{VA+3}], v[{R0}:{R0+3}], v[{R0}:{R0+3}], 0")
                a(f"v_mfma_f32_16x16x32_bf16 v[{VA+4}:{VA+7}], v[{R0}:{R0+3}], v[{R0}:{R0+3}], 0")
                for f in pf: f()
                a("s_barrier")
                mloads()
            a.flush_hazards()
        a(f"s_branch {lchk0}")
    for (l, lc, ml) in ptail:
        a.label(l)
        ml()
        a(f"s_branch {lc}")
    for (l, lback) in tails:
        a.label(l)
        a(f"s_add_u32 s{sSPIN}, s{sSPIN}, 1")
        a(f"s_cmp_lt_u32 s{sSPIN}, 0x80000")
        a(f"s_cbranch_scc1 {lback}")
        a("s_branch L_fail")
    for (l, lp, va, lt) in redo:
        a.label(l); a.hist=[]
        a(f"global_load_dword v{lt}, v{va}, s[{sFLR}:{sFLR+1}] sc1")
        a(f"s_add_u32 s{sSPIN}, s{sSPIN}, 1")
        a(f"s_cmp_lt_u32 s{sSPIN}, 0x80000")
        a(f"s_cbranch_scc1 {lp}")
        a("s_branch L_fail")
    for (l, lp, lok) in slow:
        a.label(l); a.hist=[]
        a("s_mov_b64 exec, -1")
        a(f"s_add_u32 s{sSPIN}, s{sSPIN}, 1")
        a(f"s_cmp_gt_u32 s{sSPIN}, 0x80000")
        a("s_cbranch_scc1 L_fail")
        a(f"s_and_b32 s{sT}, s{sSPIN}, 31")
        a(f"s_cmp_lg_u32 s{sT}, 0")
        a(f"s_cbranch_scc1 {lp}")
        a(f"s_mov_b32 s{sT}, {SENT}")
        a(f"s_mov_b64 s[{sT+2}:{sT+3}], 0")
        for r in range(32):
            a(f"v_cmp_eq_u32 vcc, s{sT}, v{r}")
            a(f"s_or_b64 s[{sT+2}:{sT+3}], s[{sT+2}:{sT+3}], vcc")
        a(f"s_cmp_lg_u64 s[{sT+2}:{sT+3}], 0")
        a(f"s_cbranch_scc1 {lp}")
        a(f"s_mov_b64 exec, s[{sPUBM}:{sPUBM+1}]")
        a(f"s_branch {lok}")
    for (l, lr) in fbk:
        a.label(l); a.hist=[]
        a("s_nop 7")
        SM=KA; S0=QA; Pr=KA+4; tt=T+1; d=T
        a(f"v_max_f32 v{d}, v{SM}, v{SM+1}")
        xl(a, d, tt, "v_max_f32")
        a(f"v_max_f32 v{d}, 0, v{d}")
        a(f"v_sub_f32 v{SM}, v{SM}, v{d}")
        a(f"v_sub_f32 v{SM+1}, v{SM+1}, v{d}")
        a(f"v_sub_f32 v{d}, 0, v{d}")
        a(f"v_exp_f32 v{d}, v{d}")
        for r in range(8): a(f"v_mul_f32 v{S0+r}, v{S0+r}, v{d}")
        for i in range(4): a(f"v_cvt_pk_bf16_f32 v{Pr+i}, v{S0+2*i}, v{S0+2*i+1}")
        a("s_nop 1")
        a(f"s_branch {lr}")
    a.label(lend)
    a.flush_hazards()
    a(f"s_memtime s[{sT0+2}:{sT0+3}]")
    l0 = a.newlabel("c_fin")
    a("s_waitcnt vmcnt(0) lgkmcnt(0)")
    a("s_barrier")
    a(f"s_cmp_lg_u32 s{S_WAVE}, 1")
    a(f"s_cbranch_scc1 {l0}")
    a(f"v_mov_b32 v{T}, s{sPRG}")
    a(f"v_mov_b32 v{T+2}, 64")
    a(f"global_store_dword v{T}, v{T+2}, s[{S_WS}:{S_WS+1}] sc1")
    a.label(l0)
    a("s_waitcnt lgkmcnt(0) vmcnt(0)")
    return P
```

```python
from asmlib import *
from layout import *
from bulk import *
import os
PROG_SLEEP=int(os.environ.get('PROG_SLEEP','2'))
SCALE = 128 ** -0.5
sSEG=40; sSEQ=41; sEP=42; sEPr=44; sQ=46; sK=48; sV=50; sKMb=52; sVMb=54; sMASK=56
sMASK=80; sFLG=96; sFRE=97; sL2E=98; sSC=99
L_OX = 0
L_RED = 9216
L_WD = 16384
ORS = 272
vL=1; vG=2; vC=3; vL16=4; vT=5
vCON=16
vOW=26; vOR=27; vEPW=28; vEPR=29; vCOL=30; vVMO=31
QB=32; KFR=48; KMR=80; VFR=96; VMR=112
SS=120
PP=132
OO=140
OB=160
DD=32
WDF=200
WOF = lambda ti, ks: (ti*4+ks)*4

def xl(a, x, t, op):
    a(f"v_mov_b32 v{t}, v{x}")
    a(f"v_permlane32_swap_b32 v{t}, v{x}")
    a(f"{op} v{x}, v{t}, v{x}")
    a(f"v_mov_b32 v{t}, v{x}")
    a(f"v_permlane16_swap_b32 v{t}, v{x}")
    a(f"{op} v{x}, v{t}, v{x}")

def wg_sum(a, x, t, slot):
    row16_sum(a, x, None)
    xl(a, x, t, "v_add_f32")
    a(f"s_lshl_b32 s{sT}, s{S_WAVE}, 2")
    a(f"s_add_u32 s{sT}, s{sT}, {L_RED+slot*16}")
    a(f"v_mov_b32 v{t}, s{sT}")
    a(f"ds_write_b32 v{t}, v{x}")
    a(f"v_mov_b32 v{t}, {L_RED+slot*16}")
    a("s_waitcnt lgkmcnt(0)")
    a("s_barrier")
    a(f"ds_read_b128 v[{t+2}:{t+5}], v{t}")
    a("s_waitcnt lgkmcnt(0)")
    a(f"v_add_f32 v{t+2}, v{t+2}, v{t+3}")
    a(f"v_add_f32 v{t+4}, v{t+4}, v{t+5}")
    a(f"v_add_f32 v{x}, v{t+2}, v{t+4}")

def ef_setup(a):
    a("s_barrier")
    for cq in range(4):
        a(f"s_lshl_b32 s{sT+6}, s{S_VR}, 17")
        a(f"s_add_u32 s{sT+6}, s{sT+6}, {cq*256}")
        a(f"s_add_u32 s{sT+6}, s{S_WO}, s{sT+6}")
        a(f"s_addc_u32 s{sT+7}, s{S_WO+1}, 0")
        stage_rows(a, sT+6, 1024, 128, cq*32768, 2)
    cp = tr_base(a, 10, 2)
    a("v_lshrrev_b32 v12, 1, v2")
    a("v_xor_b32 v11, v11, v12")
    a("v_and_b32 v12, 1, v2")
    a("v_lshl_add_u32 v10, v12, 4, v10")
    a(f"s_lshl_b32 s{sT}, s{S_WAVE}, 15")
    a(f"v_add_u32 v10, s{sT}, v10")
    a("s_waitcnt vmcnt(0)")
    a("s_barrier")
    for p in range(4):
        a(f"v_xor_b32 v12, {2*p}, v11")
        a("v_lshl_add_u32 v12, v12, 5, v10")
        for tau in range(2):
            ti = 2*p+tau
            for ks in range(4):
                for m in range(2):
                    a(f"ds_read_b64_tr_b16 a[{WOF(ti,ks)+2*m}:{WOF(ti,ks)+2*m+1}], v12 offset:{ks*8192+m*1024+8*tau}")
    a("s_waitcnt lgkmcnt(0)")
    a("s_barrier")
    lane_ids(a, vL, vG, vC)
    a(f"v_lshlrev_b32 v{vL16}, 4, v{vL}")
    a(f"v_and_b32 v{vT}, 31, v{vL}")
    a(f"v_lshlrev_b32 v{vT}, 2, v{vT}")
    a(f"v_lshrrev_b32 v{vT+1}, 5, v{vL}")
    a(f"v_lshl_add_u32 v{vT}, v{vT+1}, 1, v{vT}")
    a(f"s_lshl_b32 s{sT}, s{S_WAVE}, 7")
    a(f"v_add_u32 v{vCOL}, s{sT}, v{vT}")
    poll_counter(a, D_MODRDY, 32, vt=vT)
    a(f"v_lshlrev_b32 v{vT}, 2, v{vCOL}")
    a(f"v_add_u32 v{vT}, {WS_MOD+4096}, v{vT}")
    a(f"v_add_u32 v{vT+1}, 4096, v{vT}")
    a(f"global_load_dwordx2 v[{vCON}:{vCON+1}], v{vT}, s[{S_WS}:{S_WS+1}] sc1")
    a(f"global_load_dwordx2 v[{vCON+2}:{vCON+3}], v{vT}, s[{S_WS}:{S_WS+1}] offset:2048 sc1")
    a(f"global_load_dwordx2 v[{vCON+4}:{vCON+5}], v{vT+1}, s[{S_WS}:{S_WS+1}] sc1")
    a(f"global_load_dwordx2 v[{vCON+6}:{vCON+7}], v{vT+1}, s[{S_WS}:{S_WS+1}] offset:2048 sc1")
    a(f"v_lshlrev_b32 v{vCOL}, 1, v{vCOL}")
    a(f"global_load_dword v{vCON+9}, v{vCOL}, s[{S_WR}:{S_WR+1}]")
    a(f"s_and_b32 s{sT}, s{S_WAVE}, 1")
    a(f"s_lshr_b32 s{sT+1}, s{S_WAVE}, 1")
    a(f"s_mul_i32 s{sT+2}, s{sT}, {16*ORS}")
    a(f"s_lshl_b32 s{sT+3}, s{sT+1}, 7")
    a(f"s_add_u32 s{sT+2}, s{sT+2}, s{sT+3}")
    a(f"v_mul_u32_u24 v{vT}, {ORS}, v{vC}")
    a(f"v_lshl_add_u32 v{vOW}, v{vG}, 3, v{vT}")
    a(f"v_add_u32 v{vOW}, s{sT+2}, v{vOW}")
    a(f"v_lshl_add_u32 v{vOR}, v{vG}, 4, v{vT}")
    a(f"v_lshlrev_b32 v{vEPW}, 16, v{vC}")
    a(f"v_lshl_add_u32 v{vEPW}, v{vG}, 5, v{vEPW}")
    a(f"s_lshl_b32 s{sT+2}, s{S_VR}, 11")
    a(f"s_lshl_b32 s{sT+3}, s{S_WAVE}, 9")
    a(f"s_add_u32 s{sT+2}, s{sT+2}, s{sT+3}")
    a(f"v_add_u32 v{vEPW}, s{sT+2}, v{vEPW}")
    a(f"v_lshrrev_b32 v{vT}, 5, v{vL}")
    a(f"v_lshlrev_b32 v{vT}, 11, v{vT}")
    a(f"v_and_b32 v{vT+1}, 31, v{vL}")
    a(f"v_lshl_add_u32 v{vT}, v{vT+1}, 4, v{vT}")
    a(f"s_lshl_b32 s{sT+2}, s{S_VR}, 16")
    a(f"s_add_u32 s{sT+2}, s{sT+2}, s{sT+3}")
    a(f"v_add_u32 v{vEPR}, s{sT+2}, v{vT}")
    a(f"s_lshl_b32 s{sT+2}, s{sT+1}, 10")
    a(f"v_lshl_add_u32 v{vVMO}, v{vL}, 2, s{sT+2}")
    a(f"s_lshl_b32 s{sT+2}, s{sT}, 4")
    a(f"v_add_u32 v{vT}, s{sT+2}, v{vC}")
    a(f"v_lshlrev_b32 v{vT+1}, 2, v{vG}")
    a(f"v_sub_u32 v{vT}, v{vT}, v{vT+1}")
    for kt in range(2):
        for r in range(4):
            a(f"v_cmp_gt_i32 s[{sMASK+2*(4*kt+r)}:{sMASK+2*(4*kt+r)+1}], {16*kt+r}, v{vT}")
    a(f"s_lshl_b32 s{sT+2}, s{S_VX}, 21")
    a(f"s_add_u32 s{sT+2}, s{sT+2}, {WS_EP}")
    sadd64(a, sEP, S_WS, f"s{sT+2}")
    a(f"s_lshl_b32 s{sT+2}, s{S_VX}, 7")
    a(f"s_add_u32 s{sFLG}, s{sT+2}, {F_EPF}")
    a(f"s_add_u32 s{sFRE}, s{sT+2}, {F_EPFREE}")
    a(f"s_mov_b32 s{sL2E}, {f2u(LOG2E)}")
    a(f"s_mov_b32 s{sSC}, {f2u(SCALE)}")
    for i in range(4): a(f"v_mov_b32 v{VMR+2*i+1}, 0")
    a(f"v_mov_b32 v{PP+5}, 0")
    a("s_waitcnt vmcnt(0)")
    a(f"v_lshlrev_b32 v{vCON+8}, 16, v{vCON+9}")
    a(f"v_and_b32 v{vCON+9}, 0xffff0000, v{vCON+9}")

def poll_flags32(a, soff, sval):
    l = a.newlabel("pf")
    a(f"v_and_b32 v{vT}, 31, v{vL}")
    a(f"v_lshl_add_u32 v{vT}, v{vT}, 2, s{soff}")
    a(f"s_mov_b32 s{sT+9}, 0")
    a.label(l)
    a(f"global_load_dword v{vT+1}, v{vT}, s[{S_WS}:{S_WS+1}] sc1")
    a(f"s_add_u32 s{sT+9}, s{sT+9}, 1")
    a(f"s_cmp_gt_u32 s{sT+9}, 0x80000")
    a("s_cbranch_scc1 L_fail")
    a("s_waitcnt vmcnt(0)")
    a(f"v_cmp_gt_u32 vcc, s{sval}, v{vT+1}")
    a(f"s_cbranch_vccnz {l}")

def set_flag(a, soff, sval, sc):
    l = a.newlabel("sf")
    a(f"s_cmp_lg_u32 s{S_WAVE}, 0")
    a(f"s_cbranch_scc1 {l}")
    a(f"s_lshl_b32 s{sT}, s{S_VR}, 2")
    a(f"s_add_u32 s{sT}, s{sT}, s{soff}")
    a(f"v_mov_b32 v{vT}, s{sT}")
    a(f"v_mov_b32 v{vT+1}, s{sval}")
    a("s_mov_b64 exec, 1")
    a(f"global_store_dword v{vT}, v{vT+1}, s[{S_WS}:{S_WS+1}] {sc}")
    a("s_mov_b64 exec, -1")
    a.label(l)

def ef_loop(a, sc):
    a(f"s_sub_u32 s{sSEG}, s{S_VX}, 1")
    a(f"s_mov_b32 s{sSEQ}, 0")
    lloop = a.newlabel("efloop")
    a.flush_hazards()
    a.label(lloop)
    a(f"s_lshl_b32 s{sT+4}, s{sSEG}, 5")
    a(f"s_add_u32 s{sT+4}, s{sT+4}, s{S_VR}")
    a(f"s_lshl_b32 s{sT+5}, s{sT+4}, 10")
    a(f"v_add_u32 v{vT+9}, s{sT+5}, v{vCOL}")
    a(f"global_load_dword v{vT+10}, v{vT+9}, s[{S_X}:{S_X+1}]")
    a(f"s_lshl_b32 s{sT}, s{sSEG}, 18")
    a(f"s_lshl_b32 s{sT+1}, s{S_VR}, 13")
    a(f"s_add_u32 s{sT}, s{sT}, s{sT+1}")
    a(f"s_and_b32 s{sT+2}, s{S_WAVE}, 1")
    a(f"s_lshl_b32 s{sT+2}, s{sT+2}, 12")
    a(f"s_add_u32 s{sT+2}, s{sT+2}, s{sT}")
    a(f"s_add_u32 s{sT+2}, s{sT+2}, {WS_QF}")
    sadd64(a, sQ, S_WS, f"s{sT+2}")
    a(f"s_add_u32 s{sT+2}, s{sT}, {WS_KF}")
    sadd64(a, sK, S_WS, f"s{sT+2}")
    a(f"s_lshr_b32 s{sT+2}, s{S_WAVE}, 1")
    a(f"s_lshl_b32 s{sT+2}, s{sT+2}, 12")
    a(f"s_add_u32 s{sT+2}, s{sT+2}, s{sT}")
    a(f"s_add_u32 s{sT+2}, s{sT+2}, {WS_VF}")
    sadd64(a, sV, S_WS, f"s{sT+2}")
    a(f"s_lshr_b32 s{sT+2}, s{sT}, 1")
    a(f"s_add_u32 s{sT+2}, s{sT+2}, {WS_KM}")
    sadd64(a, sKMb, S_WS, f"s{sT+2}")
    a(f"s_lshr_b32 s{sT+2}, s{sT}, 2")
    a(f"s_add_u32 s{sT+2}, s{sT+2}, {WS_VM}")
    sadd64(a, sVMb, S_WS, f"s{sT+2}")
    a(f"s_lshr_b32 s{sT+2}, s{sSEG}, 1")
    a(f"s_lshl_b32 s{sT+2}, s{sT+2}, 7")
    a(f"s_add_u32 s{sT+2}, s{sT+2}, {F_KVRDY}")
    poll_counter(a, f"s{sT+2}", KV_TARGET, vt=vT, base=S_WS)
    a(f"v_add_u32 v{vT+2}, 4096, v{vL16}")
    for ks in range(4):
        a(f"global_load_dwordx4 v[{QB+4*ks}:{QB+4*ks+3}], v{vL16}, s[{sQ}:{sQ+1}] offset:{1024*ks} sc1")
    for kt in range(2):
        for ks in range(4):
            a(f"global_load_dwordx4 v[{KFR+16*kt+4*ks}:{KFR+16*kt+4*ks+3}], v{vL16 if kt==0 else vT+2}, s[{sK}:{sK+1}] offset:{1024*ks} sc1")
    for i in range(4):
        a(f"global_load_dwordx4 v[{VFR+4*i}:{VFR+4*i+3}], v{vL16}, s[{sV}:{sV+1}] offset:{1024*i} sc1")
    SM=SS; S0=SS+4; S1=SS+8
    regs = [S0+i for i in range(4)] + [S1+i for i in range(4)] + [SM, SM+1]
    def scl(x):
        rnd_pair(a, x)
        a(f"v_mul_f32 v{x}, s{sSC}, v{x}")
        a(f"v_mul_f32 v{x+1}, s{sSC}, v{x+1}")
        rnd_pair(a, x)
    poll_flags32(a, sFRE, sSEQ)
    for kt, Sx in ((0,S0),(1,S1)):
        for ks in range(4):
            c = "0" if ks==0 else f"v[{Sx}:{Sx+3}]"
            a(f"v_mfma_f32_16x16x32_bf16 v[{Sx}:{Sx+3}], v[{KFR+16*kt+4*ks}:{KFR+16*kt+4*ks+3}], v[{QB+4*ks}:{QB+4*ks+3}], {c}")
    for x in (S0, S0+2, S1, S1+2): scl(x)
    a(f"v_mov_b32 v{vT}, {f2u(-1e9)}")
    for i in range(8):
        a(f"v_cndmask_b32 v{regs[i]}, v{regs[i]}, v{vT}, s[{sMASK+2*i}:{sMASK+2*i+1}]")
    a(f"s_lshl_b32 s{sT+2}, s{S_VR}, 7")
    a(f"s_add_u32 s{sT+2}, s{sT+2}, {F_PROG}")
    a(f"s_add_u32 s{sT+3}, s{sSEG}, 1")
    poll_counter(a, f"s{sT+2}", f"s{sT+3}", vt=vT, base=S_WS, sleep=PROG_SLEEP)
    if TS_ENABLED[0]:
        a(f"s_mul_i32 s76, s{sSEQ}, 3")
        a(f"s_add_u32 s76, s76, 16")
        TS(a, "s76")
    for ks in range(4):
        a(f"global_load_dwordx4 v[{KMR+4*ks}:{KMR+4*ks+3}], v{vL16}, s[{sKMb}:{sKMb+1}] offset:{1024*ks} sc1")
    for i in range(4):
        a(f"global_load_dword v{VMR+2*i}, v{vVMO}, s[{sVMb}:{sVMb+1}] offset:{256*i} sc1")
    for ks in range(4):
        a(f"s_waitcnt vmcnt({7-ks})")
        c = "0" if ks==0 else f"v[{SM}:{SM+3}]"
        a(f"v_mfma_f32_16x16x32_bf16 v[{SM}:{SM+3}], v[{KMR+4*ks}:{KMR+4*ks+3}], v[{QB+4*ks}:{QB+4*ks+3}], {c}")
    scl(SM)
    mx=vT; tt=vT+1; ls=vT+2
    a(f"v_max3_f32 v{mx}, v{regs[0]}, v{regs[1]}, v{regs[2]}")
    for i in (3,5,7): a(f"v_max3_f32 v{mx}, v{mx}, v{regs[i]}, v{regs[i+1]}")
    a(f"v_max_f32 v{mx}, v{mx}, v{regs[9]}")
    xl(a, mx, tt, "v_max_f32")
    for r in regs:
        a(f"v_sub_f32 v{r}, v{r}, v{mx}")
        a(f"v_mul_f32 v{r}, s{sL2E}, v{r}")
        a(f"v_exp_f32 v{r}, v{r}")
    a(f"v_add_f32 v{ls}, v{regs[0]}, v{regs[1]}")
    for r in regs[2:]: a(f"v_add_f32 v{ls}, v{ls}, v{r}")
    xl(a, ls, tt, "v_add_f32")
    a(f"v_rcp_f32 v{ls}, v{ls}")
    for r in regs: a(f"v_mul_f32 v{r}, v{r}, v{ls}")
    for i in range(5):
        a(f"v_cvt_pk_bf16_f32 v{PP+i}, v{regs[2*i]}, v{regs[2*i+1]}")
    for i in range(4):
        a(f"v_mfma_f32_16x16x32_bf16 v[{OO+4*i}:{OO+4*i+3}], v[{VFR+4*i}:{VFR+4*i+3}], v[{PP}:{PP+3}], 0")
    a("s_waitcnt vmcnt(0)")
    for i in range(4):
        a(f"v_mfma_f32_16x16x16_bf16 v[{OO+4*i}:{OO+4*i+3}], v[{VMR+2*i}:{VMR+2*i+1}], v[{PP+4}:{PP+5}], v[{OO+4*i}:{OO+4*i+3}]")
    for i in range(4):
        a(f"v_cvt_pk_bf16_f32 v{OO+4*i}, v{OO+4*i}, v{OO+4*i+1}")
        a(f"v_cvt_pk_bf16_f32 v{OO+4*i+1}, v{OO+4*i+2}, v{OO+4*i+3}")
        a(f"ds_write_b64 v{vOW}, v[{OO+4*i}:{OO+4*i+1}] offset:{32*i}")
    a("s_waitcnt lgkmcnt(0)")
    a("s_barrier")
    for qt in range(2):
        for ks in range(4):
            a(f"ds_read_b128 v[{OB+16*qt+4*ks}:{OB+16*qt+4*ks+3}], v{vOR} offset:{qt*16*ORS+64*ks}")
    a(f"v_add_u32 v{vT+2}, {16*65536}, v{vEPW}")
    a("s_waitcnt lgkmcnt(0)")
    for qt in range(2):
        for p in range(4):
            for tau in range(2):
                d = DD + (qt*8+2*p+tau)*4
                for ks in range(4):
                    c = "0" if ks==0 else f"v[{d}:{d+3}]"
                    a(f"v_mfma_f32_16x16x32_bf16 v[{d}:{d+3}], a[{WOF(2*p+tau,ks)}:{WOF(2*p+tau,ks)+3}], v[{OB+16*qt+4*ks}:{OB+16*qt+4*ks+3}], {c}")
            if p > 0 or qt > 0:
                pq, pp = (qt, p-1) if p > 0 else (qt-1, 3)
                for tau in range(2):
                    d = DD + (pq*8+2*pp+tau)*4
                    a(f"global_store_dwordx4 v{vEPW if pq==0 else vT+2}, v[{d}:{d+3}], s[{sEP}:{sEP+1}] offset:{128*pp+16*tau} {sc}")
    for tau in range(2):
        d = DD + (8+6+tau)*4
        a(f"global_store_dwordx4 v{vT+2}, v[{d}:{d+3}], s[{sEP}:{sEP+1}] offset:{128*3+16*tau} {sc}")
    a(f"s_add_u32 s{sSEQ}, s{sSEQ}, 1")
    a("s_waitcnt vmcnt(0)")
    a("s_barrier")
    set_flag(a, sFLG, sSEQ, sc)
    if TS_ENABLED[0]:
        a(f"s_add_u32 s76, s76, 1")
        TS(a, "s76")
    poll_flags32(a, sFLG, sSEQ)
    a(f"v_mov_b32 v{vT+2}, v{vEPR}")
    for i in range(16):
        a(f"global_load_dwordx4 v[{DD+4*i}:{DD+4*i+3}], v{vT+2}, s[{sEP}:{sEP+1}] sc1")
        if i < 15: a(f"v_add_u32 v{vT+2}, 4096, v{vT+2}")
    for i in range(1, 16):
        a(f"s_waitcnt vmcnt({15-i})")
        for j in (0, 2):
            a(f"v_pk_add_f32 v[{DD+j}:{DD+j+1}], v[{DD+j}:{DD+j+1}], v[{DD+4*i+j}:{DD+4*i+j+1}]")
    a("s_barrier")
    set_flag(a, sFRE, sSEQ, sc)
    X=DD+8
    a(f"v_permlane32_swap_b32 v{DD}, v{DD+2}")
    a(f"v_permlane32_swap_b32 v{DD+1}, v{DD+3}")
    a(f"v_add_f32 v{DD}, v{DD}, v{DD+2}")
    a(f"v_add_f32 v{DD+1}, v{DD+1}, v{DD+3}")
    rnd_pair(a, DD)
    a(f"v_pk_mul_f32 v[{DD}:{DD+1}], v[{DD}:{DD+1}], v[{vCON}:{vCON+1}]")
    rnd_pair(a, DD)
    a(f"v_lshlrev_b32 v{X}, 16, v{vT+10}")
    a(f"v_and_b32 v{X+1}, 0xffff0000, v{vT+10}")
    a(f"v_pk_add_f32 v[{X}:{X+1}], v[{X}:{X+1}], v[{DD}:{DD+1}]")
    a(f"v_cvt_pk_bf16_f32 v{DD+4}, v{X}, v{X+1}")
    a(f"v_add_u32 v{DD+5}, {WS_X1}, v{vT+9}")
    a(f"global_store_dword v{DD+5}, v{DD+4}, s[{S_WS}:{S_WS+1}] sc1")
    a(f"v_lshlrev_b32 v{X}, 16, v{DD+4}")
    a(f"v_and_b32 v{X+1}, 0xffff0000, v{DD+4}")
    m=DD+10; q=DD+12; t=DD+16
    a(f"v_add_f32 v{m}, v{X}, v{X+1}")
    wg_sum(a, m, t, 0)
    a(f"v_mul_f32 v{m}, {f2u(1/512)}, v{m}")
    a(f"v_sub_f32 v{q}, v{X}, v{m}")
    a(f"v_sub_f32 v{q+1}, v{X+1}, v{m}")
    a(f"v_mul_f32 v{q}, v{q}, v{q}")
    a(f"v_fmac_f32 v{q}, v{q+1}, v{q+1}")
    wg_sum(a, q, t, 1)
    a(f"v_mul_f32 v{q}, {f2u(1/512)}, v{q}")
    rnd1(a, q)
    a(f"v_add_f32 v{q}, {f2u(1e-5)}, v{q}")
    rnd1(a, q)
    a(f"v_sqrt_f32 v{q}, v{q}")
    rnd1(a, q)
    a(f"v_rcp_f32 v{q}, v{q}")
    rnd1(a, m)
    H=DD
    a(f"v_sub_f32 v{H}, v{X}, v{m}")
    a(f"v_sub_f32 v{H+1}, v{X+1}, v{m}")
    rnd_pair(a, H)
    a(f"v_mul_f32 v{H}, v{H}, v{q}")
    a(f"v_mul_f32 v{H+1}, v{H+1}, v{q}")
    rnd_pair(a, H)
    a(f"v_pk_mul_f32 v[{H}:{H+1}], v[{H}:{H+1}], v[{vCON+4}:{vCON+5}]")
    rnd_pair(a, H)
    a(f"v_pk_add_f32 v[{H}:{H+1}], v[{H}:{H+1}], v[{vCON+2}:{vCON+3}]")
    a(f"v_cvt_pk_bf16_f32 v{DD+4}, v{H}, v{H+1}")
    a(f"v_add_u32 v{DD+5}, {WS_H2}, v{vT+9}")
    a(f"global_store_dword v{DD+5}, v{DD+4}, s[{S_WS}:{S_WS+1}] sc1")
    a(f"v_lshlrev_b32 v{H}, 16, v{DD+4}")
    a(f"v_and_b32 v{H+1}, 0xffff0000, v{DD+4}")
    a(f"v_mul_f32 v{m}, v{H}, v{vCON+8}")
    a(f"v_fmac_f32 v{m}, v{H+1}, v{vCON+9}")
    a(f"v_pk_mul_f32 v[{H}:{H+1}], v[{H}:{H+1}], v[{vCON+6}:{vCON+7}]")
    rnd_pair(a, H)
    a(f"v_pk_add_f32 v[{H}:{H+1}], v[{H}:{H+1}], v[{X}:{X+1}]")
    a(f"v_cvt_pk_bf16_f32 v{DD+4}, v{H}, v{H+1}")
    a(f"global_store_dword v{vT+9}, v{DD+4}, s[{S_OUT}:{S_OUT+1}] sc1")
    wg_sum(a, m, t, 2)
    rnd1(a, m)
    a(f"v_ashrrev_i32 v{t}, 31, v{m}")
    a(f"v_or_b32 v{t}, 0x80000000, v{t}")
    a(f"v_xor_b32 v{m}, v{m}, v{t}")
    a(f"v_and_b32 v{m}, 0xffff0000, v{m}")
    a(f"s_sub_u32 s{sT+5}, 2047, s{sT+4}")
    a(f"v_or_b32 v{m}, s{sT+5}, v{m}")
    a(f"s_lshl_b32 s{sT+4}, s{sT+4}, 2")
    a(f"s_add_u32 s{sT+4}, s{sT+4}, {WS_R}")
    a(f"v_mov_b32 v{t}, s{sT+4}")
    a("s_mov_b64 exec, 1")
    a(f"global_store_dword v{t}, v{m}, s[{S_WS}:{S_WS+1}] sc1")
    a("s_mov_b64 exec, -1")
    a("s_waitcnt vmcnt(0)")
    a("s_barrier")
    signal_add(a, F_SEGDONE, vt=vT, base=S_WS)
    if TS_ENABLED[0]:
        a(f"s_add_u32 s76, s76, 1")
        TS(a, "s76")
    a(f"s_add_u32 s{sSEG}, s{sSEG}, 7")
    a(f"s_cmp_lt_u32 s{sSEG}, 64")
    a.flush_hazards()
    a(f"s_cbranch_scc1 {lloop}")
```

```python
WS_FLAGS = 0x0
F_KVRDY  = 0x0
F_HRDY   = 0x1000
F_MODRDY = 0x2000
F_PROG   = 0x3000
F_SEGDONE= 0x4000
F_EPF    = 0x5000
F_EPFREE = 0x6000
F_FFN    = 0x7000
WS_MOD   = 0x10000
WS_R     = 0xC000
WS_MB    = 0x18000
WS_ACT   = 0x20000
WS_PB    = 0x80000
WS_H     = 0x100000
WS_X1    = 0x300000
WS_H2    = 0x500000
WS_DUMP  = 0x700000
WS_KM    = 0x800000
WS_VM    = 0x1010000
WS_QF    = 0x2000000
WS_KF    = 0x3000000
WS_VF    = 0x4000000
WS_EP    = 0x5000000
WS_END   = 0x6000000
K_X,K_MEM0,K_WQ,K_WK,K_WV,K_WO,K_SEG,K_BX,K_WR,K_WG,K_WU,K_WD,K_C,K_WMOD,K_OUT,K_DBG,K_WS = [8*i for i in range(17)]
S_WS=4; S_DBG=6; S_WQ=8; S_WK=10; S_WV=12; S_WO=14; S_MEM0=16; S_X=18; S_OUT=20; S_WMOD=22; S_C=24; S_WR=26; S_WG=28; S_WU=30; S_WD=32
S_WAVE=34; S_VX=35; S_VR=36; S_MODE=37; S_WGID=38

SENT = 0x7F817F81

D_CNT0=0; D_TOTAL=8; D_MODRDY=16; D_PACK=128; D_FAIL=252
KV_TARGET=64
F_QRDY = 0x9000
S_TK=3; S_RANK=2
F_PFL = 0x8000
FIN_UNIT = 2
```

```python
import sys
from asmlib import *
from layout import *
import bulk, ef, final
import chain5 as chain
from bulk import S_XCC, sT
KNAME = "adaLN_cond__memory_aug_recurrent_mem_tr__moe_arch_mod__prompt"
def gen(force_fallback=False, dump=False):
    a = Asm()
    bulk.startup(a)
    TS(a, 0)
    a(f"s_cmp_lt_u32 s{S_TK}, 224")
    a("s_cbranch_scc1 L_bulk")
    a(f"s_cmp_eq_u32 s{S_TK}, 0xffff")
    a("s_cbranch_scc1 L_chain")
    bulk.decide(a, force_fallback)
    a(f"s_add_u32 s{S_VR}, s{sT+8}, s{S_TK}")
    a(f"s_sub_u32 s{S_VR}, s{S_VR}, 224")
    a(f"s_mov_b32 s{S_VX}, 0")
    a.label("L_chain")
    a.flush_hazards()
    chain.lane_consts(a)
    chain.setup_weights(a)
    bulk.decide(a, force_fallback)
    TS(a, 1, vt=0)
    a(f"s_cmp_eq_u32 s{S_MODE}, 0")
    a("s_cbranch_scc1 L_chain0")
    chain.chain_main(a, "sc1", dump=dump)
    a("s_endpgm")
    a.label("L_chain0")
    a.flush_hazards()
    chain.chain_main(a, "", dump=dump)
    TS(a, 2, vt=0)
    if TS_ENABLED[0]:
        a(f"s_sub_u32 s70, s{chain.sT0+2}, s{chain.sT0}")
        a("v_mov_b32 v1, 0")
        a("v_mov_b32 v2, s70")
        a(f"global_store_dword v1, v2, s[{S_DBG}:{S_DBG+1}] offset:64")
    a("s_endpgm")
    a.label("L_bulk")
    a.flush_hazards()
    sB = 50
    a(f"s_sub_u32 s{sB}, s{S_TK}, 32")
    TS(a, 1)
    a(f"s_cmp_lt_u32 s{S_TK}, 32")
    a("s_cbranch_scc1 L_front")
    a(f"s_cmp_ge_u32 s{sB}, 128")
    a("s_cbranch_scc1 L_gonly")
    bulk.ln1_pre(a, sB)
    n = bulk.gemm_pre(a, sB)
    bulk.ln1_stage(a, sB, n)
    a("s_branch L_gemm")
    a.label("L_gonly")
    a.flush_hazards()
    bulk.gemm_pre(a, sB)
    a.label("L_gemm")
    a.flush_hazards()
    TS(a, 2)
    bulk.gemm_stage(a)
    TS(a, 4)
    a("s_branch L_ef")
    a.label("L_front")
    a.flush_hazards()
    bulk.mod_stage(a)
    TS(a, 8)
    a.label("L_ef")
    a.flush_hazards()
    bulk.decide(a, force_fallback)
    a(f"s_cmp_eq_u32 s{S_MODE}, 0")
    a("s_cbranch_scc1 L_efn")
    a(f"s_lshr_b32 s{S_VX}, s{S_TK}, 5")
    a(f"s_add_u32 s{S_VX}, s{S_VX}, 1")
    a(f"s_and_b32 s{S_VR}, s{S_TK}, 31")
    a.label("L_efn")
    a(f"s_cmp_lg_u32 s{S_VX}, 7")
    a("s_cbranch_scc1 L_efs")
    final.ffn_preload(a)
    a.label("L_efs")
    a.flush_hazards()
    ef.ef_setup(a)
    TS(a, 5)
    a(f"s_cmp_lg_u32 s{S_MODE}, 0")
    a("s_cbranch_scc1 L_ef1")
    for sc, lab in (("", None), ("sc1", "L_ef1")):
        if lab: a.label(lab); a.flush_hazards()
        ef.ef_loop(a, sc)
        a(f"s_cmp_lg_u32 s{S_VX}, 7")
        a("s_cbranch_scc1 L_exit")
        TS(a, 6)
        final.final_stage(a, sc)
        TS(a, 7)
        a("s_endpgm")
    a.label("L_fail")
    a("s_mov_b64 exec, -1")
    a("v_mov_b32 v1, 0")
    a("v_mov_b32 v2, 0xdead")
    a(f"global_store_dword v1, v2, s[{S_DBG}:{S_DBG+1}] offset:252")
    a.label("L_exit")
    a("s_endpgm")
    return a
def write(path, a):
    hdr = open(f"cdna_kernels/{KNAME}.s.ref").read().split("; Override launch geometry")[0]
    txt = hdr + f"""; @launch grid=(256,1,1) block=(256,1,1) lds=163840
.amdgcn_target "amdgcn-amd-amdhsa--gfx950"
.text
.globl {KNAME}_kernel
.p2align 8
.type {KNAME}_kernel,@function
{KNAME}_kernel:
{a.text()}
.section .rodata,"a"
.p2align 6
.amdhsa_kernel {KNAME}_kernel
  .amdhsa_next_free_vgpr 512
  .amdhsa_next_free_sgpr 102
  .amdhsa_accum_offset 256
  .amdhsa_group_segment_fixed_size 0
  .amdhsa_kernarg_size 136
  .amdhsa_user_sgpr_count 2
  .amdhsa_user_sgpr_kernarg_segment_ptr 1
  .amdhsa_system_sgpr_workgroup_id_x 1
.end_amdhsa_kernel
"""
    open(path, "w").write(txt)
if __name__ == "__main__":
    fb = "fb" in sys.argv; dump = "dump" in sys.argv
    TS_ENABLED[0] = "ts" in sys.argv
    a = gen(fb, dump)
    print("instrs", a.ninstr, "nops", a.nops_inserted)
    out = [x for x in sys.argv[1:] if x.endswith(".s")]
    write(out[0] if out else f"cdna_kernels/{KNAME}.s", a)
```

```python
from asmlib import *
from layout import *

L_WV   = 0
L_X    = 131072
L_KT   = L_X
L_VT   = L_X + 8192
L_MS   = L_X + 16384
L_Q    = L_X + 24576
RS = 288
L_K    = L_Q + 2304
L_O    = L_K + 2304
L_VX   = L_Q
L_DUM  = L_O + 2304
L_END  = L_DUM + 256
assert L_END <= 163840

M = lambda kb: 4*kb
QA=32; KA=40; VA=48; WVS=56; QB=72; AF=88
vIDX=104; vL16=105; vMEMOFF=106; vPST=107; vPUB=108; vQKW=109; vQR=110; vKR=111; vOW=112; vOR=113; vWV=114
vKT=116; vMSW=117; vPRD=118; vVOFF=119; vFLG=120; vVXW=121
vSELX=vFLG
T=122
vTR=254
WO = lambda i,kb2: 128 + (i*2+kb2)*8
WQ = lambda t,kb: (t*8+kb)*8
WK = lambda t,kb: 128 + (t*8+kb)*8
sHALF=40; sPUBM=42; sPB=44
sSEL=52
sHALF2=92
sMB=60
sSTEP=68; sSPIN=69
sT=70
sKF=80; sVF=82; sKM=84; sVM=86; sC1=88
sDUMP=90; sPBr=48; sT0=94; sKMM=98; sPRG=100; sFOFF=101
C1 = 0.08838834764831845 * 1.4426950408889634

def lane_consts(a):
    l=T; g=T+1; c=T+2; t0=T+3; t1=T+4; t2=T+5
    a(f"v_mbcnt_lo_u32_b32 v{l}, -1, 0")
    a(f"v_mbcnt_hi_u32_b32 v{l}, -1, v{l}")
    a(f"v_lshrrev_b32 v{g}, 4, v{l}")
    a(f"v_and_b32 v{c}, 15, v{l}")
    a(f"v_lshlrev_b32 v{vL16}, 4, v{l}")
    a(f"v_add_u32 v{vKT}, {L_KT}, v{vL16}")
    a(f"s_lshl_b32 s{sT}, s{S_WAVE}, 10")
    a(f"s_add_u32 s{sT}, s{sT}, {L_MS}")
    a(f"v_add_u32 v{vMSW}, s{sT}, v{vL16}")
    a(f"s_lshl_b32 s{sT}, s{S_WAVE}, 11")
    a(f"s_add_u32 s{sT}, s{sT}, {L_VT}")
    a(f"v_add_u32 v{vVOFF}, s{sT}, v{vL16}")
    a(f"s_lshl_b32 s{sT}, s{S_WAVE}, 12")
    a(f"v_add_u32 v{vWV}, s{sT}, v{vL16}")
    a(f"v_add_u32 v{vWV+1}, 0x10000, v{vWV}")
    a(f"s_lshl_b32 s{sT}, s{S_WAVE}, 9")
    a(f"v_lshl_add_u32 v{vVXW}, v{l}, 2, s{sT}")
    a(f"s_mov_b32 s{sHALF}, 0xAAAAAAAA")
    a(f"s_mov_b32 s{sHALF+1}, 0xAAAAAAAA")
    a(f"v_mov_b32 v{t0}, 0x4444")
    a(f"v_mov_b32 v{t1}, 0xEEEE")
    a(f"s_mov_b32 s{sHALF2}, 0xCCCCCCCC")
    a(f"s_mov_b32 s{sHALF2+1}, 0xCCCCCCCC")
    a(f"v_cndmask_b32 v{vIDX}, v{t0}, v{t1}, s[{sHALF2}:{sHALF2+1}]")
    a(f"v_lshrrev_b32 v30, 2, v{c}")
    a(f"v_and_b32 v31, 1, v{c}")
    a(f"v_lshl_add_u32 v30, v30, 1, v31")
    a(f"v_bfe_u32 v31, v{c}, 1, 1")
    a(f"v_lshlrev_b32 v{t0}, 11, v{g}")
    a(f"v_lshl_add_u32 v{t0}, v30, 5, v{t0}")
    a(f"v_lshl_add_u32 v{t0}, v31, 4, v{t0}")
    a(f"s_lshl_b32 s{sT}, s{S_WAVE}, 8")
    a(f"v_add_u32 v{vMEMOFF}, s{sT}, v{t0}")
    a(f"s_lshl_b32 s{sT}, s{S_VR}, 10")
    a(f"s_lshl_b32 s{sT+1}, s{S_WAVE}, 16")
    a(f"s_add_u32 s{sT}, s{sT}, s{sT+1}")
    a(f"v_add_u32 v{vPST}, s{sT}, v{vL16}")
    a(f"s_lshr_b32 s{sT}, s{S_VR}, 2")
    a(f"s_lshl_b32 s{sT}, s{sT}, 15")
    a(f"s_and_b32 s{sT+1}, s{S_VR}, 3")
    a(f"s_lshl_b32 s{sT+2}, s{sT+1}, 8")
    a(f"s_add_u32 s{sT}, s{sT}, s{sT+2}")
    a(f"v_lshlrev_b32 v{t0}, 10, v{g}")
    a(f"v_lshl_add_u32 v{t0}, v{c}, 4, v{t0}")
    a(f"v_add_u32 v{vPRD}, s{sT}, v{t0}")
    a(f"v_lshrrev_b32 v{t0}, 1, v{c}")
    a(f"v_lshlrev_b32 v{t0}, 8, v{t0}")
    a(f"v_and_b32 v{t1}, 1, v{c}")
    a(f"v_lshl_add_u32 v{t0}, v{t1}, 5, v{t0}")
    a(f"v_lshl_add_u32 v{t0}, v{g}, 3, v{t0}")
    a(f"s_lshr_b32 s{sT}, s{S_VR}, 2")
    a(f"s_lshl_b32 s{sT}, s{sT}, 10")
    a(f"s_lshl_b32 s{sT+1}, s{sT+1}, 6")
    a(f"s_add_u32 s{sT}, s{sT}, s{sT+1}")
    a(f"v_add_u32 v{vPUB}, s{sT}, v{t0}")
    a(f"s_mov_b32 s{sPUBM}, 0x00FF00FF")
    a(f"s_mov_b32 s{sPUBM+1}, 0x00FF00FF")
    a(f"v_lshlrev_b32 v{t1}, 4, v{t1}")
    a(f"v_mov_b32 v{t0}, 0x3F80")
    a(f"v_lshlrev_b32 v{vSELX}, v{t1}, v{t0}")
    for d in range(4):
        m = 0x3 << (2*d); m = m | (m << 16)
        a(f"s_mov_b32 s{sSEL+2*d}, {m}")
        a(f"s_mov_b32 s{sSEL+2*d+1}, {m}")
    a(f"s_mov_b32 s{sKMM}, 0x33333333")
    a(f"s_mov_b32 s{sKMM+1}, 0x33333333")
    a(f"v_mul_u32_u24 v{t0}, {2*RS}, v{g}")
    a(f"v_lshl_add_u32 v{t0}, v{c}, 2, v{t0}")
    a(f"s_lshl_b32 s{sT}, s{S_WAVE}, 6")
    a(f"s_add_u32 s{sT}, s{sT}, {L_Q}")
    a(f"v_add_u32 v{vQKW}, s{sT}, v{t0}")
    a(f"v_lshrrev_b32 v{t0}, 1, v{c}")
    a(f"v_mul_u32_u24 v{t0}, {RS}, v{t0}")
    a(f"v_lshl_add_u32 v{t1}, v{g}, 4, v{t0}")
    a(f"v_add_u32 v{vQR}, {L_Q}, v{t1}")
    a(f"v_and_b32 v{t2}, 1, v{c}")
    a(f"v_lshl_add_u32 v{t1}, v{t2}, 5, v{t0}")
    a(f"v_lshl_add_u32 v{t1}, v{g}, 3, v{t1}")
    a(f"s_lshl_b32 s{sT}, s{S_WAVE}, 6")
    a(f"s_add_u32 s{sT}, s{sT}, {L_O}")
    a(f"v_add_u32 v{vOW}, s{sT}, v{t1}")
    a(f"v_mul_u32_u24 v{t1}, {RS}, v30")
    a(f"v_lshl_add_u32 v{t1}, v{g}, 5, v{t1}")
    a(f"v_lshl_add_u32 v{t1}, v31, 4, v{t1}")
    a(f"v_add_u32 v{vOR}, {L_O}, v{t1}")
    a(f"v_lshrrev_b32 v{t0}, 2, v{c}")
    a(f"v_lshl_add_u32 v{t0}, v{t0}, 1, v{t2}")
    a(f"v_mul_u32_u24 v{t0}, {RS}, v{t0}")
    a(f"v_lshl_add_u32 v{t0}, v{g}, 4, v{t0}")
    a(f"v_add_u32 v{vKR}, {L_K}, v{t0}")
    r=20; ph=21
    a(f"v_lshrrev_b32 v{r}, 2, v{c}")
    a(f"v_and_b32 v{t1}, 1, v{r}")
    a(f"v_lshrrev_b32 v{t2}, 1, v{r}")
    a(f"v_lshl_add_u32 v{r}, v{t2}, 3, v{t1}")
    a(f"v_lshl_add_u32 v{ph}, v{t2}, 2, v{t1}")
    a(f"v_and_b32 v{t2}, 1, v{g}")
    a(f"v_lshl_add_u32 v{ph}, v{t2}, 1, v{ph}")
    a(f"v_lshl_add_u32 v{r}, v{t2}, 2, v{r}")
    a(f"v_lshrrev_b32 v{t2}, 1, v{g}")
    a(f"v_lshl_add_u32 v{r}, v{t2}, 4, v{r}")
    a(f"v_lshlrev_b32 v{r}, 8, v{r}")
    a(f"v_and_b32 v{t2}, 3, v{c}")
    a(f"v_lshl_add_u32 v{r}, v{t2}, 3, v{r}")
    for t in range(2):
        a(f"s_lshl_b32 s{sT}, s{S_WAVE}, 1")
        a(f"s_add_u32 s{sT}, s{sT}, {t}")
        a(f"v_xor_b32 v{t2}, s{sT}, v{ph}")
        a(f"v_lshl_add_u32 v{22+3*t}, v{t2}, 5, v{r}")
        a(f"v_add_u32 v{23+3*t}, 0x10000, v{22+3*t}")
        a(f"v_add_u32 v{24+3*t}, 0x20000, v{22+3*t}")

def tr_off(slot, m):
    return (slot & 3)*16384 + (m >> 1)*8192 + (m & 1)*512

def setup_weights(a):
    l=T
    a(f"v_lshrrev_b32 v8, 4, v{l}")
    a(f"v_bfe_u32 v9, v{l}, 1, 3")
    a(f"v_and_b32 v10, 1, v8")
    a(f"v_xor_b32 v9, v9, v10")
    a(f"v_and_b32 v10, 1, v{l}")
    a(f"v_lshlrev_b32 v10, 4, v10")
    for aa in range(4):
        a(f"v_xor_b32 v11, {aa<<1}, v9")
        a(f"v_lshl_add_u32 v11, v11, 5, v10")
        a(f"v_add_u32 v12, {4*aa}, v8")
        a(f"v_lshl_add_u32 v{aa}, v12, 13, v11")
        a(f"v_lshl_add_u32 v{4+aa}, v12, 10, v11")
    a(f"s_lshl_b32 s{sT}, s{S_VR}, 8")
    a(f"s_lshl_b32 s{sT+1}, s{S_WAVE}, 20")
    a(f"s_add_u32 s{sT}, s{sT}, s{sT+1}")
    a(f"s_lshl_b32 s{sT+1}, s{S_VR}, 17")
    a(f"s_lshl_b32 s{sT+2}, s{S_WAVE}, 14")
    a(f"s_add_u32 s{sT+1}, s{sT+1}, s{sT+2}")
    a(f"s_lshl_b32 s{sT+2}, s{S_WAVE}, 12")
    def issue(grp):
        mat = grp >> 1; half = grp & 1
        for ch in range(4):
            slot = half*4 + ch
            if mat == 3: slot += 1
            if mat == 2:
                a(f"s_add_u32 s{sT+3}, s{sT+1}, {half*65536 + ch*256}")
                base = S_WO; vo = 4
            else:
                kb = half*4 + ch
                a(f"s_add_u32 s{sT+3}, s{sT}, {kb*131072}")
                base = (S_WQ, S_WK, None, S_WV)[mat]; vo = 0
            a(f"s_add_u32 s{sT+4}, s{base}, s{sT+3}")
            a(f"s_addc_u32 s{sT+5}, s{base+1}, 0")
            for aa in range(4):
                a(f"s_add_u32 m0, s{sT+2}, {slot*16384 + aa*1024}")
                a(f"global_load_lds_dwordx4 v{vo+aa}, s[{sT+4}:{sT+5}]")
    issue(0); issue(1)
    for grp in range(6):
        a(f"s_waitcnt vmcnt(16)")
        a("s_barrier")
        mat = grp >> 1; half = grp & 1
        if mat < 2:
            for ch in range(4):
                kb = half*4 + ch
                for t in range(2):
                    dst = (WQ if mat == 0 else WK)(t, kb)
                    for m in range(4):
                        a(f"ds_read_b64_tr_b16 a[{dst+2*m}:{dst+2*m+1}], v{22+3*t+half} offset:{tr_off(kb,m)}")
        else:
            a(f"s_lshl_b32 s{sT+3}, s{S_WAVE}, 14")
            a(f"s_add_u32 s{sT+3}, s{sT+3}, {half*65536}")
            for u in range(8):
                a(f"v_xor_b32 v8, {u}, v21")
                a(f"v_lshl_add_u32 v8, v8, 5, v20")
                a(f"v_add_u32 v8, s{sT+3}, v8")
                dst = WO(u, half)
                for m in range(4):
                    a(f"ds_read_b64_tr_b16 v[{dst+2*m}:{dst+2*m+1}], v8 offset:{tr_off(0,m)}")
        a("s_waitcnt lgkmcnt(0)")
        a("s_barrier")
        if grp < 4: issue(grp + 2)
        elif grp == 4:
            pass
        elif grp == 5:
            issue(6); issue(7)
        if grp == 4:
            a("s_waitcnt vmcnt(0)")
    for kb in range(8):
        a(f"s_waitcnt vmcnt({4*(7-kb)})")
        a("s_barrier")
        slot = kb + 1
        for t in range(2):
            for m in range(4):
                a(f"ds_read_b64_tr_b16 v[{32+8*t+2*m}:{33+8*t+2*m}], v{22+3*t+(slot>>2)} offset:{tr_off(slot,m)}")
        a("s_waitcnt lgkmcnt(0)")
        for t in range(2):
            for hf in range(2):
                a(f"ds_write_b128 v{vWV+(kb>>2)}, v[{32+8*t+4*hf}:{35+8*t+4*hf}] offset:{(kb&3)*16384+t*2048+hf*1024}")
        a("s_waitcnt lgkmcnt(0)")
    a("s_barrier")

TRACE=[False]
WI=set()
def trace(a, slot):
    if not TRACE[0]: return
    a(f"s_memrealtime s[{18+2*slot}:{19+2*slot}]")
def trace_flush(a):
    if not TRACE[0]: return
    a(f"s_lshl_b32 s3, s{sSTEP}, 12")
    a(f"s_lshl_b32 s2, s{S_VR}, 7")
    a("s_add_u32 s3, s3, s2")
    a(f"s_lshl_b32 s2, s{S_WAVE}, 5")
    a("s_add_u32 s3, s3, s2")
    a(f"s_add_u32 s3, s3, {WS_X1}")
    a(f"v_lshrrev_b32 v{T}, 2, v{vL16}")
    a(f"v_add_u32 v{T}, s3, v{T}")
    a("s_waitcnt lgkmcnt(0)")
    for sl in range(8):
        a(f"v_writelane_b32 v{T+1}, s{18+2*sl}, {sl}")
    a("s_mov_b64 exec, 0xff")
    a(f"global_store_dword v{T}, v{T+1}, s[{S_WS}:{S_WS+1}]")
    a("s_mov_b64 exec, -1")
class Prof:
    def __init__(self, a, enabled):
        self.a=a; self.en=enabled; self.names=[]
    def stamp(self, name):
        if not self.en: return
        a=self.a
        a("s_memtime s[96:97]")
        a("s_waitcnt lgkmcnt(0)")
        if name in self.names: idx=self.names.index(name)
        else: self.names.append(name); idx=len(self.names)-1
        acc = 18+idx
        assert acc <= 33
        a(f"s_sub_u32 s3, s96, s2")
        a(f"s_add_u32 s{acc}, s{acc}, s3")
        a("s_mov_b32 s2, s96")

def xl(a, x, t, op):
    a(f"v_mov_b32 v{t}, v{x}")
    a(f"v_permlane32_swap_b32 v{t}, v{x}")
    a(f"{op} v{x}, v{t}, v{x}")
    a(f"v_mov_b32 v{t}, v{x}")
    a(f"v_permlane16_swap_b32 v{t}, v{x}")
    a(f"{op} v{x}, v{t}, v{x}")

import os
SPEC_T=int(os.environ.get('SPEC_T','1'))
R0=56; R1=72; R2=88
sFLW=8; sFLR=10; sV0=12
def chain_main(a, sc, dump=False, prof=False, kvflags=True, guard=True):
    P = Prof(a, prof)
    KVSC = 'nt' if 'nont' in WI else ''
    C = Cnt(a)
    a(f"s_mov_b32 s{sC1}, {f2u(C1)}")
    a(f"s_mov_b32 s{sC1+1}, {f2u(C1)}")
    for i in range(2):
        sadd64(a, sPB+2*i, S_WS, WS_PB + i*262144)
        sadd64(a, sPBr+2*i, S_WS, WS_PB + i*262144 + 4096)
    a(f"s_lshl_b32 s{sT}, s{S_VR}, 13")
    a(f"s_mov_b32 s{sT+1}, {WS_KF}")
    a(f"s_mov_b32 s{sVF}, {L_KT}")
    a(f"s_cmp_eq_u32 s{S_WAVE}, 3")
    a(f"s_cselect_b32 s{sT+1}, {WS_VF}, s{sT+1}")
    a(f"s_cselect_b32 s{sVF}, {L_VT}, s{sVF}")
    a(f"s_add_u32 s{sT+1}, s{sT+1}, s{sT}")
    sadd64(a, sKF, S_WS, f"s{sT+1}")
    sadd64(a, sV0, sKF, WS_VF - WS_KF)
    a(f"s_lshl_b32 s{sT}, s{S_VR}, 12")
    a(f"s_add_u32 s{sT+1}, s{sT}, {WS_KM - 131072}")
    sadd64(a, sKM, S_WS, f"s{sT+1}")
    a(f"s_lshl_b32 s{sT}, s{S_VR}, 11")
    a(f"s_add_u32 s{sT+1}, s{sT}, {WS_VM - 65536}")
    sadd64(a, sVM, S_WS, f"s{sT+1}")
    a(f"s_lshl_b32 s{sPRG}, s{S_VR}, 7")
    a(f"s_add_u32 s{sPRG}, s{sPRG}, {F_PROG}")
    a(f"v_mov_b32 v{vWV}, v{vL16}")
    a(f"v_add_u32 v{vWV+1}, 0x10000, v{vL16}")
    a(f"v_lshrrev_b32 v{vVXW}, 2, v{vL16}")
    a(f"v_bfe_u32 v{T}, v{vL16}, 5, 3")
    a(f"v_mul_u32_u24 v{T}, {RS}, v{T}")
    a(f"v_lshrrev_b32 v{T+1}, 8, v{vL16}")
    a(f"v_lshl_add_u32 v{T}, v{T+1}, 3, v{T}")
    a(f"v_add_u32 v{vOW}, {L_O}, v{T}")
    lnp = a.newlabel("c_np")
    a(f"s_cmp_lg_u32 s{S_WAVE}, 1")
    a(f"s_cbranch_scc1 {lnp}")
    a(f"v_mul_u32_u24 v{T}, {RS}, v{T+1}")
    a(f"v_and_b32 v{T+1}, 0xff, v{vL16}")
    a(f"v_add3_u32 v{vFLG}, v{T}, v{T+1}, v{vFLG}" if False else f"v_add_u32 v{T}, v{T}, v{T+1}")
    a(f"v_add_u32 v{vFLG}, {L_K}, v{T}")
    a.label(lnp)
    if dump: sadd64(a, sDUMP, S_WS, WS_DUMP)
    a(f"s_lshl_b32 s{sT}, s{S_WAVE}, 8")
    a(f"s_lshl_b32 s{sT+1}, s{S_VR}, 2")
    a(f"s_add_u32 s{sT}, s{sT}, s{sT+1}")
    a(f"s_add_u32 s{sT}, s{sT}, {F_PFL}")
    sadd64(a, sFLW, S_WS, f"s{sT}")
    a(f"s_lshr_b32 s{sT}, s{S_VR}, 2")
    a(f"s_lshl_b32 s{sT}, s{sT}, 7")
    a(f"s_add_u32 s{sT}, s{sT}, {F_PFL}")
    sadd64(a, sFLR, S_WS, f"s{sT}")
    for i in range(4): sadd64(a, sMB+2*i, S_WS, WS_MB + 8192*i)
    a(f"s_mov_b32 s{sSPIN}, 0")
    a(f"s_mov_b32 s{sSTEP}, 0")
    if prof:
        for r in range(18, 34): a(f"s_mov_b32 s{r}, 0")
    lw = [a.newlabel(f"c_w{i}") for i in range(4)]; lend = a.newlabel("c_end")
    for i in range(1, 4):
        a(f"s_cmp_eq_u32 s{S_WAVE}, {i}")
        a(f"s_cbranch_scc1 {lw[i]}")
    tails = []; slow = []; fbk = []; redo = []; ptail = []
    def retry_stub(lback):
        l = a.newlabel("c_retry"); tails.append((l, lback)); return l
    I = lambda txt: (lambda: a(txt))
    for w in range(4):
        role = ("R", "PUB", "DMA", "DMA")[w]
        if w: a.label(lw[w]); a.hist=[]
        KB = [w, w+4] + [k for k in range(8) if k not in (w, w+4)]
        VB = KB
        TL = [[], [0,1,2], [3,4,5], [6,7]][w]
        vops = [(kb, ti) for kb in KB for ti in range(len(TL))]
        NS = 5; SLOT = [R0, R0+8, R1, R1+8, R2]
        VACC = [VA, VA+4, R2+12]; VFR = [QA, QA+4, R2+8]; VH = [vQR, vKR, vVOFF]
        def wvr(n):
            kb, ti = vops[n]; sl_ = SLOT[n % NS]
            for hf in range(2):
                C.lds(f"ds_read_b128 v[{sl_+4*hf}:{sl_+4*hf+3}], v{vWV+(kb>>2)} offset:{(kb&3)*16384+TL[ti]*2048+hf*1024}", ("wv", n))
        def wait_flag_spin(off_sgpr):
            l = a.newlabel("c_fl")
            a(f"v_mov_b32 v{T}, s{off_sgpr}")
            a.label(l)
            a(f"global_load_dword v{vFLG}, v{T}, s[{S_WS}:{S_WS+1}] sc1")
            a(f"s_add_u32 s{sSPIN}, s{sSPIN}, 1")
            a(f"s_cmp_gt_u32 s{sSPIN}, 0x80000")
            a("s_cbranch_scc1 L_fail")
            a("s_waitcnt vmcnt(0)")
            a(f"v_cmp_gt_u32 vcc, {KV_TARGET}, v{vFLG}")
            a(f"s_cbranch_vccnz {l}")
        def wv_read(kb, t, slot, hf):
            C.lds(f"ds_read_b128 v[{slot+4*hf}:{slot+4*hf+3}], v{vWV+(kb>>2)} offset:{(kb&3)*16384+t*2048+hf*1024}", ("wv",kb,t))
        def wv4(kb, R): return [(lambda t=t, hf=hf: wv_read(kb, t, R+8*t, hf)) for t in range(2) for hf in range(2)]
        def vmf(kb, t, R):
            C.wait_l(("wv",kb,t))
            a(f"v_smfmac_f32_16x16x64_bf16 v[{VA+4*t}:{VA+4*t+3}], v[{M(kb)}:{M(kb)+3}], v[{R+8*t}:{R+8*t+7}], v{vIDX}")
        def qmf(kb, t):
            C.wait_l(("m",kb))
            a(f"v_smfmac_f32_16x16x64_bf16 v[{QA+4*t}:{QA+4*t+3}], v[{M(kb)}:{M(kb)+3}], a[{WQ(t,kb)}:{WQ(t,kb)+7}], v{vIDX}")
        def kmf(kb, t): a(f"v_smfmac_f32_16x16x64_bf16 v[{KA+4*t}:{KA+4*t+3}], v[{M(kb)}:{M(kb)+3}], a[{WK(t,kb)}:{WK(t,kb)+7}], v{vIDX}")
        def weave(mf, fill, per=1, drain=True):
            for m in mf:
                m()
                for _ in range(per):
                    if fill: fill.pop(0)()
            if drain:
                while fill: fill.pop(0)()
        if role == "R":
            a(f"v_bfe_u32 v{T}, v{vPUB}, 5, 3")
            a(f"v_lshrrev_b32 v{T+1}, 8, v{vPUB}")
            a(f"v_lshlrev_b32 v{T}, 10, v{T}")
            a(f"v_lshl_add_u32 v{T}, v{T+1}, 5, v{T}")
            a(f"v_and_b32 v{T+1}, 31, v{vPUB}")
            a(f"v_add_u32 v{T}, v{T}, v{T+1}")
            a(f"s_mov_b64 exec, s[{sPUBM}:{sPUBM+1}]")
            a(f"global_load_dwordx2 v[{T+2}:{T+3}], v{T}, s[{S_MEM0}:{S_MEM0+1}]")
            a("s_waitcnt vmcnt(0)")
            a(f"v_min_u32 v{T+2}, -2, v{T+2}")
            a(f"v_min_u32 v{T+3}, -2, v{T+3}")
            a(f"global_store_dwordx2 v{vPUB}, v[{T+2}:{T+3}], s[{sMB}:{sMB+1}] {sc}")
            if dump: a(f"global_store_dwordx2 v{vPUB}, v[{T+2}:{T+3}], s[{sDUMP}:{sDUMP+1}]")
            a("s_mov_b64 exec, -1")
        elif role == "DMA":
            a(f"s_mov_b32 s{sFOFF}, {F_KVRDY}")
            if kvflags: wait_flag_spin(sFOFF)
            a(f"s_mov_b32 m0, {L_DUM}")
            a(f"v_lshlrev_b32 v{T}, 3, v{vL16}")
            a(f"global_load_lds_dword v{T}, s[{sKF}:{sKF+1}] sc1")
            a(f"v_add_u32 v{T}, 0x40000, v{T}")
            a(f"global_load_lds_dword v{T}, s[{sKF}:{sKF+1}] sc1")
            a(f"v_lshlrev_b32 v{T+5}, 3, v{vL16}")
            a(f"s_mov_b32 s{sFOFF}, {F_KVRDY+128}")
            if kvflags: wait_flag_spin(sFOFF)
            a(f"s_mov_b32 s{sFOFF}, {F_KVRDY+256}")
        for r in range(QA, QA+24, 2): a(f"v_mov_b64 v[{r}:{r+1}], 0")
        if w:
            for n in range(NS): wvr(n)
            a(f"v_mov_b64 v[{R2+12}:{R2+13}], 0"); a(f"v_mov_b64 v[{R2+14}:{R2+15}], 0")
        a(f"s_memtime s[{sT0}:{sT0+1}]")
        a("s_waitcnt lgkmcnt(0)")
        if prof: a(f"s_mov_b32 s2, s{sT0}")
        lloop = a.newlabel("c_loop"); lchk0 = a.newlabel("c_chk0")
        A_=M(KB[0]); B_=M(KB[1])
        def mloads(A_=A_, B_=B_):
            a(f"global_load_dwordx4 v[{A_}:{A_+3}], v{vMEMOFF}, s[{sMB}:{sMB+1}] sc1")
            a(f"global_load_dwordx4 v[{B_}:{B_+3}], v{vMEMOFF}, s[{sMB}:{sMB+1}] offset:1024 sc1")
        def dmal():
            lb = L_VT if w == 3 else L_KT
            l = [I(f"s_mov_b32 m0, {lb}")]
            l += [I(f"global_load_lds_dwordx4 v{vL16}, s[{sKF}:{sKF+1}] offset:{i*1024} {KVSC}") for i in range(4)]
            l += [I(f"v_add_u32 v{T}, 4096, v{vL16}"), I(f"s_mov_b32 m0, {lb+4096}")]
            l += [I(f"global_load_lds_dwordx4 v{T}, s[{sKF}:{sKF+1}] offset:{i*1024} {KVSC}") for i in range(4)]
            return l
        if role == "DMA":
            for f in dmal(): f()
            sadd64(a, sKF, sKF, 262144)
        def rotate():
            a(f"s_mov_b64 s[{sT}:{sT+1}], s[{sMB}:{sMB+1}]")
            a(f"s_mov_b64 s[{sMB}:{sMB+1}], s[{sMB+2}:{sMB+3}]")
            a(f"s_mov_b64 s[{sMB+2}:{sMB+3}], s[{sMB+4}:{sMB+5}]")
            a(f"s_mov_b64 s[{sMB+4}:{sMB+5}], s[{sMB+6}:{sMB+7}]")
            a(f"s_mov_b64 s[{sMB+6}:{sMB+7}], s[{sT}:{sT+1}]")
        mloads()
        a.flush_hazards()
        a.label(lloop)
        for par in range(2):
            C.l=[]; C.v=[]
            lp = a.newlabel("c_pollm")
            if par == 0:
                a(f"s_branch {lchk0}")
                a.label(lp)
                mloads()
                a.label(lchk0)
            else:
                lc1 = a.newlabel("c_chk1")
                ptail.append((lp, lc1, mloads))
                a.label(lc1)
            a("s_waitcnt vmcnt(1)")
            a(f"v_max3_u32 v{T}, v{A_}, v{A_+1}, v{A_+2}")
            a("s_waitcnt vmcnt(0)")
            a(f"v_max3_u32 v{T+1}, v{A_+3}, v{B_}, v{B_+1}")
            a(f"v_max3_u32 v{T}, v{T}, v{B_+2}, v{B_+3}")
            a(f"v_max_u32 v{T}, v{T}, v{T+1}")
            a(f"v_cmp_eq_u32 vcc, -1, v{T}")
            a(f"ds_write_b128 v{vMSW}, v[{A_}:{A_+3}]")
            a(f"ds_write_b128 v{vMSW}, v[{B_}:{B_+3}] offset:4096")
            a(f"s_cbranch_vccnz {retry_stub(lp)}")
            trace(a, 0); P.stamp("pollm")
            if role == "PUB" and 'nokpub' not in WI:
                a(f"global_store_dwordx4 v{vL16}, v[{M(KB[2])}:{M(KB[2])+3}], s[{sKM}:{sKM+1}] sc1")
                a(f"global_store_dwordx4 v{vL16}, v[{M(KB[3])}:{M(KB[3])+3}], s[{sKM}:{sKM+1}] offset:1024 sc1")
            rf = []
            if role == "DMA":
                if 'nopf' not in WI: rf += [I(f"s_mov_b32 m0, {L_DUM}"), I(f"global_load_lds_dword v{T+5}, s[{sKF}:{sKF+1}]")]
                if par == 0 and kvflags:
                    rf += [I(f"v_mov_b32 v{T}, s{sFOFF}"), I(f"global_load_dword v{vFLG}, v{T}, s[{S_WS}:{S_WS+1}] sc1")]
            elif role == "PUB":
                slr = sPB + 2*(par^1); slr2 = sPBr + 2*(par^1)
                rf += [I(f"s_sub_u32 s{sT}, s{sSTEP}, 1"), I(f"s_max_i32 s{sT}, s{sT}, 0"), I(f"v_mov_b32 v{T}, s{sPRG}"), I(f"v_mov_b32 v{T+1}, s{sT}"),
                       I(f"global_store_dword v{T}, v{T+1}, s[{S_WS}:{S_WS+1}] sc1")]
            else:
                slr = sPB + 2*(par^1); slr2 = sPBr + 2*(par^1)
                rf += [I(f"v_mov_b32 v{T+2+i}, {SENT}") for i in range(4)]
                rf += [I(f"global_store_dwordx4 v{vPRD}, v[{T+2}:{T+5}], s[{slr}:{slr+1}] {sc}"),
                       I(f"global_store_dwordx4 v{vPRD}, v[{T+2}:{T+5}], s[{slr2}:{slr2+1}] {sc}")]
                for i in range(1, 4):
                    rf += [I(f"v_add_u32 v{T}, {8192*i}, v{vPRD}"),
                           I(f"global_store_dwordx4 v{T}, v[{T+2}:{T+5}], s[{slr}:{slr+1}] {sc}"),
                           I(f"global_store_dwordx4 v{T}, v[{T+2}:{T+5}], s[{slr2}:{slr2+1}] {sc}")]
            if w and 'novpub' not in WI:
                rf = [I(f"global_store_dword v{vVXW}, v{VH[ti]}, s[{sVM}:{sVM+1}] offset:{256*tau} sc1") for ti, tau in enumerate(TL)] + rf
            weave([lambda: qmf(KB[0],0), lambda: qmf(KB[0],1), lambda: qmf(KB[1],0)], rf, 1, False)
            a("s_waitcnt lgkmcnt(0)")
            a("s_barrier")
            P.stamp("barMS")
            mr = [(lambda kb=kb: C.lds(f"ds_read_b128 v[{M(kb)}:{M(kb)+3}], v{vKT} offset:{L_MS-L_KT+kb*1024}", ("m",kb))) for kb in KB[2:]]
            mr[0](); mr[1]()
            qmf(KB[1],1); mr[2]()
            kmf(KB[0],0); mr[3]()
            kmf(KB[0],1); mr[4]()
            kmf(KB[1],0); mr[5]()
            mf = []
            for kb in KB[2:]: mf += [lambda kb=kb: qmf(kb,0), lambda kb=kb: qmf(kb,1)]
            weave(mf, rf, 1, True)
            P.stamp("q")
            late = []
            qpost = [I(f"v_add_f32 v{QA}, v{QA}, v{QA+2}"), I(f"v_add_f32 v{QA+1}, v{QA+1}, v{QA+3}"),
                     I(f"v_add_f32 v{QA+4}, v{QA+4}, v{QA+6}"), I(f"v_add_f32 v{QA+5}, v{QA+5}, v{QA+7}"),
                     I(f"v_cvt_pk_bf16_f32 v{QA}, v{QA}, v{QA+4}"), I(f"v_cvt_pk_bf16_f32 v{QA+1}, v{QA+1}, v{QA+5}"),
                     lambda: C.lds(f"ds_write2_b32 v{vQKW}, v{QA}, v{QA+1} offset0:0 offset1:{RS//4}")]
            kmf(KB[1],1); kmf(KB[2],0)
            weave([lambda: kmf(KB[2],1), lambda: kmf(KB[3],0), lambda: kmf(KB[3],1), lambda: kmf(KB[4],0)], qpost, 2, True)
            kmf(KB[4],1); kmf(KB[5],0)
            C.all_l()
            a("s_barrier")
            trace(a, 1); P.stamp("barQ")
            krest = [lambda: kmf(KB[5],1), lambda: kmf(KB[6],0), lambda: kmf(KB[6],1), lambda: kmf(KB[7],0), lambda: kmf(KB[7],1)]
            kpost = [I(f"v_add_f32 v{KA}, v{KA}, v{KA+2}"), I(f"v_add_f32 v{KA+1}, v{KA+1}, v{KA+3}"),
                     I(f"v_add_f32 v{KA+4}, v{KA+4}, v{KA+6}"), I(f"v_add_f32 v{KA+5}, v{KA+5}, v{KA+7}"),
                     I(f"v_cvt_pk_bf16_f32 v{KA}, v{KA}, v{KA+4}"), I(f"v_cvt_pk_bf16_f32 v{KA+1}, v{KA+1}, v{KA+5}"),
                     lambda: C.lds(f"ds_write_b32 v{vQKW}, v{KA} offset:{L_K-L_Q}"),
                     lambda: C.lds(f"ds_write_b32 v{vQKW}, v{KA+1} offset:{L_K-L_Q+RS}", "kw")]
            ZQ = R2
            if w == 0:
                QBr=R0
                S0=QA; S1=QA+4; SM=KA
                rd = []
                for ks in range(4):
                    rd += [lambda ks=ks: C.lds(f"ds_read_b128 v[{QBr+4*ks}:{QBr+4*ks+3}], v{vQR} offset:{64*ks}", ("q",ks)),
                           lambda ks=ks: C.lds(f"ds_read_b128 v[{R1+4*ks}:{R1+4*ks+3}], v{vKT} offset:{ks*1024}", ("kt",0,ks))]
                rd += [(lambda ks=ks: C.lds(f"ds_read_b128 v[{R2+4*ks}:{R2+4*ks+3}], v{vKT} offset:{4096+ks*1024}", ("kt",1,ks))) for ks in range(4)]
                rd[0](); rd[1](); rd = rd[2:]
                weave(krest, rd, 2, True)
                def smf(kt, ks):
                    Sx = (S0, S1)[kt]; R = (R1, R2)[kt]
                    if ks in (0, 2): C.wait_l(("kt",kt,ks+1))
                    c = "0" if ks == 0 else f"v[{Sx}:{Sx+3}]"
                    a(f"v_mfma_f32_16x16x32_bf16 v[{Sx}:{Sx+3}], v[{R+4*ks}:{R+4*ks+3}], v[{QBr+4*ks}:{QBr+4*ks+3}], {c}")
                smf(0,0); smf(0,1)
                weave([lambda: smf(0,2), lambda: smf(0,3), lambda: smf(1,0), lambda: smf(1,1)], kpost, 2, True)
                smf(1,2); smf(1,3)
                C.wait_l("kw")
                a("s_barrier")
                trace(a, 5); P.stamp("barK")
                for ks in range(4):
                    C.lds(f"ds_read_b128 v[{R1+4*ks}:{R1+4*ks+3}], v{vKR} offset:{64*ks}", ("km",ks))
                mx=T; tt=T+1; nm=T+2; ls=T+4
                Pr=KA+4; PX=VA
                a(f"v_max3_f32 v{mx}, v{S0}, v{S0+1}, v{S0+2}")
                a(f"v_max3_f32 v{mx}, v{mx}, v{S0+3}, v{S1}")
                a(f"v_max3_f32 v{mx}, v{mx}, v{S1+1}, v{S1+2}")
                a(f"v_max_f32 v{mx}, v{mx}, v{S1+3}")
                a(f"v_mov_b32 v{tt}, v{mx}")
                def mmf(ks):
                    if ks in (0, 2): C.wait_l(("km",ks+1))
                    c = "0" if ks == 0 else f"v[{SM}:{SM+3}]"
                    a(f"v_mfma_f32_16x16x32_bf16 v[{SM}:{SM+3}], v[{R1+4*ks}:{R1+4*ks+3}], v[{QBr+4*ks}:{QBr+4*ks+3}], {c}")
                mmf(0)
                a(f"v_permlane32_swap_b32 v{tt}, v{mx}")
                mmf(1)
                a(f"v_max_f32 v{mx}, v{tt}, v{mx}")
                a(f"v_mov_b32 v{tt}, v{mx}")
                mmf(2)
                a(f"v_permlane16_swap_b32 v{tt}, v{mx}")
                mmf(3)
                a(f"v_max_f32 v{mx}, v{tt}, v{mx}")
                a(f"v_mul_f32 v{nm}, s{sC1}, v{mx}")
                tok = [S0+i for i in range(8)]
                for x in (S0, S0+2, S1, S1+2, SM):
                    a(f"v_pk_fma_f32 v[{x}:{x+1}], v[{x}:{x+1}], s[{sC1}:{sC1+1}], v[{nm}:{nm+1}] op_sel_hi:[1,1,0] neg_lo:[0,0,1] neg_hi:[0,0,1]")
                a(f"v_max_f32 v{tt}, v{SM}, v{SM+1}")
                a(f"v_cmp_lt_f32 vcc, 0x42800000, v{tt}")
                for r in tok: a(f"v_exp_f32 v{r}, v{r}")
                lfb = a.newlabel("c_fb"); lfr = a.newlabel("c_fr")
                a(f"s_cbranch_vccnz {lfb}")
                a.label(lfr)
                fbk.append((lfb, lfr))
                a(f"v_exp_f32 v{SM}, v{SM}")
                a(f"v_exp_f32 v{SM+1}, v{SM+1}")
                for i in range(4): a(f"v_cvt_pk_bf16_f32 v{Pr+i}, v{tok[2*i]}, v{tok[2*i+1]}")
                C.lds(f"ds_write_b128 v{vKT}, v[{Pr}:{Pr+3}] offset:{L_MS-L_KT}")
                a(f"v_pk_add_f32 v[{ls}:{ls+1}], v[{S0}:{S0+1}], v[{S0+2}:{S0+3}]")
                a(f"v_pk_add_f32 v[{S1}:{S1+1}], v[{S1}:{S1+1}], v[{S1+2}:{S1+3}]")
                a(f"v_pk_add_f32 v[{ls}:{ls+1}], v[{ls}:{ls+1}], v[{SM}:{SM+1}]")
                a(f"v_pk_add_f32 v[{ls}:{ls+1}], v[{ls}:{ls+1}], v[{S1}:{S1+1}]")
                a(f"v_add_f32 v{ls}, v{ls}, v{ls+1}")
                a(f"v_mov_b32 v{tt}, v{ls}")
                a(f"v_cvt_pk_bf16_f32 v{PX}, v{SM}, v{SM+1}")
                a(f"v_permlane32_swap_b32 v{tt}, v{ls}")
                a(f"v_add_f32 v{ls}, v{tt}, v{ls}")
                a(f"v_mov_b32 v{tt}, v{ls}")
                a(f"v_mov_b64 v[{ZQ}:{ZQ+1}], 0")
                a(f"v_permlane16_swap_b32 v{tt}, v{ls}")
                a(f"v_add_f32 v{ls}, v{tt}, v{ls}")
                a(f"v_rcp_f32 v{PX+2}, v{ls}")
                a(f"v_mov_b64 v[{ZQ+2}:{ZQ+3}], 0")
                C.lds(f"ds_write_b128 v{vKT}, v[{PX}:{PX+3}] offset:{L_MS-L_KT+1024}")
                trace(a, 7)
                C.all_l()
                a("s_barrier")
                a(f"v_mfma_f32_32x32x16_bf16 v[0:15], v[{ZQ}:{ZQ+3}], v[{ZQ}:{ZQ+3}], 0")
                a(f"v_mfma_f32_32x32x16_bf16 v[16:31], v[{ZQ}:{ZQ+3}], v[{ZQ}:{ZQ+3}], 0")
                trace(a, 6)
                a("s_barrier")
            else:
                vfr = [(lambda ti=ti, tau=tau: C.lds(f"ds_read_b128 v[{VFR[ti]}:{VFR[ti]+3}], v{vKT} offset:{L_VT-L_KT+tau*1024}", "vf")) for ti, tau in enumerate(TL)]
                weave(krest, vfr + late, 1, True)
                vq = list(vops)
                def vstep(n):
                    kb, ti = vops[n]
                    C.wait_l(("wv", n))
                    sl_ = SLOT[n % NS]
                    a(f"v_smfmac_f32_16x16x64_bf16 v[{VACC[ti]}:{VACC[ti]+3}], v[{M(kb)}:{M(kb)+3}], v[{sl_}:{sl_+7}], v{vIDX}")
                    if n + NS < len(vops): wvr(n + NS)
                vstep(0); vstep(1)
                for f in kpost: f()
                vstep(2)
                C.wait_l("kw")
                a("s_barrier")
                trace(a, 5); P.stamp("barK")
                dq = dmal() if (role == "DMA" and 'nodma' not in WI) else []
                for n in range(3, len(vops)):
                    vstep(n)
                    if dq: dq.pop(0)()
                a(f"v_mov_b64 v[{R1}:{R1+1}], 0"); a(f"v_mov_b64 v[{R1+2}:{R1+3}], 0")
                for ti, tau in enumerate(TL):
                    x = VACC[ti]
                    a(f"v_pk_add_f32 v[{x}:{x+1}], v[{x}:{x+1}], v[{x+2}:{x+3}]")
                    a(f"v_cvt_pk_bf16_f32 v{x}, v{x}, v{x+1}")
                    a(f"v_mov_b32 v{x+1}, 0")
                a(f"v_mfma_f32_32x32x16_bf16 v[0:15], v[{R1}:{R1+3}], v[{R1}:{R1+3}], 0")
                a(f"v_mfma_f32_32x32x16_bf16 v[16:31], v[{R1}:{R1+3}], v[{R1}:{R1+3}], 0")
                for ti, tau in enumerate(TL):
                    a(f"v_mov_b32 v{VH[ti]}, v{VACC[ti]}")
                trace(a, 7)
                C.all_l()
                a("s_barrier")
                Pr=KA+4; PX=T+2
                C.lds(f"ds_read_b128 v[{Pr}:{Pr+3}], v{vKT} offset:{L_MS-L_KT}", "p0")
                C.lds(f"ds_read_b128 v[{PX}:{PX+3}], v{vKT} offset:{L_MS-L_KT+1024}", "p1")
                OO = [R0, R0+4, R0+8]
                C.wait_l("p0")
                for ti in range(len(TL)):
                    a(f"v_mfma_f32_16x16x32_bf16 v[{OO[ti]}:{OO[ti]+3}], v[{VFR[ti]}:{VFR[ti]+3}], v[{Pr}:{Pr+3}], 0")
                C.wait_l("p1")
                for ti in range(len(TL)):
                    a(f"v_mfma_f32_16x16x16_bf16 v[{OO[ti]}:{OO[ti]+3}], v[{VACC[ti]}:{VACC[ti]+1}], v[{PX}:{PX+1}], v[{OO[ti]}:{OO[ti]+3}]")
                for ti, tau in enumerate(TL):
                    o = OO[ti]
                    a(f"v_pk_mul_f32 v[{o}:{o+1}], v[{o}:{o+1}], v[{PX+2}:{PX+3}] op_sel_hi:[1,0]")
                    a(f"v_pk_mul_f32 v[{o+2}:{o+3}], v[{o+2}:{o+3}], v[{PX+2}:{PX+3}] op_sel_hi:[1,0]")
                    a(f"v_cvt_pk_bf16_f32 v{o}, v{o}, v{o+1}")
                    a(f"v_cvt_pk_bf16_f32 v{o+1}, v{o+2}, v{o+3}")
                    C.lds(f"ds_write_b64 v{vOW}, v[{o}:{o+1}] offset:{32*tau}")
                trace(a, 6)
                C.all_l()
                a("s_barrier")
                ZQ = R1
            trace(a, 2); P.stamp("barO")
            OA=KA
            for kb2 in range(2):
                C.lds(f"ds_read_b128 v[{OA+4*kb2}:{OA+4*kb2+3}], v{vOR} offset:{128*kb2}", ("oa",kb2))
            a(f"v_add_u32 v{T}, 32768, v{vPST}")
            a(f"s_add_u32 s{sT+6}, s{sSTEP}, 1")
            a(f"v_mov_b32 v{T+1}, 0")
            a(f"v_mov_b32 v{T+2}, s{sT+6}")
            if par == 1:
                a(f"s_cmp_eq_u32 s{sSTEP}, 63")
                a(f"s_cbranch_scc1 {lend}")
            pf = [(lambda n=n: wvr(n)) for n in range(NS)] if w else []
            C.wait_l(("oa",0))
            def omf(i, kb2):
                if kb2: C.wait_l(("oa",1))
                a(f"v_smfmac_f32_16x16x64_bf16 v[{4*i}:{4*i+3}], v[{OA+4*kb2}:{OA+4*kb2+3}], v[{WO(i,kb2)}:{WO(i,kb2)+7}], v{vIDX}")
            PK = QA
            def fin(i):
                return [I(f"v_add_f32 v{4*i}, v{4*i}, v{4*i+2}"), I(f"v_add_f32 v{4*i+1}, v{4*i+1}, v{4*i+3}"),
                        I(f"v_cvt_pk_bf16_f32 v{PK+i}, v{4*i}, v{4*i+1}")]
            sl = sPB + 2*par
            order = [(0,0),(1,0),(0,1),(1,1),(2,0),(3,0),(2,1),(3,1),(4,0),(5,0),(4,1),(5,1),(6,0),(7,0),(6,1),(7,1)]
            fq = []
            for n, (i, kb2) in enumerate(order):
                omf(i, kb2)
                if n in (5, 9, 13):
                    fq += fin((n-5)//2) + fin((n-5)//2+1)
                    if n == 9: fq += [I(f"global_store_dwordx4 v{vPST}, v[{PK}:{PK+3}], s[{sl}:{sl+1}] {sc}"),
                                      I(f"global_store_dword v{T+1}, v{T+2}, s[{sFLW}:{sFLW+1}] {sc}")]
                for _ in range(2 if n >= 5 else 1):
                    if fq: fq.pop(0)()
            for f in fq: f()
            a(f"v_pk_add_f32 v[24:25], v[24:25], v[26:27]")
            a(f"v_pk_add_f32 v[28:29], v[28:29], v[30:31]")
            a(f"v_cvt_pk_bf16_f32 v{PK+6}, v24, v25")
            a(f"v_cvt_pk_bf16_f32 v{PK+7}, v28, v29")
            a(f"global_store_dwordx4 v{T}, v[{PK+4}:{PK+7}], s[{sl}:{sl+1}] {sc}")
            a(f"global_store_dword v{T+1}, v{T+2}, s[{sFLW}:{sFLW+1}] offset:128 {sc}")
            trace(a, 3); P.stamp("outp")
            if role == "R":
                for f in pf: f()
            if role == "R":
                RB=0; BS=VA; D=KA
                a(f"v_lshrrev_b32 v{T+4}, 2, v{vL16}")
                a(f"v_and_b32 v{T+4}, 127, v{T+4}")
                a(f"global_load_dword v{T+5}, v{T+4}, s[{sFLR}:{sFLR+1}] sc1")
                for d in range(4):
                    a(f"v_cndmask_b32 v{BS+d}, 0, v{vSELX}, s[{sSEL+2*d}:{sSEL+2*d+1}]")
                for i in range(1, 4): a(f"v_add_u32 v{T+i}, {8192*i}, v{vPRD}")
                for r in range(QA, QA+8, 2): a(f"v_mov_b64 v[{r}:{r+1}], 0")
                a(f"v_mov_b64 v[{VA+4}:{VA+5}], 0"); a(f"v_mov_b64 v[{VA+6}:{VA+7}], 0")
                rotate()
                sadd64(a, sVM, sVM, 65536)
                lp = a.newlabel("c_pollp"); lslow = a.newlabel("c_slow"); lok = a.newlabel("c_ok")
                if 'nortt' in WI:
                    trace(a, 1)
                    a("s_waitcnt vmcnt(0)")
                    trace(a, 5)
                ll = a.newlabel("c_light"); lgo = a.newlabel("c_go")
                LT = T+5
                a.label(ll)
                a("s_waitcnt vmcnt(0)")
                a(f"v_cmp_eq_u32 vcc, s{sT+6}, v{LT}")
                a(f"global_load_dword v{LT}, v{T+4}, s[{sFLR}:{sFLR+1}] sc1")
                a(f"s_bcnt1_i32_b32 s{sT}, vcc_lo")
                a(f"s_cmp_lt_u32 s{sT}, {SPEC_T}")
                a(f"s_cbranch_scc1 {retry_stub(ll)}")
                a.label(lp)
                for i in range(8):
                    base = vPRD if i < 2 else T + (i >> 1)
                    sb = sl if (i & 1) == 0 else sPBr + 2*par
                    a(f"global_load_dwordx4 v[{RB+4*i}:{RB+4*i+3}], v{base}, s[{sb}:{sb+1}] sc1")
                a("s_waitcnt vmcnt(8)")
                a(f"v_cmp_ne_u32 vcc, s{sT+6}, v{LT}")
                lre = a.newlabel("c_re")
                a(f"s_cbranch_vccnz {lre}")
                redo.append((lre, lp, T+4, LT))
                for i in range(8):
                    a(f"s_waitcnt vmcnt({7-i})")
                    c = "0" if i == 0 else f"v[{D}:{D+3}]"
                    a(f"v_mfma_f32_16x16x32_bf16 v[{D}:{D+3}], v[{RB+4*i}:{RB+4*i+3}], v[{BS}:{BS+3}], {c}")
                a(f"s_mov_b64 exec, s[{sPUBM}:{sPUBM+1}]")
                a(f"v_pk_add_f32 v[{D+4}:{D+5}], v[{D}:{D+1}], v[{D+2}:{D+3}]")
                a(f"v_cmp_u_f32 vcc, v{D+4}, v{D+5}")
                a(f"v_cvt_pk_bf16_f32 v{D}, v{D}, v{D+1}")
                a(f"v_cvt_pk_bf16_f32 v{D+1}, v{D+2}, v{D+3}")
                a(f"v_min_u32 v{D}, -2, v{D}")
                a(f"v_min_u32 v{D+1}, -2, v{D+1}")
                a(f"s_cbranch_vccnz {lslow}")
                a.label(lok)
                a(f"global_store_dwordx2 v{vPUB}, v[{D}:{D+1}], s[{sMB}:{sMB+1}] {sc}")
                trace(a, 4)
                a("s_barrier")
                a(f"v_mov_b64 v[{D+2}:{D+3}], -1")
                a(f"global_store_dwordx2 v{vPUB}, v[{D+2}:{D+3}], s[{sMB+4}:{sMB+5}] {sc}")
                if dump:
                    sadd64(a, sDUMP, sDUMP, 8192)
                    a(f"global_store_dwordx2 v{vPUB}, v[{D}:{D+1}], s[{sDUMP}:{sDUMP+1}]")
                a("s_mov_b64 exec, -1")
                trace_flush(a)
                mloads()
                for r in range(KA, KA+12, 2): a(f"v_mov_b64 v[{r}:{r+1}], 0")
                a(f"s_add_u32 s{sSTEP}, s{sSTEP}, 1")
                slow.append((lslow, lp, lok))
            else:
                if role == "PUB": sadd64(a, sKM, sKM, 131072)
                if role == "DMA":
                    sadd64(a, sKF, sKF, 262144)
                    a(f"v_lshlrev_b32 v{T+5}, 3, v{vL16}")
                    if par == 1 and kvflags:
                        lok2 = a.newlabel("c_fok")
                        a(f"v_cmp_le_u32 vcc, {KV_TARGET}, v{vFLG}")
                        a(f"s_cbranch_vccnz {lok2}")
                        wait_flag_spin(sFOFF)
                        a.label(lok2)
                        a(f"s_add_u32 s{sFOFF}, s{sFOFF}, 128")
                        a(f"s_min_u32 s{sFOFF}, s{sFOFF}, {F_KVRDY+31*128}")
            if role != "R":
                sadd64(a, sVM, sVM, 65536)
                rotate()
                trace_flush(a)
                a(f"s_add_u32 s{sSTEP}, s{sSTEP}, 1")
                a(f"v_mfma_f32_32x32x16_bf16 v[{QA}:{QA+15}], v[{ZQ}:{ZQ+3}], v[{ZQ}:{ZQ+3}], 0")
                for x in VACC:
                    a(f"v_mfma_f32_16x16x32_bf16 v[{x}:{x+3}], v[{ZQ}:{ZQ+3}], v[{ZQ}:{ZQ+3}], 0")
                for f in pf: f()
                if role == "PUB":
                    a(f"ds_read_b128 v[{M(KB[2])}:{M(KB[2])+3}], v{vFLG}")
                    a(f"ds_read_b128 v[{M(KB[3])}:{M(KB[3])+3}], v{vFLG} offset:{4*RS}")
                    a("s_waitcnt lgkmcnt(0)")
                a("s_barrier")
                mloads()
            a.flush_hazards()
        a(f"s_branch {lchk0}")
    for (l, lc, ml) in ptail:
        a.label(l)
        ml()
        a(f"s_branch {lc}")
    for (l, lback) in tails:
        a.label(l)
        a(f"s_add_u32 s{sSPIN}, s{sSPIN}, 1")
        a(f"s_cmp_lt_u32 s{sSPIN}, 0x80000")
        a(f"s_cbranch_scc1 {lback}")
        a("s_branch L_fail")
    for (l, lp, va, lt) in redo:
        a.label(l); a.hist=[]
        a(f"global_load_dword v{lt}, v{va}, s[{sFLR}:{sFLR+1}] sc1")
        a(f"s_add_u32 s{sSPIN}, s{sSPIN}, 1")
        a(f"s_cmp_lt_u32 s{sSPIN}, 0x80000")
        a(f"s_cbranch_scc1 {lp}")
        a("s_branch L_fail")
    for (l, lp, lok) in slow:
        a.label(l); a.hist=[]
        a("s_mov_b64 exec, -1")
        a(f"s_add_u32 s{sSPIN}, s{sSPIN}, 1")
        a(f"s_cmp_gt_u32 s{sSPIN}, 0x80000")
        a("s_cbranch_scc1 L_fail")
        a(f"s_and_b32 s{sT}, s{sSPIN}, 31")
        a(f"s_cmp_lg_u32 s{sT}, 0")
        a(f"s_cbranch_scc1 {lp}")
        a(f"s_mov_b32 s{sT}, {SENT}")
        a(f"s_mov_b64 s[{sT+2}:{sT+3}], 0")
        for r in range(32):
            a(f"v_cmp_eq_u32 vcc, s{sT}, v{r}")
            a(f"s_or_b64 s[{sT+2}:{sT+3}], s[{sT+2}:{sT+3}], vcc")
        a(f"s_cmp_lg_u64 s[{sT+2}:{sT+3}], 0")
        a(f"s_cbranch_scc1 {lp}")
        a(f"s_mov_b64 exec, s[{sPUBM}:{sPUBM+1}]")
        a(f"s_branch {lok}")
    for (l, lr) in fbk:
        a.label(l); a.hist=[]
        a("s_nop 7")
        SM=KA; S0=QA; Pr=KA+4; tt=T+1; d=T
        a(f"v_max_f32 v{d}, v{SM}, v{SM+1}")
        xl(a, d, tt, "v_max_f32")
        a(f"v_max_f32 v{d}, 0, v{d}")
        a(f"v_sub_f32 v{SM}, v{SM}, v{d}")
        a(f"v_sub_f32 v{SM+1}, v{SM+1}, v{d}")
        a(f"v_sub_f32 v{d}, 0, v{d}")
        a(f"v_exp_f32 v{d}, v{d}")
        for r in range(8): a(f"v_mul_f32 v{S0+r}, v{S0+r}, v{d}")
        a(f"s_branch {lr}")
    a.label(lend)
    a.flush_hazards()
    a(f"s_memtime s[{sT0+2}:{sT0+3}]")
    l0 = a.newlabel("c_fin")
    sadd64(a, sVM, sVM, 65536)
    for w in range(1, 4):
        lx = a.newlabel("c_fv")
        a(f"s_cmp_lg_u32 s{S_WAVE}, {w}")
        a(f"s_cbranch_scc1 {lx}")
        if w == 1:
            sadd64(a, sKM, sKM, 131072)
            a(f"ds_read_b128 v[0:3], v{vFLG}")
            a(f"ds_read_b128 v[4:7], v{vFLG} offset:{4*RS}")
            a("s_waitcnt lgkmcnt(0)")
            a(f"global_store_dwordx4 v{vL16}, v[0:3], s[{sKM}:{sKM+1}] sc1")
            a(f"global_store_dwordx4 v{vL16}, v[4:7], s[{sKM}:{sKM+1}] offset:1024 sc1")
        for ti, tau in enumerate([[], [0,1,2], [3,4,5], [6,7]][w]):
            a(f"global_store_dword v{vVXW}, v{[vQR, vKR, vVOFF][ti]}, s[{sVM}:{sVM+1}] offset:{256*tau} sc1")
        a.label(lx)
    a("s_waitcnt vmcnt(0) lgkmcnt(0)")
    a("s_barrier")
    a(f"s_cmp_lg_u32 s{S_WAVE}, 1")
    a(f"s_cbranch_scc1 {l0}")
    a(f"v_mov_b32 v{T}, s{sPRG}")
    a(f"v_mov_b32 v{T+2}, 64")
    a(f"global_store_dword v{T}, v{T+2}, s[{S_WS}:{S_WS+1}] sc1")
    a.label(l0)
    a("s_waitcnt lgkmcnt(0) vmcnt(0)")
    return P
```

```python
from asmlib import *
from layout import *
from bulk import *
import os
PROG_SLEEP=int(os.environ.get('PROG_SLEEP','2'))
SCALE = 128 ** -0.5
sSEG=40; sSEQ=41; sEP=42; sEPr=44; sQ=46; sK=48; sV=50; sKMb=52; sVMb=54; sMASK=56
sMASK=80; sFLG=96; sFRE=97; sL2E=98; sSC=99
L_OX = 0
L_RED = 9216
L_WD = 16384
ORS = 272
vL=1; vG=2; vC=3; vL16=4; vT=5
vCON=16
vOW=26; vOR=27; vEPW=28; vEPR=29; vCOL=30; vVMO=31; vKMO=198; SEL=192
QB=32; KFR=48; KMR=80; VFR=96; VMR=112
SS=120
PP=132
OO=140
OB=160
DD=32
WDF=200
WOF = lambda ti, ks: (ti*4+ks)*4

def xl(a, x, t, op):
    a(f"v_mov_b32 v{t}, v{x}")
    a(f"v_permlane32_swap_b32 v{t}, v{x}")
    a(f"{op} v{x}, v{t}, v{x}")
    a(f"v_mov_b32 v{t}, v{x}")
    a(f"v_permlane16_swap_b32 v{t}, v{x}")
    a(f"{op} v{x}, v{t}, v{x}")

def wg_sum(a, x, t, slot):
    row16_sum(a, x, None)
    xl(a, x, t, "v_add_f32")
    a(f"s_lshl_b32 s{sT}, s{S_WAVE}, 2")
    a(f"s_add_u32 s{sT}, s{sT}, {L_RED+slot*16}")
    a(f"v_mov_b32 v{t}, s{sT}")
    a(f"ds_write_b32 v{t}, v{x}")
    a(f"v_mov_b32 v{t}, {L_RED+slot*16}")
    a("s_waitcnt lgkmcnt(0)")
    a("s_barrier")
    a(f"ds_read_b128 v[{t+2}:{t+5}], v{t}")
    a("s_waitcnt lgkmcnt(0)")
    a(f"v_add_f32 v{t+2}, v{t+2}, v{t+3}")
    a(f"v_add_f32 v{t+4}, v{t+4}, v{t+5}")
    a(f"v_add_f32 v{x}, v{t+2}, v{t+4}")

def ef_setup(a):
    a("s_barrier")
    for cq in range(4):
        a(f"s_lshl_b32 s{sT+6}, s{S_VR}, 17")
        a(f"s_add_u32 s{sT+6}, s{sT+6}, {cq*256}")
        a(f"s_add_u32 s{sT+6}, s{S_WO}, s{sT+6}")
        a(f"s_addc_u32 s{sT+7}, s{S_WO+1}, 0")
        stage_rows(a, sT+6, 1024, 128, cq*32768, 2)
    cp = tr_base(a, 10, 2)
    a("v_lshrrev_b32 v12, 1, v2")
    a("v_xor_b32 v11, v11, v12")
    a("v_and_b32 v12, 1, v2")
    a("v_lshl_add_u32 v10, v12, 4, v10")
    a(f"s_lshl_b32 s{sT}, s{S_WAVE}, 15")
    a(f"v_add_u32 v10, s{sT}, v10")
    a("s_waitcnt vmcnt(0)")
    a("s_barrier")
    for p in range(4):
        a(f"v_xor_b32 v12, {2*p}, v11")
        a("v_lshl_add_u32 v12, v12, 5, v10")
        for tau in range(2):
            ti = 2*p+tau
            for ks in range(4):
                for m in range(2):
                    a(f"ds_read_b64_tr_b16 a[{WOF(ti,ks)+2*m}:{WOF(ti,ks)+2*m+1}], v12 offset:{ks*8192+m*1024+8*tau}")
    a("s_waitcnt lgkmcnt(0)")
    a("s_barrier")
    lane_ids(a, vL, vG, vC)
    a(f"v_lshlrev_b32 v{vL16}, 4, v{vL}")
    a(f"v_and_b32 v{vT}, 1, v{vG}")
    a(f"v_lshlrev_b32 v{vT}, 2, v{vT}")
    a(f"v_lshl_add_u32 v{vT}, v{vC}, 3, v{vT}")
    a(f"v_lshrrev_b32 v{vT+1}, 1, v{vG}")
    a(f"v_lshl_add_u32 v{vT}, v{vT+1}, 1, v{vT}")
    a(f"s_lshl_b32 s{sT}, s{S_WAVE}, 7")
    a(f"v_add_u32 v{vCOL}, s{sT}, v{vT}")
    a(f"v_and_b32 v{vT}, 1, v{vC}")
    a(f"v_lshlrev_b32 v{vT}, 4, v{vT}")
    a(f"v_mov_b32 v{vT+1}, 0x3F80")
    a(f"v_lshlrev_b32 v{vT}, v{vT}, v{vT+1}")
    a(f"v_lshrrev_b32 v{vT+1}, 1, v{vC}")
    for d in range(4):
        a(f"v_cmp_eq_u32 vcc, {d}, v{vT+1}")
        a(f"v_cndmask_b32 v{SEL+d}, 0, v{vT}, vcc")
    poll_counter(a, D_MODRDY+4, 32, vt=vT)
    a(f"v_lshlrev_b32 v{vT}, 2, v{vCOL}")
    a(f"v_add_u32 v{vT}, {WS_MOD+4096}, v{vT}")
    a(f"v_add_u32 v{vT+1}, 4096, v{vT}")
    a(f"global_load_dwordx2 v[{vCON}:{vCON+1}], v{vT}, s[{S_WS}:{S_WS+1}] sc1")
    a(f"global_load_dwordx2 v[{vCON+2}:{vCON+3}], v{vT}, s[{S_WS}:{S_WS+1}] offset:2048 sc1")
    a(f"global_load_dwordx2 v[{vCON+4}:{vCON+5}], v{vT+1}, s[{S_WS}:{S_WS+1}] sc1")
    a(f"global_load_dwordx2 v[{vCON+6}:{vCON+7}], v{vT+1}, s[{S_WS}:{S_WS+1}] offset:2048 sc1")
    a(f"v_lshlrev_b32 v{vCOL}, 1, v{vCOL}")
    a(f"global_load_dword v{vCON+9}, v{vCOL}, s[{S_WR}:{S_WR+1}]")
    a(f"s_and_b32 s{sT}, s{S_WAVE}, 1")
    a(f"s_lshr_b32 s{sT+1}, s{S_WAVE}, 1")
    a(f"s_mul_i32 s{sT+2}, s{sT}, {16*ORS}")
    a(f"s_lshl_b32 s{sT+3}, s{sT+1}, 7")
    a(f"s_add_u32 s{sT+2}, s{sT+2}, s{sT+3}")
    a(f"v_mul_u32_u24 v{vT}, {ORS}, v{vC}")
    a(f"v_lshl_add_u32 v{vOW}, v{vG}, 3, v{vT}")
    a(f"v_add_u32 v{vOW}, s{sT+2}, v{vOW}")
    a(f"v_lshl_add_u32 v{vOR}, v{vG}, 4, v{vT}")
    a(f"v_lshlrev_b32 v{vEPW}, 16, v{vC}")
    a(f"v_lshl_add_u32 v{vEPW}, v{vG}, 4, v{vEPW}")
    a(f"s_lshl_b32 s{sT+2}, s{S_VR}, 11")
    a(f"s_lshl_b32 s{sT+3}, s{S_WAVE}, 8")
    a(f"s_add_u32 s{sT+2}, s{sT+2}, s{sT+3}")
    a(f"v_add_u32 v{vEPW}, s{sT+2}, v{vEPW}")
    a(f"v_lshlrev_b32 v{vT}, 10, v{vG}")
    a(f"v_lshl_add_u32 v{vT}, v{vC}, 4, v{vT}")
    a(f"s_lshl_b32 s{sT+2}, s{S_VR}, 16")
    a(f"s_add_u32 s{sT+2}, s{sT+2}, s{sT+3}")
    a(f"v_add_u32 v{vEPR}, s{sT+2}, v{vT}")
    a(f"s_lshl_b32 s{sT+2}, s{sT+1}, 10")
    a(f"v_lshl_add_u32 v{vVMO}, v{vL}, 2, s{sT+2}")
    a(f"v_lshrrev_b32 v{vT}, 2, v{vC}")
    a(f"v_and_b32 v{vT+1}, 1, v{vC}")
    a(f"v_lshl_add_u32 v{vT}, v{vT}, 1, v{vT+1}")
    a(f"v_lshlrev_b32 v{vT}, 8, v{vT}")
    a(f"v_lshl_add_u32 v{vKMO}, v{vG}, 4, v{vT}")
    a(f"s_lshl_b32 s{sT+2}, s{sT}, 4")
    a(f"v_add_u32 v{vT}, s{sT+2}, v{vC}")
    a(f"v_lshlrev_b32 v{vT+1}, 2, v{vG}")
    a(f"v_sub_u32 v{vT}, v{vT}, v{vT+1}")
    for kt in range(2):
        for r in range(4):
            a(f"v_cmp_gt_i32 s[{sMASK+2*(4*kt+r)}:{sMASK+2*(4*kt+r)+1}], {16*kt+r}, v{vT}")
    a(f"s_lshl_b32 s{sT+2}, s{S_VX}, 21")
    a(f"s_add_u32 s{sT+2}, s{sT+2}, {WS_EP}")
    sadd64(a, sEP, S_WS, f"s{sT+2}")
    a(f"s_lshl_b32 s{sT+2}, s{S_VX}, 7")
    a(f"s_add_u32 s{sFLG}, s{sT+2}, {F_EPF}")
    a(f"s_add_u32 s{sFRE}, s{sT+2}, {F_EPFREE}")
    a(f"s_mov_b32 s{sL2E}, {f2u(LOG2E)}")
    a(f"s_mov_b32 s{sSC}, {f2u(SCALE)}")
    for i in range(4): a(f"v_mov_b32 v{VMR+2*i+1}, 0")
    a(f"v_mov_b32 v{PP+5}, 0")
    a("s_waitcnt vmcnt(0)")
    a(f"v_lshlrev_b32 v{vCON+8}, 16, v{vCON+9}")
    a(f"v_and_b32 v{vCON+9}, 0xffff0000, v{vCON+9}")

def poll_flags32(a, soff, sval):
    l = a.newlabel("pf")
    a(f"v_and_b32 v{vT}, 31, v{vL}")
    a(f"v_lshl_add_u32 v{vT}, v{vT}, 2, s{soff}")
    a(f"s_mov_b32 s{sT+9}, 0")
    a.label(l)
    a(f"global_load_dword v{vT+1}, v{vT}, s[{S_WS}:{S_WS+1}] sc1")
    a(f"s_add_u32 s{sT+9}, s{sT+9}, 1")
    a(f"s_cmp_gt_u32 s{sT+9}, 0x80000")
    a("s_cbranch_scc1 L_fail")
    a("s_waitcnt vmcnt(0)")
    a(f"v_cmp_gt_u32 vcc, s{sval}, v{vT+1}")
    a(f"s_cbranch_vccnz {l}")

def set_flag(a, soff, sval, sc):
    l = a.newlabel("sf")
    a(f"s_cmp_lg_u32 s{S_WAVE}, 0")
    a(f"s_cbranch_scc1 {l}")
    a(f"s_lshl_b32 s{sT}, s{S_VR}, 2")
    a(f"s_add_u32 s{sT}, s{sT}, s{soff}")
    a(f"v_mov_b32 v{vT}, s{sT}")
    a(f"v_mov_b32 v{vT+1}, s{sval}")
    a("s_mov_b64 exec, 1")
    a(f"global_store_dword v{vT}, v{vT+1}, s[{S_WS}:{S_WS+1}] {sc}")
    a("s_mov_b64 exec, -1")
    a.label(l)

def ef_loop(a, sc):
    a(f"s_sub_u32 s{sSEG}, s{S_VX}, 1")
    a(f"s_mov_b32 s{sSEQ}, 0")
    lloop = a.newlabel("efloop")
    a.flush_hazards()
    a.label(lloop)
    a(f"s_lshl_b32 s{sT+4}, s{sSEG}, 5")
    a(f"s_add_u32 s{sT+4}, s{sT+4}, s{S_VR}")
    a(f"s_lshl_b32 s{sT+5}, s{sT+4}, 10")
    a(f"v_add_u32 v{vT+9}, s{sT+5}, v{vCOL}")
    a(f"global_load_dword v{vT+10}, v{vT+9}, s[{S_X}:{S_X+1}]")
    a(f"s_lshl_b32 s{sT}, s{sSEG}, 18")
    a(f"s_lshl_b32 s{sT+1}, s{S_VR}, 13")
    a(f"s_add_u32 s{sT}, s{sT}, s{sT+1}")
    a(f"s_and_b32 s{sT+2}, s{S_WAVE}, 1")
    a(f"s_lshl_b32 s{sT+2}, s{sT+2}, 12")
    a(f"s_add_u32 s{sT+2}, s{sT+2}, s{sT}")
    a(f"s_add_u32 s{sT+2}, s{sT+2}, {WS_QF}")
    sadd64(a, sQ, S_WS, f"s{sT+2}")
    a(f"s_add_u32 s{sT+2}, s{sT}, {WS_KF}")
    sadd64(a, sK, S_WS, f"s{sT+2}")
    a(f"s_lshr_b32 s{sT+2}, s{S_WAVE}, 1")
    a(f"s_lshl_b32 s{sT+2}, s{sT+2}, 12")
    a(f"s_add_u32 s{sT+2}, s{sT+2}, s{sT}")
    a(f"s_add_u32 s{sT+2}, s{sT+2}, {WS_VF}")
    sadd64(a, sV, S_WS, f"s{sT+2}")
    a(f"s_lshr_b32 s{sT+2}, s{sT}, 1")
    a(f"s_add_u32 s{sT+2}, s{sT+2}, {WS_KM}")
    sadd64(a, sKMb, S_WS, f"s{sT+2}")
    a(f"s_lshr_b32 s{sT+2}, s{sT}, 2")
    a(f"s_add_u32 s{sT+2}, s{sT+2}, {WS_VM}")
    sadd64(a, sVMb, S_WS, f"s{sT+2}")
    a(f"s_lshr_b32 s{sT+2}, s{sSEG}, 1")
    a(f"s_lshl_b32 s{sT+2}, s{sT+2}, 7")
    a(f"s_add_u32 s{sT+2}, s{sT+2}, {F_KVRDY}")
    poll_counter(a, f"s{sT+2}", KV_TARGET, vt=vT, base=S_WS)
    a(f"s_add_u32 s{sT+2}, s{sT+2}, {F_QRDY - F_KVRDY}")
    poll_counter(a, f"s{sT+2}", 32, vt=vT, base=S_WS)
    a(f"v_add_u32 v{vT+2}, 4096, v{vL16}")
    for ks in range(4):
        a(f"global_load_dwordx4 v[{QB+4*ks}:{QB+4*ks+3}], v{vL16}, s[{sQ}:{sQ+1}] offset:{1024*ks} sc1")
    for kt in range(2):
        for ks in range(4):
            a(f"global_load_dwordx4 v[{KFR+16*kt+4*ks}:{KFR+16*kt+4*ks+3}], v{vL16 if kt==0 else vT+2}, s[{sK}:{sK+1}] offset:{1024*ks} sc1")
    for i in range(4):
        a(f"global_load_dwordx4 v[{VFR+4*i}:{VFR+4*i+3}], v{vL16}, s[{sV}:{sV+1}] offset:{1024*i} sc1")
    SM=SS; S0=SS+4; S1=SS+8
    regs = [S0+i for i in range(4)] + [S1+i for i in range(4)] + [SM, SM+1]
    def scl(x):
        rnd_pair(a, x)
        a(f"v_mul_f32 v{x}, s{sSC}, v{x}")
        a(f"v_mul_f32 v{x+1}, s{sSC}, v{x+1}")
        rnd_pair(a, x)
    poll_flags32(a, sFRE, sSEQ)
    for kt, Sx in ((0,S0),(1,S1)):
        for ks in range(4):
            c = "0" if ks==0 else f"v[{Sx}:{Sx+3}]"
            a(f"v_mfma_f32_16x16x32_bf16 v[{Sx}:{Sx+3}], v[{KFR+16*kt+4*ks}:{KFR+16*kt+4*ks+3}], v[{QB+4*ks}:{QB+4*ks+3}], {c}")
    for x in (S0, S0+2, S1, S1+2): scl(x)
    a(f"v_mov_b32 v{vT}, {f2u(-1e9)}")
    for i in range(8):
        a(f"v_cndmask_b32 v{regs[i]}, v{regs[i]}, v{vT}, s[{sMASK+2*i}:{sMASK+2*i+1}]")
    a(f"s_lshl_b32 s{sT+2}, s{S_VR}, 7")
    a(f"s_add_u32 s{sT+2}, s{sT+2}, {F_PROG}")
    a(f"s_add_u32 s{sT+3}, s{sSEG}, 1")
    poll_counter(a, f"s{sT+2}", f"s{sT+3}", vt=vT, base=S_WS, sleep=PROG_SLEEP)
    if TS_ENABLED[0]:
        a(f"s_mul_i32 s76, s{sSEQ}, 3")
        a(f"s_add_u32 s76, s76, 16")
        TS(a, "s76")
    for ks in range(4):
        a(f"global_load_dwordx4 v[{KMR+4*ks}:{KMR+4*ks+3}], v{vKMO}, s[{sKMb}:{sKMb+1}] offset:{64*ks} sc1")
    for i in range(4):
        a(f"global_load_dword v{VMR+2*i}, v{vVMO}, s[{sVMb}:{sVMb+1}] offset:{256*i} sc1")
    for ks in range(4):
        a(f"s_waitcnt vmcnt({7-ks})")
        c = "0" if ks==0 else f"v[{SM}:{SM+3}]"
        a(f"v_mfma_f32_16x16x32_bf16 v[{SM}:{SM+3}], v[{KMR+4*ks}:{KMR+4*ks+3}], v[{QB+4*ks}:{QB+4*ks+3}], {c}")
    scl(SM)
    mx=vT; tt=vT+1; ls=vT+2
    a(f"v_max3_f32 v{mx}, v{regs[0]}, v{regs[1]}, v{regs[2]}")
    for i in (3,5,7): a(f"v_max3_f32 v{mx}, v{mx}, v{regs[i]}, v{regs[i+1]}")
    a(f"v_max_f32 v{mx}, v{mx}, v{regs[9]}")
    xl(a, mx, tt, "v_max_f32")
    for r in regs:
        a(f"v_sub_f32 v{r}, v{r}, v{mx}")
        a(f"v_mul_f32 v{r}, s{sL2E}, v{r}")
        a(f"v_exp_f32 v{r}, v{r}")
    a(f"v_add_f32 v{ls}, v{regs[0]}, v{regs[1]}")
    for r in regs[2:]: a(f"v_add_f32 v{ls}, v{ls}, v{r}")
    xl(a, ls, tt, "v_add_f32")
    a(f"v_rcp_f32 v{ls}, v{ls}")
    for r in regs: a(f"v_mul_f32 v{r}, v{r}, v{ls}")
    for i in range(5):
        a(f"v_cvt_pk_bf16_f32 v{PP+i}, v{regs[2*i]}, v{regs[2*i+1]}")
    for i in range(4):
        a(f"v_mfma_f32_16x16x32_bf16 v[{OO+4*i}:{OO+4*i+3}], v[{VFR+4*i}:{VFR+4*i+3}], v[{PP}:{PP+3}], 0")
    a("s_waitcnt vmcnt(0)")
    for i in range(4):
        a(f"v_mfma_f32_16x16x16_bf16 v[{OO+4*i}:{OO+4*i+3}], v[{VMR+2*i}:{VMR+2*i+1}], v[{PP+4}:{PP+5}], v[{OO+4*i}:{OO+4*i+3}]")
    for i in range(4):
        a(f"v_cvt_pk_bf16_f32 v{OO+4*i}, v{OO+4*i}, v{OO+4*i+1}")
        a(f"v_cvt_pk_bf16_f32 v{OO+4*i+1}, v{OO+4*i+2}, v{OO+4*i+3}")
        a(f"ds_write_b64 v{vOW}, v[{OO+4*i}:{OO+4*i+1}] offset:{32*i}")
    a("s_waitcnt lgkmcnt(0)")
    a("s_barrier")
    for qt in range(2):
        for ks in range(4):
            a(f"ds_read_b128 v[{OB+16*qt+4*ks}:{OB+16*qt+4*ks+3}], v{vOR} offset:{qt*16*ORS+64*ks}")
    a(f"v_add_u32 v{vT+2}, {16*65536}, v{vEPW}")
    a("s_waitcnt lgkmcnt(0)")
    def epst(qt, p):
        d = DD + (qt*8+2*p)*4
        H_ = OO + 8*((qt*4+p) & 1)
        for i in range(4):
            a(f"v_cvt_pk_bf16_f32 v{H_+i}, v{d+2*i}, v{d+2*i+1}")
            a(f"v_lshlrev_b32 v{SS}, 16, v{H_+i}")
            a(f"v_and_b32 v{SS+1}, 0xffff0000, v{H_+i}")
            a(f"v_sub_f32 v{d+2*i}, v{d+2*i}, v{SS}")
            a(f"v_sub_f32 v{d+2*i+1}, v{d+2*i+1}, v{SS+1}")
            a(f"v_cvt_pk_bf16_f32 v{H_+4+i}, v{d+2*i}, v{d+2*i+1}")
        a(f"global_store_dwordx4 v{vEPW if qt==0 else vT+2}, v[{H_}:{H_+3}], s[{sEP}:{sEP+1}] offset:{64*p} {sc}")
        a(f"global_store_dwordx4 v{vEPW if qt==0 else vT+2}, v[{H_+4}:{H_+7}], s[{sEP}:{sEP+1}] offset:{1024+64*p} {sc}")
    for qt in range(2):
        for p in range(4):
            for tau in range(2):
                d = DD + (qt*8+2*p+tau)*4
                for ks in range(4):
                    c = "0" if ks==0 else f"v[{d}:{d+3}]"
                    a(f"v_mfma_f32_16x16x32_bf16 v[{d}:{d+3}], a[{WOF(2*p+tau,ks)}:{WOF(2*p+tau,ks)+3}], v[{OB+16*qt+4*ks}:{OB+16*qt+4*ks+3}], {c}")
            if p > 0 or qt > 0:
                pq, pp = (qt, p-1) if p > 0 else (qt-1, 3)
                epst(pq, pp)
    epst(1, 3)
    a(f"s_add_u32 s{sSEQ}, s{sSEQ}, 1")
    a("s_waitcnt vmcnt(0)")
    a("s_barrier")
    set_flag(a, sFLG, sSEQ, sc)
    if TS_ENABLED[0]:
        a(f"s_add_u32 s76, s76, 1")
        TS(a, "s76")
    poll_flags32(a, sFLG, sSEQ)
    RB = 96
    a(f"v_mov_b32 v{vT+2}, v{vEPR}")
    RR = [40+4*i for i in range(14)] + [OB, OB+4]
    for i in range(16):
        a(f"global_load_dwordx4 v[{RR[i]}:{RR[i]+3}], v{vT+2}, s[{sEP}:{sEP+1}] sc1")
        if i < 15: a(f"v_add_u32 v{vT+2}, 4096, v{vT+2}")
    for i in range(16):
        a(f"s_waitcnt vmcnt({15-i})")
        c = "0" if i == 0 else f"v[{DD}:{DD+3}]"
        a(f"v_mfma_f32_16x16x32_bf16 v[{DD}:{DD+3}], v[{SEL}:{SEL+3}], v[{RR[i]}:{RR[i]+3}], {c}")
    X=DD+8
    a(f"v_permlane32_swap_b32 v{DD}, v{DD+2}")
    a(f"v_permlane32_swap_b32 v{DD+1}, v{DD+3}")
    rnd_pair(a, DD)
    a(f"v_pk_mul_f32 v[{DD}:{DD+1}], v[{DD}:{DD+1}], v[{vCON}:{vCON+1}]")
    rnd_pair(a, DD)
    a(f"v_lshlrev_b32 v{X}, 16, v{vT+10}")
    a(f"v_and_b32 v{X+1}, 0xffff0000, v{vT+10}")
    a(f"v_pk_add_f32 v[{X}:{X+1}], v[{X}:{X+1}], v[{DD}:{DD+1}]")
    a(f"v_cvt_pk_bf16_f32 v{DD+4}, v{X}, v{X+1}")
    a(f"v_add_u32 v{DD+5}, {WS_X1}, v{vT+9}")
    a(f"global_store_dword v{DD+5}, v{DD+4}, s[{S_WS}:{S_WS+1}] sc1")
    a(f"v_lshlrev_b32 v{X}, 16, v{DD+4}")
    a(f"v_and_b32 v{X+1}, 0xffff0000, v{DD+4}")
    m=DD+10; q=DD+12; t=DD+16
    a(f"v_add_f32 v{m}, v{X}, v{X+1}")
    wg_sum(a, m, t, 0)
    set_flag(a, sFRE, sSEQ, sc)
    a(f"v_mul_f32 v{m}, {f2u(1/512)}, v{m}")
    a(f"v_sub_f32 v{q}, v{X}, v{m}")
    a(f"v_sub_f32 v{q+1}, v{X+1}, v{m}")
    a(f"v_mul_f32 v{q}, v{q}, v{q}")
    a(f"v_fmac_f32 v{q}, v{q+1}, v{q+1}")
    wg_sum(a, q, t, 1)
    a(f"v_mul_f32 v{q}, {f2u(1/512)}, v{q}")
    rnd1(a, q)
    a(f"v_add_f32 v{q}, {f2u(1e-5)}, v{q}")
    rnd1(a, q)
    a(f"v_sqrt_f32 v{q}, v{q}")
    rnd1(a, q)
    a(f"v_rcp_f32 v{q}, v{q}")
    rnd1(a, m)
    H=DD
    a(f"v_sub_f32 v{H}, v{X}, v{m}")
    a(f"v_sub_f32 v{H+1}, v{X+1}, v{m}")
    rnd_pair(a, H)
    a(f"v_mul_f32 v{H}, v{H}, v{q}")
    a(f"v_mul_f32 v{H+1}, v{H+1}, v{q}")
    rnd_pair(a, H)
    a(f"v_pk_mul_f32 v[{H}:{H+1}], v[{H}:{H+1}], v[{vCON+4}:{vCON+5}]")
    rnd_pair(a, H)
    a(f"v_pk_add_f32 v[{H}:{H+1}], v[{H}:{H+1}], v[{vCON+2}:{vCON+3}]")
    a(f"v_cvt_pk_bf16_f32 v{DD+4}, v{H}, v{H+1}")
    a(f"v_add_u32 v{DD+5}, {WS_H2}, v{vT+9}")
    a(f"global_store_dword v{DD+5}, v{DD+4}, s[{S_WS}:{S_WS+1}] sc1")
    a(f"v_lshlrev_b32 v{H}, 16, v{DD+4}")
    a(f"v_and_b32 v{H+1}, 0xffff0000, v{DD+4}")
    a(f"v_mul_f32 v{m}, v{H}, v{vCON+8}")
    a(f"v_fmac_f32 v{m}, v{H+1}, v{vCON+9}")
    a(f"v_pk_mul_f32 v[{H}:{H+1}], v[{H}:{H+1}], v[{vCON+6}:{vCON+7}]")
    rnd_pair(a, H)
    a(f"v_pk_add_f32 v[{H}:{H+1}], v[{H}:{H+1}], v[{X}:{X+1}]")
    a(f"v_cvt_pk_bf16_f32 v{DD+4}, v{H}, v{H+1}")
    a(f"global_store_dword v{vT+9}, v{DD+4}, s[{S_OUT}:{S_OUT+1}] sc1")
    a("s_waitcnt vmcnt(0)")
    wg_sum(a, m, t, 2)
    rnd1(a, m)
    a(f"v_ashrrev_i32 v{t}, 31, v{m}")
    a(f"v_or_b32 v{t}, 0x80000000, v{t}")
    a(f"v_xor_b32 v{m}, v{m}, v{t}")
    a(f"v_and_b32 v{m}, 0xffff0000, v{m}")
    a(f"s_sub_u32 s{sT+5}, {2047+4096}, s{sT+4}")
    a(f"v_or_b32 v{m}, s{sT+5}, v{m}")
    a(f"s_lshl_b32 s{sT+4}, s{sT+4}, 2")
    a(f"s_add_u32 s{sT+4}, s{sT+4}, {WS_R}")
    a(f"v_mov_b32 v{t}, s{sT+4}")
    a("s_mov_b64 exec, 1")
    a(f"global_store_dword v{t}, v{m}, s[{S_WS}:{S_WS+1}] sc1")
    a("s_mov_b64 exec, -1")
    if TS_ENABLED[0]:
        a(f"s_add_u32 s76, s76, 1")
        TS(a, "s76")
    a(f"s_add_u32 s{sSEG}, s{sSEG}, 7")
    a(f"s_cmp_lt_u32 s{sSEG}, 64")
    a.flush_hazards()
    a(f"s_cbranch_scc1 {lloop}")
```

```python
from asmlib import *
from layout import *
from bulk import *
import ef
from ef import vL, vG, vC, vL16, vT, WDF
GF = lambda ks: 128 + 4*ks
UF = lambda ks: 192 + 4*ks

def ffn_preload(a):
    a("s_barrier")
    lskip = a.newlabel("ffn_skip1")
    a(f"s_cmp_ge_u32 s{S_VR}, 22")
    a(f"s_cbranch_scc1 {lskip}")
    lane_ids(a, 2, 3, 4)
    a("v_lshrrev_b32 v5, 1, v4")
    a("v_xor_b32 v5, v5, v3")
    a(f"s_lshl_b32 s{sT+6}, s{S_VR}, 7")
    for (o, x, sm) in ((6, 0, 40), (7, 4, 42)):
        a(f"v_xor_b32 v8, {x}, v5")
        a(f"v_cmp_gt_u32 s[{sm}:{sm+1}], 4, v8")
        a("v_and_b32 v8, 3, v8")
        a("v_lshlrev_b32 v8, 5, v8")
        a("v_and_b32 v9, 1, v4")
        a("v_lshl_add_u32 v8, v9, 4, v8")
        a(f"v_add_u32 v8, s{sT+6}, v8")
        a("v_subrev_u32 v9, 128, v8")
        a("v_cmp_lt_u32 vcc, 2736, v8")
        a("v_cndmask_b32 v8, v8, v9, vcc")
        a(f"s_mov_b32 s{sT}, 2752")
        a(f"v_mad_u32_u24 v{o}, v3, s{sT}, v8")
    a(f"s_mul_i32 s{sT}, s{S_WAVE}, {128*2752}")
    a(f"s_add_u32 s{sT+2}, s{S_WG}, s{sT}")
    a(f"s_addc_u32 s{sT+3}, s{S_WG+1}, 0")
    a(f"s_add_u32 s{sT+4}, s{S_WU}, s{sT}")
    a(f"s_addc_u32 s{sT+5}, s{S_WU+1}, 0")
    a(f"s_lshl_b32 s{sT+1}, s{S_WAVE}, 15")
    for i in range(32):
        var = (i >> 1) & 1
        sm = 42 if var else 40
        a(f"s_add_u32 m0, s{sT+1}, {i*1024}")
        a(f"s_mov_b64 exec, s[{sm}:{sm+1}]")
        a(f"global_load_lds_dwordx4 v{6+var}, s[{sT+2}:{sT+3}]")
        a(f"s_not_b64 exec, s[{sm}:{sm+1}]")
        a(f"global_load_lds_dwordx4 v{6+var}, s[{sT+4}:{sT+5}]")
        if i < 31:
            a(f"s_add_u32 s{sT+2}, s{sT+2}, {4*2752}")
            a(f"s_addc_u32 s{sT+3}, s{sT+3}, 0")
            a(f"s_add_u32 s{sT+4}, s{sT+4}, {4*2752}")
            a(f"s_addc_u32 s{sT+5}, s{sT+5}, 0")
        if i == 24:
            a("s_waitcnt vmcnt(20)")
    a("s_mov_b64 exec, -1")
    cp = tr_base(a, 10, 2)
    a(f"v_lshl_add_u32 v10, v{cp}, 3, v10")
    a("s_waitcnt vmcnt(0)")
    a("s_barrier")
    for (F, add) in ((GF, 0), (UF, 4)):
        a(f"s_add_u32 s{sT}, s{S_WAVE}, {add}")
        a(f"v_xor_b32 v14, s{sT}, v11")
        a("v_lshl_add_u32 v14, v14, 5, v10")
        a("v_add_u32 v15, 0x10000, v14")
        for ks in range(16):
            for m in range(2):
                a(f"ds_read_b64_tr_b16 a[{F(ks)+2*m}:{F(ks)+2*m+1}], v{14+(ks>>3)} offset:{(ks&7)*8192+m*1024}")
    a("s_waitcnt lgkmcnt(0)")
    a("s_barrier")
    a.label(lskip)
    a.flush_hazards()
    lane_ids(a, 2, 3, 4)
    a("v_lshrrev_b32 v5, 1, v2")
    a("v_lshlrev_b32 v5, 10, v5")
    a("v_and_b32 v6, 1, v2")
    a("v_lshl_add_u32 v5, v6, 4, v5")
    a(f"s_lshl_b32 s{sT}, s{S_VR}, 5")
    a(f"s_lshl_b32 s{sT+1}, s{S_WAVE}, 15")
    a(f"s_add_u32 s{sT}, s{sT}, s{sT+1}")
    a(f"s_add_u32 s{sT+2}, s{S_WD}, s{sT}")
    a(f"s_addc_u32 s{sT+3}, s{S_WD+1}, 0")
    a(f"s_lshl_b32 s{sT+1}, s{S_WAVE}, 10")
    for j in range(11):
        l = None
        if j == 10:
            l = a.newlabel("wd3")
            a(f"s_cmp_eq_u32 s{S_WAVE}, 3")
            a(f"s_cbranch_scc1 {l}")
        a(f"s_add_u32 m0, s{sT+1}, {j*4096}")
        a(f"global_load_lds_dwordx4 v5, s[{sT+2}:{sT+3}]")
        a(f"s_add_u32 s{sT+2}, s{sT+2}, {4*32768}")
        a(f"s_addc_u32 s{sT+3}, s{sT+3}, 0")
        if l: a.label(l)
    a("v_lshrrev_b32 v5, 2, v4")
    a("v_lshl_add_u32 v5, v3, 3, v5")
    a("v_lshlrev_b32 v5, 5, v5")
    a("v_and_b32 v6, 3, v4")
    a("v_lshl_add_u32 v5, v6, 3, v5")
    a(f"v_add_u32 v5, s{sT+1}, v5")
    a("s_waitcnt vmcnt(0)")
    for j in range(11):
        for m in range(2):
            a(f"ds_read_b64_tr_b16 v[{WDF+4*j+2*m}:{WDF+4*j+2*m+1}], v5 offset:{j*4096+m*128}")
    a("s_waitcnt lgkmcnt(0)")

def top2_merge(a, m1, m2, p1, p2):
    a(f"v_min_u32 v{p1+2}, v{m1}, v{p1}")
    a(f"v_max_u32 v{m1}, v{m1}, v{p1}")
    a(f"v_max3_u32 v{m2}, v{p1+2}, v{m2}, v{p2}")

def final_stage(a, sc):
    K=32
    sR=44; sS1=45; sS2=46; sMK=48
    a(f"s_mov_b32 s{sR}, 0")
    a(f"s_cmp_eq_u32 s{S_WAVE}, 3")
    a(f"s_cselect_b32 s{sMK}, 0xff000000, 0")
    import os
    a(f"s_cselect_b32 s{sMK+1}, -1, 0")
    lround = a.newlabel("round"); lwrite = a.newlabel("fwrite")
    a.flush_hazards()
    a.label(lround)
    a(f"s_lshl_b32 s{sT}, s{S_WAVE}, 11")
    a(f"s_add_u32 s{sT}, s{sT}, {WS_R}")
    a(f"v_add_u32 v{vT}, s{sT}, v{vL16}")
    m1=K+8; m2=K+9; p1=K+10; p2=K+11
    lk = a.newlabel("keys")
    a(f"s_mov_b32 s{sT+9}, 0")
    a.label(lk)
    a(f"global_load_dwordx4 v[{K}:{K+3}], v{vT}, s[{S_WS}:{S_WS+1}] sc1")
    a(f"global_load_dwordx4 v[{K+4}:{K+7}], v{vT}, s[{S_WS}:{S_WS+1}] offset:1024 sc1")
    a(f"s_add_u32 s{sT+9}, s{sT+9}, 1")
    a(f"s_cmp_gt_u32 s{sT+9}, 0x80000")
    a("s_cbranch_scc1 L_fail")
    a("s_sleep 2")
    a("s_waitcnt vmcnt(0)")
    for i in range(4, 8):
        a(f"v_cndmask_b32 v{K+i}, v{K+i}, 1, s[{sMK}:{sMK+1}]")
    a(f"v_min3_u32 v{m1}, v{K}, v{K+1}, v{K+2}")
    a(f"v_min3_u32 v{m1}, v{m1}, v{K+3}, v{K+4}")
    a(f"v_min3_u32 v{m1}, v{m1}, v{K+5}, v{K+6}")
    a(f"v_min_u32 v{m1}, v{m1}, v{K+7}")
    a(f"v_cmp_eq_u32 vcc, 0, v{m1}")
    a(f"s_cbranch_vccnz {lk}")
    a(f"v_max_u32 v{m1}, v{K}, v{K+1}")
    a(f"v_min_u32 v{m2}, v{K}, v{K+1}")
    for i in range(2, 8):
        a(f"v_med3_u32 v{m2}, v{m1}, v{m2}, v{K+i}")
        a(f"v_max_u32 v{m1}, v{m1}, v{K+i}")
    for sh in (8, 4, 2, 1):
        a(f"v_mov_b32_dpp v{p1}, v{m1} row_ror:{sh} row_mask:0xf bank_mask:0xf")
        a(f"v_mov_b32_dpp v{p2}, v{m2} row_ror:{sh} row_mask:0xf bank_mask:0xf")
        top2_merge(a, m1, m2, p1, p2)
    for sw in ("v_permlane16_swap_b32", "v_permlane32_swap_b32"):
        a(f"v_mov_b32 v{p1}, v{m1}")
        a(f"v_mov_b32 v{p2}, v{m2}")
        a(f"{sw} v{p1}, v{m1}")
        a(f"{sw} v{p2}, v{m2}")
        top2_merge(a, m1, m2, p1, p2)
    a(f"s_lshl_b32 s{sT}, s{S_WAVE}, 3")
    a(f"s_add_u32 s{sT}, s{sT}, {ef.L_RED+64}")
    a(f"v_mov_b32 v{vT}, s{sT}")
    a(f"ds_write_b64 v{vT}, v[{m1}:{m2}]")
    a(f"v_mov_b32 v{vT}, {ef.L_RED+64}")
    a("s_waitcnt lgkmcnt(0)")
    a("s_barrier")
    a(f"ds_read_b128 v[{K}:{K+3}], v{vT}")
    a(f"ds_read_b128 v[{K+4}:{K+7}], v{vT} offset:16")
    a("s_waitcnt lgkmcnt(0)")
    a(f"v_mov_b32 v{m1}, v{K}")
    a(f"v_mov_b32 v{m2}, v{K+1}")
    for i in (2, 4, 6):
        a(f"v_mov_b32 v{p1}, v{K+i}")
        a(f"v_mov_b32 v{p2}, v{K+i+1}")
        top2_merge(a, m1, m2, p1, p2)
    sK1=40; sK2=41; sI1=42; sI2=43
    a(f"v_readfirstlane_b32 s{sK1}, v{m1}")
    a(f"v_readfirstlane_b32 s{sK2}, v{m2}")
    a("s_barrier")
    lgo = a.newlabel("fgo")
    a(f"s_cmp_eq_u32 s{sR}, 0")
    a(f"s_cbranch_scc1 {lgo}")
    a(f"s_cmp_lg_u32 s{sK1}, s{sS1}")
    a(f"s_cbranch_scc1 {lgo}")
    a(f"s_cmp_eq_u32 s{sK2}, s{sS2}")
    a(f"s_cbranch_scc1 {lwrite}")
    a.label(lgo)
    a(f"s_lshl_b32 s{sR+3}, s{sR}, 13")
    for (k, i) in ((sK1, sI1), (sK2, sI2)):
        a(f"s_and_b32 s{i}, s{k}, 0x7ff")
        a(f"s_sub_u32 s{i}, 2047, s{i}")
        a(f"s_lshl_b32 s{i}, s{i}, 10")
    a(f"v_mov_b32 v{vT}, s{sI1}")
    a(f"v_mov_b32 v{vT+1}, s{sI2}")
    a(f"v_and_b32 v{vT+2}, 1, v{vC}")
    a(f"v_cmp_eq_u32 vcc, 1, v{vT+2}")
    a(f"v_cndmask_b32 v{vT+3}, v{vT}, v{vT+1}, vcc")
    lskip = a.newlabel("ffn_s1")
    a(f"s_lshl_b32 s{sT+6}, s{S_VR}, 2")
    a(f"s_add_u32 s{sT+6}, s{sT+6}, s{S_WAVE}")
    a(f"s_cmp_ge_u32 s{sT+6}, 86")
    a(f"s_cbranch_scc1 {lskip}")
    a(f"v_lshl_add_u32 v{vT+4}, v{vG}, 4, v{vT+3}")
    a(f"v_add_u32 v{vT+4}, {WS_H2}, v{vT+4}")
    AFR=48
    for ks in range(16):
        a(f"global_load_dwordx4 v[{AFR+4*ks}:{AFR+4*ks+3}], v{vT+4}, s[{S_WS}:{S_WS+1}] offset:{64*ks} sc1")
    G=K; U=K+4
    for ks in range(16):
        a(f"s_waitcnt vmcnt({15-ks})")
        for (D, F) in ((G, GF), (U, UF)):
            c = "0" if ks == 0 else f"v[{D}:{D+3}]"
            a(f"v_mfma_f32_16x16x32_bf16 v[{D}:{D+3}], v[{AFR+4*ks}:{AFR+4*ks+3}], a[{F(ks)}:{F(ks)+3}], {c}")
    rnd_pair(a, G); rnd_pair(a, U)
    a(f"s_mov_b32 s{sT}, {f2u(-LOG2E)}")
    for r in range(2):
        a(f"v_mul_f32 v{G+2+r}, s{sT}, v{G+r}")
        a(f"v_exp_f32 v{G+2+r}, v{G+2+r}")
        a(f"v_add_f32 v{G+2+r}, 1.0, v{G+2+r}")
        a(f"v_rcp_f32 v{G+2+r}, v{G+2+r}")
        a(f"v_mul_f32 v{G+r}, v{G+r}, v{G+2+r}")
    rnd_pair(a, G)
    a(f"v_pk_mul_f32 v[{G}:{G+1}], v[{G}:{G+1}], v[{U}:{U+1}]")
    for r in range(2):
        a(f"v_mov_b32_dpp v{G+2+r}, v{G+r} quad_perm:[1,0,3,2] row_mask:0xf bank_mask:0xf")
        a(f"v_cvt_pk_bf16_f32 v{G+r}, v{G+r}, v{G+2+r}")
        a(f"v_min_u32 v{G+r}, -2, v{G+r}")
    a(f"s_lshl_b32 s{sT}, s{sT+6}, 5")
    a(f"s_add_u32 s{sT}, s{sT}, {WS_ACT}")
    a(f"s_add_u32 s{sT}, s{sT}, s{sR+3}")
    a(f"v_lshl_add_u32 v{vT+4}, v{vC}, 1, s{sT}")
    a("s_mov_b64 exec, 0x5555")
    a(f"global_store_dword v{vT+4}, v{G}, s[{S_WS}:{S_WS+1}] {sc}")
    a(f"global_store_dword v{vT+4}, v{G+1}, s[{S_WS}:{S_WS+1}] offset:2752 {sc}")
    a("s_mov_b64 exec, -1")
    a.label(lskip)
    a.flush_hazards()
    a(f"s_lshl_b32 s{sT}, s{S_VR}, 5")
    a(f"v_lshl_add_u32 v{vT+5}, v{vC}, 1, s{sT}")
    E=112
    for r, sI in ((0, sI1), (1, sI2)):
        a(f"v_add_u32 v{E+8+r}, s{sI}, v{vT+5}")
        a(f"v_add_u32 v{vT+6}, {WS_H2}, v{E+8+r}")
        a(f"global_load_ushort v{E+r}, v{vT+6}, s[{S_WS}:{S_WS+1}] sc1")
        a(f"v_add_u32 v{vT+6}, {WS_X1}, v{E+8+r}")
        a(f"global_load_ushort v{E+2+r}, v{vT+6}, s[{S_WS}:{S_WS+1}] sc1")
    a(f"v_lshlrev_b32 v{vT+6}, 1, v{vT+5}")
    a(f"v_add_u32 v{vT+6}, {WS_MOD+5*2048}, v{vT+6}")
    a(f"global_load_dword v{E+4}, v{vT+6}, s[{S_WS}:{S_WS+1}] sc1")
    a(f"v_mul_u32_u24 v{vT+4}, 2752, v{vT+2}")
    a(f"v_lshl_add_u32 v{vT+4}, v{vG}, 4, v{vT+4}")
    a(f"s_lshl_b32 s{sT}, s{S_WAVE}, 6")
    a(f"s_add_u32 s{sT}, s{sT}, {WS_ACT}")
    a(f"s_add_u32 s{sT}, s{sT}, s{sR+3}")
    a(f"v_add_u32 v{vT+4}, s{sT}, v{vT+4}")
    a(f"s_cmp_eq_u32 s{S_WAVE}, 3")
    a(f"s_cselect_b32 s{sT+7}, {9*256}, {10*256}" if False else f"s_cselect_b32 s{sT+7}, 0, 256")
    a(f"v_add_u32 v{vT+6}, s{sT+7}, v{vT+4}")
    lp = a.newlabel("actpoll")
    a(f"s_mov_b32 s{sT+9}, 0")
    a.label(lp)
    for j in range(10):
        a(f"global_load_dwordx4 v[{AFR+4*j}:{AFR+4*j+3}], v{vT+4}, s[{S_WS}:{S_WS+1}] offset:{256*j} sc1")
    a(f"global_load_dwordx4 v[{AFR+40}:{AFR+43}], v{vT+6}, s[{S_WS}:{S_WS+1}] offset:{256*9} sc1")
    a(f"s_add_u32 s{sT+9}, s{sT+9}, 1")
    a(f"s_cmp_gt_u32 s{sT+9}, 0x80000")
    a("s_cbranch_scc1 L_fail")
    a("s_waitcnt vmcnt(0)")
    a(f"v_max3_u32 v{vT+7}, v{AFR}, v{AFR+1}, v{AFR+2}")
    for r in range(AFR+3, AFR+43, 2):
        a(f"v_max3_u32 v{vT+7}, v{vT+7}, v{r}, v{r+1}")
    a(f"v_max_u32 v{vT+7}, v{vT+7}, v{AFR+43}")
    a(f"v_cmp_eq_u32 vcc, -1, v{vT+7}")
    a(f"s_cbranch_vccnz {lp}")
    Y=K
    for j in range(11):
        l = None
        if j == 10:
            l = a.newlabel("y3")
            a(f"s_cmp_eq_u32 s{S_WAVE}, 3")
            a(f"s_cbranch_scc1 {l}")
        c = "0" if j == 0 else f"v[{Y}:{Y+3}]"
        a(f"v_mfma_f32_16x16x32_bf16 v[{Y}:{Y+3}], v[{AFR+4*j}:{AFR+4*j+3}], v[{WDF+4*j}:{WDF+4*j+3}], {c}")
        if l: a.label(l)
    a.flush_hazards()
    a(f"s_lshl_b32 s{sT}, s{S_WAVE}, 7")
    a(f"s_add_u32 s{sT}, s{sT}, {ef.L_RED+128}")
    a(f"v_lshl_add_u32 v{vT+4}, v{vC}, 3, s{sT}")
    a("s_mov_b64 exec, 0xffff")
    a(f"ds_write_b64 v{vT+4}, v[{Y}:{Y+1}]")
    a("s_mov_b64 exec, -1")
    a(f"v_lshlrev_b32 v{vT+4}, 3, v{vC}")
    a(f"v_add_u32 v{vT+4}, {ef.L_RED+128}, v{vT+4}")
    a("s_waitcnt lgkmcnt(0)")
    a("s_barrier")
    ldone = a.newlabel("fdone")
    a(f"s_cmp_lg_u32 s{S_WAVE}, 0")
    a(f"s_cbranch_scc1 {ldone}")
    for w in range(4):
        a(f"ds_read_b64 v[{Y+2*w}:{Y+2*w+1}], v{vT+4} offset:{128*w}")
    a("s_waitcnt lgkmcnt(0)")
    a(f"v_pk_add_f32 v[{Y}:{Y+1}], v[{Y}:{Y+1}], v[{Y+2}:{Y+3}]")
    a(f"v_pk_add_f32 v[{Y+4}:{Y+5}], v[{Y+4}:{Y+5}], v[{Y+6}:{Y+7}]")
    a(f"v_pk_add_f32 v[{Y}:{Y+1}], v[{Y}:{Y+1}], v[{Y+4}:{Y+5}]")
    rnd_pair(a, Y)
    for r, k in ((0, sK1), (1, sK2)):
        a(f"s_and_b32 s{sT}, s{k}, 0xffff0000")
        a(f"s_xor_b32 s{sT+1}, s{sT}, 0x80000000")
        a(f"s_not_b32 s{sT+2}, s{sT}")
        a(f"s_and_b32 s{sT+2}, s{sT+2}, 0xffff0000")
        a(f"s_bitcmp1_b32 s{sT}, 31")
        a(f"s_cselect_b32 s{sT}, s{sT+1}, s{sT+2}")
        a(f"v_mov_b32 v{Y+2+r}, s{sT}")
        a(f"v_mul_f32 v{Y+2+r}, {f2u(-LOG2E)}, v{Y+2+r}")
        a(f"v_exp_f32 v{Y+2+r}, v{Y+2+r}")
        a(f"v_add_f32 v{Y+2+r}, 1.0, v{Y+2+r}")
        a(f"v_rcp_f32 v{Y+2+r}, v{Y+2+r}")
    rnd_pair(a, Y+2)
    a(f"v_pk_mul_f32 v[{Y}:{Y+1}], v[{Y}:{Y+1}], v[{Y+2}:{Y+3}]")
    rnd_pair(a, Y)
    for r in range(4): a(f"v_lshlrev_b32 v{E+r}, 16, v{E+r}")
    a(f"v_pk_add_f32 v[{Y}:{Y+1}], v[{Y}:{Y+1}], v[{E}:{E+1}]")
    rnd_pair(a, Y)
    a(f"v_mul_f32 v{Y}, v{Y}, v{E+4}")
    a(f"v_mul_f32 v{Y+1}, v{Y+1}, v{E+4}")
    rnd_pair(a, Y)
    a(f"v_pk_add_f32 v[{Y}:{Y+1}], v[{Y}:{Y+1}], v[{E+2}:{E+3}]")
    a(f"v_cvt_pk_bf16_f32 v{E+10}, v{Y}, v{Y+1}")
    a(f"v_lshrrev_b32 v{E+11}, 16, v{E+10}")
    a.label(ldone)
    a.flush_hazards()
    a(f"s_cmp_lg_u32 s{sR}, 0")
    a(f"s_cbranch_scc1 {lwrite}")
    a(f"s_mov_b32 s{sR}, 1")
    a(f"s_mov_b32 s{sS1}, s{sK1}")
    a(f"s_mov_b32 s{sS2}, s{sK2}")
    a(f"s_mov_b64 s[{sMK}:{sMK+1}], 0")
    a(f"s_branch {lround}")
    a.label(lwrite)
    lend = a.newlabel("fend")
    a(f"s_cmp_lg_u32 s{S_WAVE}, 0")
    a(f"s_cbranch_scc1 {lend}")
    a("s_mov_b64 exec, 0xffff")
    a(f"global_store_short v{E+8}, v{E+10}, s[{S_OUT}:{S_OUT+1}] sc1")
    a(f"global_store_short v{E+9}, v{E+11}, s[{S_OUT}:{S_OUT+1}] sc1")
    a("s_mov_b64 exec, -1")
    a.label(lend)
```

```python
import sys
from asmlib import *
from layout import *
import bulk, ef, final
import chain7 as chain
from bulk import S_XCC, sT
KNAME = "adaLN_cond__memory_aug_recurrent_mem_tr__moe_arch_mod__prompt"
def gen(force_fallback=False, dump=False):
    a = Asm()
    bulk.startup(a)
    TS(a, 0)
    a(f"s_cmp_lt_u32 s{S_TK}, 224")
    a("s_cbranch_scc1 L_bulk")
    a(f"s_cmp_eq_u32 s{S_TK}, 0xffff")
    a("s_cbranch_scc1 L_chain")
    bulk.decide(a, force_fallback)
    a(f"s_add_u32 s{S_VR}, s{sT+8}, s{S_TK}")
    a(f"s_sub_u32 s{S_VR}, s{S_VR}, 224")
    a(f"s_mov_b32 s{S_VX}, 0")
    a(f"s_cmp_ge_u32 s{S_VR}, 32")
    a("s_cbranch_scc1 L_fail")
    a.label("L_chain")
    a.flush_hazards()
    chain.lane_consts(a)
    chain.setup_weights(a)
    bulk.decide(a, force_fallback)
    TS(a, 1, vt=0)
    a(f"s_cmp_eq_u32 s{S_MODE}, 0")
    a("s_cbranch_scc1 L_chain0")
    chain.chain_main(a, "sc1", dump=dump)
    a("s_endpgm")
    a.label("L_chain0")
    a.flush_hazards()
    chain.chain_main(a, "", dump=dump)
    TS(a, 2, vt=0)
    if TS_ENABLED[0]:
        a(f"s_sub_u32 s70, s{chain.sT0+2}, s{chain.sT0}")
        a("v_mov_b32 v1, 0")
        a("v_mov_b32 v2, s70")
        a(f"global_store_dword v1, v2, s[{S_DBG}:{S_DBG+1}] offset:64")
    a("s_endpgm")
    a.label("L_bulk")
    a.flush_hazards()
    sB = 50
    a(f"s_sub_u32 s{sB}, s{S_TK}, 32")
    TS(a, 1)
    a(f"s_cmp_lt_u32 s{S_TK}, 32")
    a("s_cbranch_scc1 L_front")
    a(f"s_cmp_ge_u32 s{sB}, 128")
    a("s_cbranch_scc1 L_gonly")
    bulk.ln1_pre(a, sB)
    n = bulk.gemm_pre(a, sB)
    bulk.ln1_stage(a, sB, n)
    a("s_branch L_gemm")
    a.label("L_gonly")
    a.flush_hazards()
    bulk.gemm_pre(a, sB)
    a.label("L_gemm")
    a.flush_hazards()
    TS(a, 2)
    bulk.gemm_stage(a)
    TS(a, 4)
    a("s_branch L_ef")
    a.label("L_front")
    a.flush_hazards()
    bulk.mod_stage(a)
    TS(a, 8)
    a.label("L_ef")
    a.flush_hazards()
    bulk.decide(a, force_fallback)
    a(f"s_cmp_eq_u32 s{S_MODE}, 0")
    a("s_cbranch_scc1 L_efn")
    a(f"s_lshr_b32 s{S_VX}, s{S_TK}, 5")
    a(f"s_add_u32 s{S_VX}, s{S_VX}, 1")
    a(f"s_and_b32 s{S_VR}, s{S_TK}, 31")
    a.label("L_efn")
    a(f"s_cmp_ge_u32 s{S_VR}, 32")
    a("s_cbranch_scc1 L_fail")
    a(f"s_sub_u32 s{sT}, s{S_VX}, 1")
    a(f"s_cmp_ge_u32 s{sT}, 7")
    a("s_cbranch_scc1 L_fail")
    a(f"s_cmp_lg_u32 s{S_VX}, {FIN_UNIT}")
    a("s_cbranch_scc1 L_efs")
    final.ffn_preload(a)
    a.label("L_efs")
    a.flush_hazards()
    ef.ef_setup(a)
    TS(a, 5)
    a(f"s_cmp_lg_u32 s{S_MODE}, 0")
    a("s_cbranch_scc1 L_ef1")
    for sc, lab in (("", None), ("sc1", "L_ef1")):
        if lab: a.label(lab); a.flush_hazards()
        ef.ef_loop(a, sc)
        a(f"s_cmp_lg_u32 s{S_VX}, {FIN_UNIT}")
        a("s_cbranch_scc1 L_exit")
        TS(a, 6)
        final.final_stage(a, sc)
        TS(a, 7)
        a("s_endpgm")
    a.label("L_fail")
    a("s_mov_b64 exec, -1")
    a("v_mov_b32 v1, 0")
    a("v_mov_b32 v2, 0xdead")
    a(f"global_store_dword v1, v2, s[{S_DBG}:{S_DBG+1}] offset:252")
    a.label("L_exit")
    a("s_endpgm")
    return a
def write(path, a):
    hdr = open(f"cdna_kernels/{KNAME}.s.ref").read().split("; Override launch geometry")[0]
    txt = hdr + f"""; @launch grid=(256,1,1) block=(256,1,1) lds=163840
.amdgcn_target "amdgcn-amd-amdhsa--gfx950"
.text
.globl {KNAME}_kernel
.p2align 8
.type {KNAME}_kernel,@function
{KNAME}_kernel:
{a.text()}
.section .rodata,"a"
.p2align 6
.amdhsa_kernel {KNAME}_kernel
  .amdhsa_next_free_vgpr 512
  .amdhsa_next_free_sgpr 102
  .amdhsa_accum_offset 256
  .amdhsa_group_segment_fixed_size 0
  .amdhsa_kernarg_size 136
  .amdhsa_user_sgpr_count 2
  .amdhsa_user_sgpr_kernarg_segment_ptr 1
  .amdhsa_system_sgpr_workgroup_id_x 1
.end_amdhsa_kernel
"""
    open(path, "w").write(txt)
if __name__ == "__main__":
    fb = "fb" in sys.argv; dump = "dump" in sys.argv
    TS_ENABLED[0] = "ts" in sys.argv
    a = gen(fb, dump)
    print("instrs", a.ninstr, "nops", a.nops_inserted)
    out = [x for x in sys.argv[1:] if x.endswith(".s")]
    write(out[0] if out else f"cdna_kernels/{KNAME}.s", a)
```

```python
from asmlib import *
from layout import *
S_XCC=39
sT=70
F_HALL = F_FFN

def load_args(a):
    for (reg, off) in ((S_WS,K_WS),(S_DBG,K_DBG),(S_WQ,K_WQ),(S_WK,K_WK),(S_WV,K_WV),(S_WO,K_WO),(S_MEM0,K_MEM0),(S_X,K_X),(S_OUT,K_OUT),
                       (S_WMOD,K_WMOD),(S_C,K_C),(S_WR,K_WR),(S_WG,K_WG),(S_WU,K_WU),(S_WD,K_WD)):
        a(f"s_load_dwordx2 s[{reg}:{reg+1}], s[0:1], {off}")

def startup(a, force_fallback=False):
    a("s_cmp_ge_u32 s2, 256")
    a("s_cbranch_scc1 L_exit")
    load_args(a)
    a(f"s_mov_b32 s{S_WGID}, s2")
    a(f"s_getreg_b32 s{S_XCC}, hwreg(HW_REG_XCC_ID, 0, 4)")
    a("v_lshrrev_b32 v1, 6, v0")
    a(f"v_readfirstlane_b32 s{S_WAVE}, v1")
    a(f"s_and_b32 s{S_XCC}, s{S_XCC}, 7")
    a(f"s_lshl_b32 s{sT}, s{S_XCC}, 3")
    a(f"s_lshl_b64 s[{sT+2}:{sT+3}], 1, s{sT}")
    a("v_mov_b32 v1, 0")
    a("v_mov_b32 v2, 1")
    a(f"v_mov_b32 v10, s{sT+2}")
    a(f"v_mov_b32 v11, s{sT+3}")
    a("v_mov_b32 v9, 0xffff")
    a("v_and_b32 v3, 63, v0")
    a(f"s_lshl_b32 s{sT+1}, s{S_WGID}, 8")
    a(f"v_lshl_add_u32 v4, v3, 2, s{sT+1}")
    a("s_waitcnt lgkmcnt(0)")
    a(f"s_cmp_lg_u32 s{S_WAVE}, 0")
    a("s_cbranch_scc1 L_st1")
    a("s_mov_b64 exec, 1")
    a(f"s_cmp_lg_u32 s{S_XCC}, 0")
    a("s_cbranch_scc1 L_st0")
    a(f"global_atomic_add v8, v1, v2, s[{S_DBG}:{S_DBG+1}] sc0")
    a("s_waitcnt vmcnt(0)")
    a("v_cmp_gt_u32 vcc, 32, v8")
    a("s_cbranch_vccnz L_st0b")
    a.label("L_st0")
    a(f"global_atomic_add_x2 v[12:13], v1, v[10:11], s[{S_DBG}:{S_DBG+1}] offset:{D_PACK} sc0")
    a("s_waitcnt vmcnt(0)")
    a(f"v_lshrrev_b64 v[14:15], s{sT}, v[12:13]")
    a("v_and_b32 v8, 0xff, v14")
    a("v_sad_u8 v9, v12, 0, 0")
    a("v_sad_u8 v9, v13, 0, v9")
    a.label("L_st0b")
    a("ds_write_b64 v1, v[8:9]")
    a("s_mov_b64 exec, -1")
    a("s_branch L_st3")
    a.label("L_st1")
    a(f"s_cmp_lg_u32 s{S_WAVE}, 1")
    a("s_cbranch_scc1 L_st2")
    a("v_mov_b32 v6, 0")
    a(f"global_store_dword v4, v6, s[{S_WS}:{S_WS+1}] sc1")
    a("v_mov_b32 v6, -1")
    a(f"v_add_u32 v4, {WS_MB}, v4")
    a(f"global_store_dword v4, v6, s[{S_WS}:{S_WS+1}] sc1")
    a("s_branch L_st3")
    a.label("L_st2")
    a(f"s_lshl_b32 s{sT+1}, s{S_WGID}, 11")
    a(f"s_and_b32 s{sT}, s{S_WAVE}, 1")
    a(f"s_lshl_b32 s{sT}, s{sT}, 10")
    a(f"s_add_u32 s{sT+1}, s{sT+1}, s{sT}")
    a(f"s_add_u32 s{sT+1}, s{sT+1}, {WS_PB}")
    a(f"v_lshl_add_u32 v5, v3, 4, s{sT+1}")
    for r in range(12, 16): a(f"v_mov_b32 v{r}, {SENT}")
    a(f"global_store_dwordx4 v5, v[12:15], s[{S_WS}:{S_WS+1}] sc1")
    a.label("L_st3")
    a("s_waitcnt vmcnt(0) lgkmcnt(0)")
    a("s_barrier")
    a("v_mov_b32 v1, 0")
    a("ds_read_b64 v[8:9], v1")
    a(f"s_cmp_lg_u32 s{S_WAVE}, 1")
    a("s_cbranch_scc1 L_st4")
    a("s_mov_b64 exec, 1")
    a(f"v_mov_b32 v1, {D_TOTAL}")
    a(f"global_atomic_add v1, v2, s[{S_DBG}:{S_DBG+1}]")
    a("s_mov_b64 exec, -1")
    a.label("L_st4")
    a("s_waitcnt lgkmcnt(0)")
    a(f"v_readfirstlane_b32 s{S_RANK}, v8")
    a(f"v_readfirstlane_b32 s{S_TK}, v9")
    a(f"s_mov_b32 s{S_VX}, s{S_XCC}")
    a(f"s_mov_b32 s{S_VR}, s{S_RANK}")
    a("s_barrier")

def decide(a, force_fallback=False):
    poll_counter(a, D_TOTAL, 256, vt=2)
    a("v_mov_b32 v1, 0")
    a(f"global_load_dwordx2 v[4:5], v1, s[{S_DBG}:{S_DBG+1}] offset:{D_PACK} sc1")
    a(f"global_load_dword v6, v1, s[{S_DBG}:{S_DBG+1}] sc1")
    a("s_waitcnt vmcnt(0)")
    a(f"v_readfirstlane_b32 s{sT+8}, v6")
    a("v_xor_b32 v4, 0x20202000, v4")
    a("v_xor_b32 v5, 0x20202020, v5")
    a("v_xor_b32 v6, 32, v6")
    a("v_or3_b32 v4, v4, v5, v6")
    a(f"v_readfirstlane_b32 s{S_MODE}, v4")
    a(f"s_cmp_lg_u32 s{S_MODE}, 0")
    a(f"s_cselect_b32 s{S_MODE}, 1, 0")
    if force_fallback:
        a(f"s_mov_b32 s{S_MODE}, 1")

def poll_counter(a, off, val, vt=1, base=S_DBG, sleep=4):
    l = a.newlabel("poll"); ld = a.newlabel("polld")
    a(f"s_cmp_lg_u32 s{S_WAVE}, 0")
    a(f"s_cbranch_scc1 {ld}")
    a(f"v_mov_b32 v{vt}, {off}")
    a(f"s_mov_b32 s{sT+9}, 0")
    a("s_mov_b64 exec, 1")
    a.label(l)
    a(f"global_load_dword v{vt+1}, v{vt}, s[{base}:{base+1}] sc1")
    a(f"s_add_u32 s{sT+9}, s{sT+9}, 1")
    a(f"s_cmp_gt_u32 s{sT+9}, 0x80000")
    a("s_cbranch_scc1 L_fail")
    a("s_waitcnt vmcnt(0)")
    a(f"v_cmp_le_u32 vcc, {val}, v{vt+1}")
    a(f"s_cbranch_vccnz {ld}")
    if sleep: a(f"s_sleep {sleep}")
    a(f"s_branch {l}")
    a.label(ld)
    a("s_mov_b64 exec, -1")
    a("s_barrier")

def signal_add(a, off, vt=1, base=S_DBG):
    l = a.newlabel("sig")
    a(f"s_cmp_lg_u32 s{S_WAVE}, 0")
    a(f"s_cbranch_scc1 {l}")
    a(f"v_mov_b32 v{vt}, {off}")
    a(f"v_mov_b32 v{vt+1}, 1")
    a("s_mov_b64 exec, 1")
    a(f"global_atomic_add v{vt}, v{vt+1}, s[{base}:{base+1}]")
    a("s_mov_b64 exec, -1")
    a.label(l)

def lane_ids(a, l, g, c):
    a(f"v_mbcnt_lo_u32_b32 v{l}, -1, 0")
    a(f"v_mbcnt_hi_u32_b32 v{l}, -1, v{l}")
    a(f"v_lshrrev_b32 v{g}, 4, v{l}")
    a(f"v_and_b32 v{c}, 15, v{l}")

def stage_rows(a, sbase, row_shift_or_stride, nrows, lds_base, v0, clamp12=False):
    stride = row_shift_or_stride
    l=v0; g=v0+1; c=v0+2; t=v0+3; o0=v0+4; o1=v0+5
    lane_ids(a, l, g, c)
    a(f"v_lshrrev_b32 v{t}, 1, v{c}")
    a(f"v_xor_b32 v{t}, v{t}, v{g}")
    for (o, x) in ((o0, 0), (o1, 4)):
        a(f"v_xor_b32 v{o}, {x}, v{t}")
        if clamp12:
            a(f"v_subrev_u32 v{l}, 2, v{o}")
            a(f"v_cmp_lt_u32 vcc, 5, v{o}")
            a(f"v_cndmask_b32 v{o}, v{o}, v{l}, vcc")
        a(f"v_lshlrev_b32 v{o}, 5, v{o}")
        a(f"v_and_b32 v{l}, 1, v{c}")
        a(f"v_lshl_add_u32 v{o}, v{l}, 4, v{o}")
        a(f"s_mov_b32 s{sT}, {stride}")
        a(f"v_mad_u32_u24 v{o}, v{g}, s{sT}, v{o}")
    per = nrows // 4
    a(f"s_mul_i32 s{sT}, s{S_WAVE}, {per*stride}")
    a(f"s_add_u32 s{sT+2}, s{sbase}, s{sT}")
    a(f"s_addc_u32 s{sT+3}, s{sbase+1}, 0")
    a(f"s_mul_i32 s{sT+1}, s{S_WAVE}, {per*256}")
    a(f"s_add_u32 s{sT+1}, s{sT+1}, {lds_base}")
    n = per // 4
    for i in range(n):
        a(f"s_add_u32 m0, s{sT+1}, {i*1024}")
        a(f"global_load_lds_dwordx4 v{o1 if (i>>1)&1 else o0}, s[{sT+2}:{sT+3}]")
        if i < n-1:
            a(f"s_add_u32 s{sT+2}, s{sT+2}, {4*stride}")
            a(f"s_addc_u32 s{sT+3}, s{sT+3}, 0")
    return n

def tr_base(a, dst, v0, unit_expr=None):
    l=v0; g=v0+1; c=v0+2; t=v0+3
    lane_ids(a, l, g, c)
    a(f"v_lshrrev_b32 v{t}, 2, v{c}")
    a(f"v_lshl_add_u32 v{dst}, v{g}, 3, v{t}")
    a(f"v_lshlrev_b32 v{dst}, 8, v{dst}")
    a(f"v_and_b32 v{l}, 1, v{g}")
    a(f"v_lshl_add_u32 v{dst+1}, v{l}, 2, v{t}")
    a(f"v_and_b32 v{l}, 3, v{c}")
    return l

def rnd_pair(a, x, tmp=None):
    a(f"v_cvt_pk_bf16_f32 v{x+1}, v{x}, v{x+1}")
    a(f"v_lshlrev_b32 v{x}, 16, v{x+1}")
    a(f"v_and_b32 v{x+1}, 0xffff0000, v{x+1}")
def rnd1(a, x):
    a(f"v_cvt_pk_bf16_f32 v{x}, v{x}, v{x}")
    a(f"v_lshlrev_b32 v{x}, 16, v{x}")

LOG2E = 1.4426950408889634
def mod_stage(a):
    L_S = 131072; L_Z = L_S + 1024; L_R = L_Z + 1024
    a("v_lshlrev_b32 v20, 2, v0")
    a(f"global_load_dword v21, v20, s[{S_C}:{S_C+1}]")
    lane_ids(a, 2, 3, 4)
    parts = ((2, 0, 0), (4, 1024, 32768))
    def mdma(nt, col0, lb):
        RB = 32*nt; rpi = 1024 // RB; sh = {2: 2, 4: 3}[nt]
        a(f"v_lshrrev_b32 v5, {sh}, v2")
        a(f"s_mov_b32 s{sT}, 6144")
        a(f"v_mul_lo_u32 v5, v5, s{sT}")
        a(f"v_and_b32 v6, {2*nt-1}, v2")
        a(f"v_lshl_add_u32 v5, v6, 4, v5")
        a(f"s_mul_i32 s{sT}, s{S_TK}, {RB}")
        a(f"s_mul_i32 s{sT+1}, s{S_WAVE}, {128*6144}")
        a(f"s_add_u32 s{sT}, s{sT}, s{sT+1}")
        a(f"s_add_u32 s{sT}, s{sT}, {col0*2}")
        a(f"s_add_u32 s{sT+2}, s{S_WMOD}, s{sT}")
        a(f"s_addc_u32 s{sT+3}, s{S_WMOD+1}, 0")
        a(f"s_mul_i32 s{sT+1}, s{S_WAVE}, {128*RB}")
        n = 128 // rpi
        for i in range(n):
            a(f"s_add_u32 m0, s{sT+1}, {lb + i*1024}")
            a(f"global_load_lds_dwordx4 v5, s[{sT+2}:{sT+3}]")
            if i < n-1:
                a(f"s_add_u32 s{sT+2}, s{sT+2}, {rpi*6144}")
                a(f"s_addc_u32 s{sT+3}, s{sT+3}, 0")
        return n
    nd = mdma(*parts[0])
    a(f"s_waitcnt vmcnt({nd})")
    a("v_lshlrev_b32 v22, 16, v21")
    a("v_and_b32 v23, 0xffff0000, v21")
    a(f"s_mov_b32 s{sT}, {f2u(-LOG2E)}")
    for r in (22, 23):
        a(f"v_mul_f32 v{r+2}, s{sT}, v{r}")
        a(f"v_exp_f32 v{r+2}, v{r+2}")
        a(f"v_add_f32 v{r+2}, 1.0, v{r+2}")
        a(f"v_rcp_f32 v{r+2}, v{r+2}")
        a(f"v_mul_f32 v{r}, v{r}, v{r+2}")
    a("v_cvt_pk_bf16_f32 v22, v22, v23")
    a(f"v_add_u32 v20, {L_S}, v20")
    a("v_mov_b32 v23, 0")
    a("ds_write_b32 v20, v22")
    a("ds_write_b32 v20, v23 offset:1024")
    a(f"s_lshl_b32 s{sT}, s{S_WAVE}, 8")
    a(f"s_add_u32 s{sT+1}, s{sT}, {L_S}")
    a(f"v_lshl_add_u32 v12, v3, 4, s{sT+1}")
    a(f"s_add_u32 s{sT+1}, s{sT}, {L_Z}")
    a(f"v_mov_b32 v13, s{sT+1}")
    a("v_cmp_eq_u32 vcc, 0, v4")
    a("v_cndmask_b32 v12, v13, v12, vcc")
    a("s_waitcnt lgkmcnt(0)")
    for ks in range(4):
        a(f"ds_read_b128 v[{32+4*ks}:{35+4*ks}], v12 offset:{64*ks}")
    a("v_lshrrev_b32 v7, 2, v4")
    a("v_lshl_add_u32 v7, v3, 3, v7")
    a("v_and_b32 v8, 3, v4")
    for pi, (nt, col0, lb) in enumerate(parts):
        RB = 32*nt
        a(f"v_mul_u32_u24 v9, {RB}, v7")
        a("v_lshl_add_u32 v9, v8, 3, v9")
        a(f"s_mul_i32 s{sT+1}, s{S_WAVE}, {128*RB}")
        a(f"s_add_u32 s{sT+1}, s{sT+1}, {lb}")
        a(f"v_add_u32 v9, s{sT+1}, v9")
        if pi == 1: mdma(*parts[1])
        a("s_waitcnt vmcnt(0)")
        for u in range(nt):
            for ks in range(4):
                for m in range(2):
                    a(f"ds_read_b64_tr_b16 v[{64+16*u+4*ks+2*m}:{65+16*u+4*ks+2*m}], v9 offset:{(32*ks+4*m)*RB+32*u}")
        a("s_waitcnt lgkmcnt(0)")
        for u in range(nt):
            for ks in range(4):
                c = "0" if ks == 0 else f"v[{48+4*u}:{51+4*u}]"
                a(f"v_mfma_f32_16x16x32_bf16 v[{48+4*u}:{51+4*u}], v[{32+4*ks}:{35+4*ks}], v[{64+16*u+4*ks}:{67+16*u+4*ks}], {c}")
        a(f"s_lshl_b32 s{sT}, s{S_WAVE}, 8")
        a(f"s_add_u32 s{sT}, s{sT}, {L_R + pi*1024}")
        a(f"v_lshl_add_u32 v10, v4, 2, s{sT}")
        a("s_mov_b64 exec, 0xffff")
        for u in range(nt):
            a(f"ds_write_b32 v10, v{48+4*u} offset:{64*u}")
        a("s_mov_b64 exec, -1")
        a("s_waitcnt lgkmcnt(0)")
        a("s_barrier")
        lsk = a.newlabel("modw")
        a(f"s_cmp_lg_u32 s{S_WAVE}, 0")
        a(f"s_cbranch_scc1 {lsk}")
        a(f"v_lshlrev_b32 v10, 2, v2")
        a(f"v_add_u32 v11, {L_R + pi*1024}, v10")
        for w in range(4): a(f"ds_read_b32 v{14+w}, v11 offset:{256*w}")
        a("s_waitcnt lgkmcnt(0)")
        a("v_add_f32 v14, v14, v15")
        a("v_add_f32 v16, v16, v17")
        a("v_add_f32 v16, v14, v16")
        rnd1(a, 16)
        a(f"s_mul_i32 s{sT+1}, s{S_TK}, {16*nt}")
        a(f"s_add_u32 s{sT+1}, s{sT+1}, {col0}")
        a(f"s_lshr_b32 s{sT+2}, s{sT+1}, 9")
        a(f"s_cmp_eq_u32 s{sT+2}, 1")
        a(f"s_cselect_b32 s{sT+3}, 1.0, 0")
        a(f"s_cmp_eq_u32 s{sT+2}, 4")
        a(f"s_cselect_b32 s{sT+3}, 1.0, s{sT+3}")
        a(f"v_add_f32 v16, s{sT+3}, v16")
        rnd1(a, 16)
        a(f"s_lshl_b32 s{sT+1}, s{sT+1}, 2")
        a(f"s_add_u32 s{sT+1}, s{sT+1}, {WS_MOD}")
        a(f"v_add_u32 v10, s{sT+1}, v10")
        if nt == 2: a("s_mov_b32 exec_hi, 0")
        a(f"global_store_dword v10, v16, s[{S_WS}:{S_WS+1}] sc1")
        a("s_mov_b64 exec, 1")
        a(f"v_mov_b32 v10, {D_MODRDY + 4*pi}")
        a("v_mov_b32 v11, 1")
        a("s_waitcnt vmcnt(0)")
        a(f"global_atomic_add v10, v11, s[{S_DBG}:{S_DBG+1}]")
        a("s_mov_b64 exec, -1")
        a.label(lsk)
        a.flush_hazards()

def row16_sum(a, x, t):
    for sh in (8, 4, 2, 1):
        a(f"v_add_f32_dpp v{x}, v{x}, v{x} row_ror:{sh} row_mask:0xf bank_mask:0xf")

def ln_rows(a, X, MV, T0):
    s=T0; q=T0+2
    a(f"v_pk_add_f32 v[{s}:{s+1}], v[{X}:{X+1}], v[{X+2}:{X+3}]")
    for i in range(4, 32, 2):
        a(f"v_pk_add_f32 v[{s}:{s+1}], v[{s}:{s+1}], v[{X+i}:{X+i+1}]")
    a(f"v_add_f32 v{s}, v{s}, v{s+1}")
    row16_sum(a, s, None)
    a(f"v_mul_f32 v{s}, {f2u(1/512)}, v{s}")
    a(f"v_mov_b32 v{s+1}, v{s}")
    a(f"v_mov_b64 v[{q}:{q+1}], 0")
    for i in range(0, 32, 2):
        a(f"v_pk_add_f32 v[{T0+4}:{T0+5}], v[{X+i}:{X+i+1}], v[{s}:{s+1}] neg_lo:[0,1] neg_hi:[0,1]")
        a(f"v_pk_fma_f32 v[{q}:{q+1}], v[{T0+4}:{T0+5}], v[{T0+4}:{T0+5}], v[{q}:{q+1}]")
    a(f"v_add_f32 v{q}, v{q}, v{q+1}")
    row16_sum(a, q, None)
    a(f"v_mul_f32 v{q}, {f2u(1/512)}, v{q}")
    rnd1(a, q)
    a(f"v_add_f32 v{q}, {f2u(1e-5)}, v{q}")
    rnd1(a, q)
    a(f"v_sqrt_f32 v{q}, v{q}")
    rnd1(a, q)
    a(f"v_rcp_f32 v{s+1}, v{q}")
    rnd1(a, s)

def ln_apply(a, X, s, CA, SA, OUT):
    a(f"v_mov_b32 v{s+2}, v{s}")
    a(f"v_mov_b32 v{s+3}, v{s}")
    a(f"v_mov_b32 v{s+4}, v{s+1}")
    a(f"v_mov_b32 v{s+5}, v{s+1}")
    for i in range(0, 32, 2):
        x = X+i
        a(f"v_pk_add_f32 v[{x}:{x+1}], v[{x}:{x+1}], v[{s+2}:{s+3}] neg_lo:[0,1] neg_hi:[0,1]")
        rnd_pair(a, x)
        a(f"v_pk_mul_f32 v[{x}:{x+1}], v[{x}:{x+1}], v[{s+4}:{s+5}]")
        rnd_pair(a, x)
        a(f"v_pk_mul_f32 v[{x}:{x+1}], v[{x}:{x+1}], v[{CA+i}:{CA+i+1}]")
        rnd_pair(a, x)
        a(f"v_pk_add_f32 v[{x}:{x+1}], v[{x}:{x+1}], v[{SA+i}:{SA+i+1}]")
        a(f"v_cvt_pk_bf16_f32 v{OUT+i//2}, v{x}, v{x+1}")

def ln1_pre(a, sB):
    lane_ids(a, 120, 121, 122)
    a(f"s_lshl_b32 s{sT}, s{sB}, 4")
    a(f"s_lshl_b32 s{sT+1}, s{S_WAVE}, 2")
    a(f"s_add_u32 s{sT}, s{sT}, s{sT+1}")
    a(f"v_add_u32 v123, s{sT}, v121")
    a("v_lshlrev_b32 v123, 10, v123")
    a("v_lshl_add_u32 v123, v122, 4, v123")
    for j in range(4):
        a(f"global_load_dwordx4 v[{128+4*j}:{131+4*j}], v123, s[{S_X}:{S_X+1}] offset:{256*j}")

def ln1_stage(a, sB, nyounger):
    X=144; CA=176; SA=208; T0=240; OUT=128
    a(f"s_waitcnt vmcnt({nyounger})")
    for i in range(16):
        a(f"v_lshlrev_b32 v{X+2*i}, 16, v{128+i}")
        a(f"v_and_b32 v{X+2*i+1}, 0xffff0000, v{128+i}")
    ln_rows(a, X, None, T0)
    poll_counter(a, D_TOTAL, 256, vt=124)
    poll_counter(a, D_MODRDY, 32, vt=124, sleep=2)
    a("v_lshlrev_b32 v124, 5, v122")
    a(f"v_add_u32 v124, {WS_MOD}, v124")
    for j in range(4):
        for h in range(2):
            a(f"global_load_dwordx4 v[{SA+8*j+4*h}:{SA+8*j+4*h+3}], v124, s[{S_WS}:{S_WS+1}] offset:{512*j+16*h} sc1")
            a(f"global_load_dwordx4 v[{CA+8*j+4*h}:{CA+8*j+4*h+3}], v124, s[{S_WS}:{S_WS+1}] offset:{2048+512*j+16*h} sc1")
    a("s_waitcnt vmcnt(0)")
    ln_apply(a, X, T0, CA, SA, OUT)
    a("v_lshrrev_b32 v124, 2, v122")
    a("v_lshlrev_b32 v124, 10, v124")
    a("v_and_b32 v125, 3, v122")
    a("v_lshl_add_u32 v124, v125, 8, v124")
    a(f"s_lshl_b32 s{sT+1}, s{S_WAVE}, 2")
    a(f"v_add_u32 v125, s{sT+1}, v121")
    a("v_lshl_add_u32 v124, v125, 4, v124")
    a(f"s_lshl_b32 s{sT}, s{sB}, 14")
    a(f"s_add_u32 s{sT}, s{sT}, {WS_H}")
    a(f"v_add_u32 v124, s{sT}, v124")
    for j in range(4):
        if j: a("v_add_u32 v124, 4096, v124")
        a(f"global_store_dwordx4 v124, v[{OUT+4*j}:{OUT+4*j+3}], s[{S_WS}:{S_WS+1}] sc1")
    a("s_waitcnt vmcnt(0)")
    a("s_barrier")
    a(f"s_lshr_b32 s{sT+8}, s{sB}, 2")
    a(f"s_lshl_b32 s{sT+8}, s{sT+8}, 7")
    a(f"s_add_u32 s{sT+8}, s{sT+8}, {F_HRDY}")
    signal_add(a, f"s{sT+8}", vt=124, base=S_WS)
    signal_add(a, F_HALL, vt=124, base=S_WS)

sNT=40; sMH=41; sMTX=42; sHEAD=43; sOUTB=44; sHB=46; sIT=48; sSIG=49
def gemm_pre(a, sB):
    a(f"s_cmp_ge_u32 s{sB}, 96")
    a(f"s_cselect_b32 s{sMH}, 1, 0")
    a(f"s_mul_i32 s{sT}, s{sMH}, 96")
    a(f"s_sub_u32 s{sNT}, s{sB}, s{sT}")
    a(f"s_lshr_b32 s{sMTX}, s{sNT}, 5")
    a(f"s_and_b32 s{sHEAD}, s{sNT}, 31")
    a(f"s_mov_b64 s[{sT+6}:{sT+7}], s[{S_WK}:{S_WK+1}]")
    a(f"s_cmp_eq_u32 s{sMTX}, 1")
    a(f"s_cselect_b64 s[{sT+6}:{sT+7}], s[{S_WV}:{S_WV+1}], s[{sT+6}:{sT+7}]")
    a(f"s_cmp_eq_u32 s{sMTX}, 2")
    a(f"s_cselect_b64 s[{sT+6}:{sT+7}], s[{S_WQ}:{S_WQ+1}], s[{sT+6}:{sT+7}]")
    a(f"s_lshl_b32 s{sT}, s{sHEAD}, 8")
    a(f"s_add_u32 s{sT+6}, s{sT+6}, s{sT}")
    a(f"s_addc_u32 s{sT+7}, s{sT+7}, 0")
    return stage_rows(a, sT+6, 8192, 512, 0, 2)

def gemm_stage(a):
    C = Cnt(a)
    a("s_waitcnt vmcnt(0)")
    a("s_barrier")
    cp = tr_base(a, 10, 2)
    a(f"v_lshl_add_u32 v10, v{cp}, 3, v10")
    WF = lambda t, ks: (t*16+ks)*4
    for t in range(2):
        a(f"s_lshl_b32 s{sT}, s{S_WAVE}, 1")
        a(f"s_add_u32 s{sT}, s{sT}, {t}")
        a(f"v_xor_b32 v14, s{sT}, v11")
        a("v_lshl_add_u32 v14, v14, 5, v10")
        a("v_add_u32 v15, 0x10000, v14")
        for ks in range(16):
            for m in range(2):
                a(f"ds_read_b64_tr_b16 a[{WF(t,ks)+2*m}:{WF(t,ks)+2*m+1}], v{14+(ks>>3)} offset:{(ks&7)*8192+m*1024}")
    a("s_waitcnt lgkmcnt(0)")
    a(f"s_mov_b32 s{sT}, {WS_KF}")
    a(f"s_cmp_eq_u32 s{sMTX}, 1")
    a(f"s_cselect_b32 s{sT}, {WS_VF}, s{sT}")
    a(f"s_cmp_eq_u32 s{sMTX}, 2")
    a(f"s_cselect_b32 s{sT}, {WS_QF}, s{sT}")
    a(f"s_lshl_b32 s{sT+1}, s{sHEAD}, 13")
    a(f"s_add_u32 s{sT}, s{sT}, s{sT+1}")
    a(f"s_lshl_b32 s{sT+1}, s{sMH}, 19")
    a(f"s_add_u32 s{sT}, s{sT}, s{sT+1}")
    sadd64(a, sOUTB, S_WS, f"s{sT}")
    a(f"s_lshl_b32 s{sT}, s{sMH}, 16")
    a(f"s_lshl_b32 s{sT+1}, s{S_WAVE}, 14")
    a(f"s_add_u32 s{sT}, s{sT}, s{sT+1}")
    a(f"s_add_u32 s{sT}, s{sT}, {WS_H}")
    sadd64(a, sHB, S_WS, f"s{sT}")
    lane_ids(a, 2, 3, 4)
    a("v_lshlrev_b32 v5, 4, v2")
    a("v_add_u32 v6, 0x10000, v5")
    for i in range(1, 4): a(f"v_add_u32 v{6+i}, {4096*i}, v5")
    a(f"s_lshl_b32 s{sT}, s{S_WAVE}, 10")
    a(f"v_add_u32 v12, s{sT}, v5")
    a(f"s_lshl_b32 s{sT}, s{S_WAVE}, 11")
    a(f"v_add_u32 v13, s{sT}, v5")
    a(f"v_add_u32 v14, 0x40000, v12")
    a(f"v_add_u32 v15, 0x40000, v13")
    a(f"v_add_u32 v19, 4096, v12")
    a(f"v_add_u32 v20, 4096, v14")
    poll_counter(a, D_TOTAL, 256, vt=16)
    a(f"s_lshl_b32 s{sT+8}, s{sMH}, 7")
    a(f"s_add_u32 s{sT+8}, s{sT+8}, {F_HRDY}")
    poll_counter(a, f"s{sT+8}", 4, vt=16, base=S_WS, sleep=2)
    TS(a, 3)
    a("s_barrier")
    def dma(buf):
        a(f"s_lshl_b32 s{sT}, s{S_WAVE}, 14")
        for q in range(4):
            a(f"s_add_u32 m0, s{sT}, {buf*65536 + q*4096}")
            for i in range(4):
                a(f"global_load_lds_dwordx4 v{5 if q==0 else 6+q}, s[{sHB}:{sHB+1}] offset:{i*1024} sc1")
        sadd64(a, sHB, sHB, 131072)
    dma(0)
    poll_counter(a, F_HALL, 128, vt=16, base=S_WS, sleep=8)
    a("s_waitcnt vmcnt(0)")
    a(f"s_mov_b32 s{sIT}, 0")
    a(f"s_lshl_b32 s{sSIG}, s{sMH}, 7")
    a(f"s_add_u32 s{sSIG}, s{sSIG}, {F_KVRDY - 256}")
    lv = a.newlabel("gemmV"); ldone = a.newlabel("gemmdone")
    a(f"s_cmp_eq_u32 s{sMTX}, 1")
    a(f"s_cbranch_scc1 {lv}")
    ACC=32; HF=64
    for isV in (0, 1):
        if isV: a.label(lv)
        a.flush_hazards()
        lloop = a.newlabel("gloop")
        a.label(lloop)
        for buf in range(2):
            a("s_waitcnt vmcnt(4)")
            a("s_barrier")
            ls = a.newlabel("gs")
            a(f"s_cmp_lt_u32 s{sIT}, 3")
            a(f"s_cbranch_scc1 {ls}")
            a(f"s_sub_u32 s{sT+8}, s{sSIG}, 256")
            signal_add(a, f"s{sT+8}", vt=16, base=S_WS)
            a.label(ls)
            ln = a.newlabel("gn")
            a(f"s_cmp_ge_u32 s{sIT}, 15")
            a(f"s_cbranch_scc1 {ln}")
            dma(1-buf)
            a.label(ln)
            C.l = []
            order = [(ks, mt) for ks in range(16) for mt in range(4)]
            PF = 6
            def rd(n):
                ks, mt = order[n]
                C.lds(f"ds_read_b128 v[{HF+4*(n%8)}:{HF+4*(n%8)+3}], v{5+buf} offset:{mt*16384+ks*1024}", n)
            for n in range(PF): rd(n)
            for n, (ks, mt) in enumerate(order):
                C.wait_l(n)
                for t in range(2):
                    d = ACC + (mt*2+t)*4
                    c = "0" if ks == 0 else f"v[{d}:{d+3}]"
                    w = f"a[{WF(t,ks)}:{WF(t,ks)+3}]"; h = f"v[{HF+4*(n%8)}:{HF+4*(n%8)+3}]"
                    if isV: a(f"v_mfma_f32_16x16x32_bf16 v[{d}:{d+3}], {h}, {w}, {c}")
                    else: a(f"v_mfma_f32_16x16x32_bf16 v[{d}:{d+3}], {w}, {h}, {c}")
                    if t == 0 and n + PF < 64: rd(n + PF)
            E=96
            if not isV:
                for mt in range(4):
                    for r in range(4):
                        a(f"v_cvt_pk_bf16_f32 v{E+4*mt+r}, v{ACC+mt*8+r}, v{ACC+mt*8+4+r}")
                    a(f"global_store_dwordx4 v{(12,19,14,20)[mt]}, v[{E+4*mt}:{E+4*mt+3}], s[{sOUTB}:{sOUTB+1}] sc1")
            else:
                for sg in range(2):
                    for t in range(2):
                        e = E + (sg*2+t)*4
                        for kt in range(2):
                            d = ACC + ((2*sg+kt)*2+t)*4
                            a(f"v_cvt_pk_bf16_f32 v{e+2*kt}, v{d}, v{d+1}")
                            a(f"v_cvt_pk_bf16_f32 v{e+2*kt+1}, v{d+2}, v{d+3}")
                        a(f"global_store_dwordx4 v{13 if sg==0 else 15}, v[{e}:{e+3}], s[{sOUTB}:{sOUTB+1}] offset:{t*1024} sc1")
            sadd64(a, sOUTB, sOUTB, 1048576)
            a(f"s_add_u32 s{sSIG}, s{sSIG}, 256")
            if buf == 0:
                lf = a.newlabel("gfirst")
                a(f"s_cmp_lg_u32 s{sIT}, 0")
                a(f"s_cbranch_scc1 {lf}")
                a("s_waitcnt vmcnt(0)")
                a("s_barrier")
                signal_add(a, f"s{sSIG}", vt=16, base=S_WS)
                a.label(lf)
            a(f"s_add_u32 s{sIT}, s{sIT}, 1")
            a.flush_hazards()
        a(f"s_cmp_lt_u32 s{sIT}, 16")
        a(f"s_cbranch_scc1 {lloop}")
        if not isV: a(f"s_branch {ldone}")
    a.label(ldone)
    a.flush_hazards()
    a("s_waitcnt vmcnt(0)")
    a("s_barrier")
    a(f"s_sub_u32 s{sT+8}, s{sSIG}, 256")
    signal_add(a, f"s{sT+8}", vt=16, base=S_WS)
    signal_add(a, f"s{sSIG}", vt=16, base=S_WS)
```

```python
from asmlib import *
from layout import *

L_WV   = 0
L_X    = 131072
L_KT   = L_X
L_VT   = L_X + 8192
L_MS   = L_X + 16384
L_Q    = L_X + 24576
RS = 288
L_K    = L_Q + 2304
L_O    = L_K + 2304
L_VX   = L_Q
L_DUM  = L_O + 2304
L_END  = L_DUM + 256
assert L_END <= 163840

M = lambda kb: 4*kb
QA=32; KA=40; VA=48; WVS=56; QB=72; AF=88
vIDX=104; vL16=105; vMEMOFF=106; vPST=107; vPUB=108; vQKW=109; vQR=110; vKR=111; vOW=112; vOR=113; vWV=114
vKT=116; vMSW=117; vPRD=118; vVOFF=119; vFLG=120; vVXW=121
vSELX=vFLG
T=122
vTR=254
WO = lambda i,kb2: 128 + (i*2+kb2)*8
WQ = lambda t,kb: (t*8+kb)*8
WK = lambda t,kb: 128 + (t*8+kb)*8
sHALF=40; sPUBM=42; sPB=44
sSEL=52
sHALF2=92
sMB=60
sSTEP=68; sSPIN=69
sT=70
sKF=80; sVF=82; sKM=84; sVM=86; sC1=88
sDUMP=90; sPBr=48; sT0=94; sKMM=98; sPRG=100; sFOFF=101
C1 = 0.08838834764831845 * 1.4426950408889634

def lane_consts(a):
    l=T; g=T+1; c=T+2; t0=T+3; t1=T+4; t2=T+5
    a(f"v_mbcnt_lo_u32_b32 v{l}, -1, 0")
    a(f"v_mbcnt_hi_u32_b32 v{l}, -1, v{l}")
    a(f"v_lshrrev_b32 v{g}, 4, v{l}")
    a(f"v_and_b32 v{c}, 15, v{l}")
    a(f"v_lshlrev_b32 v{vL16}, 4, v{l}")
    a(f"v_add_u32 v{vKT}, {L_KT}, v{vL16}")
    a(f"s_lshl_b32 s{sT}, s{S_WAVE}, 10")
    a(f"s_add_u32 s{sT}, s{sT}, {L_MS}")
    a(f"v_add_u32 v{vMSW}, s{sT}, v{vL16}")
    a(f"s_lshl_b32 s{sT}, s{S_WAVE}, 11")
    a(f"s_add_u32 s{sT}, s{sT}, {L_VT}")
    a(f"v_add_u32 v{vVOFF}, s{sT}, v{vL16}")
    a(f"s_lshl_b32 s{sT}, s{S_WAVE}, 12")
    a(f"v_add_u32 v{vWV}, s{sT}, v{vL16}")
    a(f"v_add_u32 v{vWV+1}, 0x10000, v{vWV}")
    a(f"s_lshl_b32 s{sT}, s{S_WAVE}, 9")
    a(f"v_lshl_add_u32 v{vVXW}, v{l}, 2, s{sT}")
    a(f"s_mov_b32 s{sHALF}, 0xAAAAAAAA")
    a(f"s_mov_b32 s{sHALF+1}, 0xAAAAAAAA")
    a(f"v_mov_b32 v{t0}, 0x4444")
    a(f"v_mov_b32 v{t1}, 0xEEEE")
    a(f"s_mov_b32 s{sHALF2}, 0xCCCCCCCC")
    a(f"s_mov_b32 s{sHALF2+1}, 0xCCCCCCCC")
    a(f"v_cndmask_b32 v{vIDX}, v{t0}, v{t1}, s[{sHALF2}:{sHALF2+1}]")
    a(f"v_lshrrev_b32 v30, 2, v{c}")
    a(f"v_and_b32 v31, 1, v{c}")
    a(f"v_lshl_add_u32 v30, v30, 1, v31")
    a(f"v_bfe_u32 v31, v{c}, 1, 1")
    a(f"v_lshlrev_b32 v{t0}, 11, v{g}")
    a(f"v_lshl_add_u32 v{t0}, v30, 5, v{t0}")
    a(f"v_lshl_add_u32 v{t0}, v31, 4, v{t0}")
    a(f"s_lshl_b32 s{sT}, s{S_WAVE}, 8")
    a(f"v_add_u32 v{vMEMOFF}, s{sT}, v{t0}")
    a(f"s_lshl_b32 s{sT}, s{S_VR}, 10")
    a(f"s_lshl_b32 s{sT+1}, s{S_WAVE}, 16")
    a(f"s_add_u32 s{sT}, s{sT}, s{sT+1}")
    a(f"v_add_u32 v{vPST}, s{sT}, v{vL16}")
    a(f"s_lshr_b32 s{sT}, s{S_VR}, 2")
    a(f"s_lshl_b32 s{sT}, s{sT}, 15")
    a(f"s_and_b32 s{sT+1}, s{S_VR}, 3")
    a(f"s_lshl_b32 s{sT+2}, s{sT+1}, 8")
    a(f"s_add_u32 s{sT}, s{sT}, s{sT+2}")
    a(f"v_lshlrev_b32 v{t0}, 10, v{g}")
    a(f"v_lshl_add_u32 v{t0}, v{c}, 4, v{t0}")
    a(f"v_add_u32 v{vPRD}, s{sT}, v{t0}")
    a(f"v_lshrrev_b32 v{t0}, 1, v{c}")
    a(f"v_lshlrev_b32 v{t0}, 8, v{t0}")
    a(f"v_and_b32 v{t1}, 1, v{c}")
    a(f"v_lshl_add_u32 v{t0}, v{t1}, 5, v{t0}")
    a(f"v_lshl_add_u32 v{t0}, v{g}, 3, v{t0}")
    a(f"s_lshr_b32 s{sT}, s{S_VR}, 2")
    a(f"s_lshl_b32 s{sT}, s{sT}, 10")
    a(f"s_lshl_b32 s{sT+1}, s{sT+1}, 6")
    a(f"s_add_u32 s{sT}, s{sT}, s{sT+1}")
    a(f"v_add_u32 v{vPUB}, s{sT}, v{t0}")
    a(f"s_mov_b32 s{sPUBM}, 0x00FF00FF")
    a(f"s_mov_b32 s{sPUBM+1}, 0x00FF00FF")
    a(f"v_lshlrev_b32 v{t1}, 4, v{t1}")
    a(f"v_mov_b32 v{t0}, 0x3F80")
    a(f"v_lshlrev_b32 v{vSELX}, v{t1}, v{t0}")
    for d in range(4):
        m = 0x3 << (2*d); m = m | (m << 16)
        a(f"s_mov_b32 s{sSEL+2*d}, {m}")
        a(f"s_mov_b32 s{sSEL+2*d+1}, {m}")
    a(f"s_mov_b32 s{sKMM}, 0x33333333")
    a(f"s_mov_b32 s{sKMM+1}, 0x33333333")
    a(f"v_mul_u32_u24 v{t0}, {2*RS}, v{g}")
    a(f"v_lshl_add_u32 v{t0}, v{c}, 2, v{t0}")
    a(f"s_lshl_b32 s{sT}, s{S_WAVE}, 6")
    a(f"s_add_u32 s{sT}, s{sT}, {L_Q}")
    a(f"v_add_u32 v{vQKW}, s{sT}, v{t0}")
    a(f"v_lshrrev_b32 v{t0}, 1, v{c}")
    a(f"v_mul_u32_u24 v{t0}, {RS}, v{t0}")
    a(f"v_lshl_add_u32 v{t1}, v{g}, 4, v{t0}")
    a(f"v_add_u32 v{vQR}, {L_Q}, v{t1}")
    a(f"v_and_b32 v{t2}, 1, v{c}")
    a(f"v_lshl_add_u32 v{t1}, v{t2}, 5, v{t0}")
    a(f"v_lshl_add_u32 v{t1}, v{g}, 3, v{t1}")
    a(f"s_lshl_b32 s{sT}, s{S_WAVE}, 6")
    a(f"s_add_u32 s{sT}, s{sT}, {L_O}")
    a(f"v_add_u32 v{vOW}, s{sT}, v{t1}")
    a(f"v_mul_u32_u24 v{t1}, {RS}, v30")
    a(f"v_lshl_add_u32 v{t1}, v{g}, 5, v{t1}")
    a(f"v_lshl_add_u32 v{t1}, v31, 4, v{t1}")
    a(f"v_add_u32 v{vOR}, {L_O}, v{t1}")
    a(f"v_lshrrev_b32 v{t0}, 2, v{c}")
    a(f"v_lshl_add_u32 v{t0}, v{t0}, 1, v{t2}")
    a(f"v_mul_u32_u24 v{t0}, {RS}, v{t0}")
    a(f"v_lshl_add_u32 v{t0}, v{g}, 4, v{t0}")
    a(f"v_add_u32 v{vKR}, {L_K}, v{t0}")
    r=20; ph=21
    a(f"v_lshrrev_b32 v{r}, 2, v{c}")
    a(f"v_and_b32 v{t1}, 1, v{r}")
    a(f"v_lshrrev_b32 v{t2}, 1, v{r}")
    a(f"v_lshl_add_u32 v{r}, v{t2}, 3, v{t1}")
    a(f"v_lshl_add_u32 v{ph}, v{t2}, 2, v{t1}")
    a(f"v_and_b32 v{t2}, 1, v{g}")
    a(f"v_lshl_add_u32 v{ph}, v{t2}, 1, v{ph}")
    a(f"v_lshl_add_u32 v{r}, v{t2}, 2, v{r}")
    a(f"v_lshrrev_b32 v{t2}, 1, v{g}")
    a(f"v_lshl_add_u32 v{r}, v{t2}, 4, v{r}")
    a(f"v_lshlrev_b32 v{r}, 8, v{r}")
    a(f"v_and_b32 v{t2}, 3, v{c}")
    a(f"v_lshl_add_u32 v{r}, v{t2}, 3, v{r}")
    for t in range(2):
        a(f"s_lshl_b32 s{sT}, s{S_WAVE}, 1")
        a(f"s_add_u32 s{sT}, s{sT}, {t}")
        a(f"v_xor_b32 v{t2}, s{sT}, v{ph}")
        a(f"v_lshl_add_u32 v{22+3*t}, v{t2}, 5, v{r}")
        a(f"v_add_u32 v{23+3*t}, 0x10000, v{22+3*t}")
        a(f"v_add_u32 v{24+3*t}, 0x20000, v{22+3*t}")

def tr_off(slot, m):
    return (slot & 3)*16384 + (m >> 1)*8192 + (m & 1)*512

def setup_weights(a):
    l=T
    a(f"v_lshrrev_b32 v8, 4, v{l}")
    a(f"v_bfe_u32 v9, v{l}, 1, 3")
    a(f"v_and_b32 v10, 1, v8")
    a(f"v_xor_b32 v9, v9, v10")
    a(f"v_and_b32 v10, 1, v{l}")
    a(f"v_lshlrev_b32 v10, 4, v10")
    for aa in range(4):
        a(f"v_xor_b32 v11, {aa<<1}, v9")
        a(f"v_lshl_add_u32 v11, v11, 5, v10")
        a(f"v_add_u32 v12, {4*aa}, v8")
        a(f"v_lshl_add_u32 v{aa}, v12, 13, v11")
        a(f"v_lshl_add_u32 v{4+aa}, v12, 10, v11")
    a(f"s_lshl_b32 s{sT}, s{S_VR}, 8")
    a(f"s_lshl_b32 s{sT+1}, s{S_WAVE}, 20")
    a(f"s_add_u32 s{sT}, s{sT}, s{sT+1}")
    a(f"s_lshl_b32 s{sT+1}, s{S_VR}, 17")
    a(f"s_lshl_b32 s{sT+2}, s{S_WAVE}, 14")
    a(f"s_add_u32 s{sT+1}, s{sT+1}, s{sT+2}")
    a(f"s_lshl_b32 s{sT+2}, s{S_WAVE}, 12")
    def issue(grp):
        mat = grp >> 1; half = grp & 1
        for ch in range(4):
            slot = half*4 + ch
            if mat == 3: slot += 1
            if mat == 2:
                a(f"s_add_u32 s{sT+3}, s{sT+1}, {half*65536 + ch*256}")
                base = S_WO; vo = 4
            else:
                kb = half*4 + ch
                a(f"s_add_u32 s{sT+3}, s{sT}, {kb*131072}")
                base = (S_WQ, S_WK, None, S_WV)[mat]; vo = 0
            a(f"s_add_u32 s{sT+4}, s{base}, s{sT+3}")
            a(f"s_addc_u32 s{sT+5}, s{base+1}, 0")
            for aa in range(4):
                a(f"s_add_u32 m0, s{sT+2}, {slot*16384 + aa*1024}")
                a(f"global_load_lds_dwordx4 v{vo+aa}, s[{sT+4}:{sT+5}]")
    issue(0); issue(1)
    for grp in range(6):
        a(f"s_waitcnt vmcnt(16)")
        a("s_barrier")
        mat = grp >> 1; half = grp & 1
        if mat < 2:
            for ch in range(4):
                kb = half*4 + ch
                for t in range(2):
                    dst = (WQ if mat == 0 else WK)(t, kb)
                    for m in range(4):
                        a(f"ds_read_b64_tr_b16 a[{dst+2*m}:{dst+2*m+1}], v{22+3*t+half} offset:{tr_off(kb,m)}")
        else:
            a(f"s_lshl_b32 s{sT+3}, s{S_WAVE}, 14")
            a(f"s_add_u32 s{sT+3}, s{sT+3}, {half*65536}")
            for u in range(8):
                a(f"v_xor_b32 v8, {u}, v21")
                a(f"v_lshl_add_u32 v8, v8, 5, v20")
                a(f"v_add_u32 v8, s{sT+3}, v8")
                dst = WO(u, half)
                for m in range(4):
                    a(f"ds_read_b64_tr_b16 v[{dst+2*m}:{dst+2*m+1}], v8 offset:{tr_off(0,m)}")
        a("s_waitcnt lgkmcnt(0)")
        a("s_barrier")
        if grp < 4: issue(grp + 2)
        elif grp == 4:
            pass
        elif grp == 5:
            issue(6); issue(7)
        if grp == 4:
            a("s_waitcnt vmcnt(0)")
    for kb in range(8):
        a(f"s_waitcnt vmcnt({4*(7-kb)})")
        a("s_barrier")
        slot = kb + 1
        for t in range(2):
            for m in range(4):
                a(f"ds_read_b64_tr_b16 v[{32+8*t+2*m}:{33+8*t+2*m}], v{22+3*t+(slot>>2)} offset:{tr_off(slot,m)}")
        a("s_waitcnt lgkmcnt(0)")
        for t in range(2):
            for hf in range(2):
                a(f"ds_write_b128 v{vWV+(kb>>2)}, v[{32+8*t+4*hf}:{35+8*t+4*hf}] offset:{(kb&3)*16384+t*2048+hf*1024}")
        a("s_waitcnt lgkmcnt(0)")
    a("s_barrier")

TRACE=[False]
WI=set()
def trace(a, slot):
    if not TRACE[0]: return
    a(f"s_memrealtime s[{18+2*slot}:{19+2*slot}]")
def trace_flush(a):
    if not TRACE[0]: return
    a(f"s_lshl_b32 s3, s{sSTEP}, 12")
    a(f"s_lshl_b32 s2, s{S_VR}, 7")
    a("s_add_u32 s3, s3, s2")
    a(f"s_lshl_b32 s2, s{S_WAVE}, 5")
    a("s_add_u32 s3, s3, s2")
    a(f"s_add_u32 s3, s3, {WS_X1}")
    a(f"v_lshrrev_b32 v{T}, 2, v{vL16}")
    a(f"v_add_u32 v{T}, s3, v{T}")
    a("s_waitcnt lgkmcnt(0)")
    for sl in range(8):
        a(f"v_writelane_b32 v{T+1}, s{18+2*sl}, {sl}")
    a("s_mov_b64 exec, 0xff")
    a(f"global_store_dword v{T}, v{T+1}, s[{S_WS}:{S_WS+1}]")
    a("s_mov_b64 exec, -1")
class Prof:
    def __init__(self, a, enabled):
        self.a=a; self.en=enabled; self.names=[]
    def stamp(self, name):
        if not self.en: return
        a=self.a
        a("s_memtime s[96:97]")
        a("s_waitcnt lgkmcnt(0)")
        if name in self.names: idx=self.names.index(name)
        else: self.names.append(name); idx=len(self.names)-1
        acc = 18+idx
        assert acc <= 33
        a(f"s_sub_u32 s3, s96, s2")
        a(f"s_add_u32 s{acc}, s{acc}, s3")
        a("s_mov_b32 s2, s96")

def xl(a, x, t, op):
    a(f"v_mov_b32 v{t}, v{x}")
    a(f"v_permlane32_swap_b32 v{t}, v{x}")
    a(f"{op} v{x}, v{t}, v{x}")
    a(f"v_mov_b32 v{t}, v{x}")
    a(f"v_permlane16_swap_b32 v{t}, v{x}")
    a(f"{op} v{x}, v{t}, v{x}")

import os
SPEC_T=int(os.environ.get('SPEC_T','1'))
R0=56; R1=72; R2=88
sFLW=8; sFLR=10; sV0=12
def chain_main(a, sc, dump=False, prof=False, kvflags=True, guard=True):
    P = Prof(a, prof)
    KVSC = 'nt' if 'nont' in WI else ''
    C = Cnt(a)
    a(f"s_mov_b32 s{sC1}, {f2u(C1)}")
    a(f"s_mov_b32 s{sC1+1}, {f2u(C1)}")
    for i in range(2):
        sadd64(a, sPB+2*i, S_WS, WS_PB + i*262144)
        sadd64(a, sPBr+2*i, S_WS, WS_PB + i*262144 + 4096)
    a(f"s_lshl_b32 s{sT}, s{S_VR}, 13")
    a(f"s_mov_b32 s{sT+1}, {WS_KF}")
    a(f"s_mov_b32 s{sVF}, {L_KT}")
    a(f"s_cmp_eq_u32 s{S_WAVE}, 3")
    a(f"s_cselect_b32 s{sT+1}, {WS_VF}, s{sT+1}")
    a(f"s_cselect_b32 s{sVF}, {L_VT}, s{sVF}")
    a(f"s_add_u32 s{sT+1}, s{sT+1}, s{sT}")
    sadd64(a, sKF, S_WS, f"s{sT+1}")
    sadd64(a, sV0, sKF, WS_VF - WS_KF)
    a(f"s_lshl_b32 s{sT}, s{S_VR}, 12")
    a(f"s_add_u32 s{sT+1}, s{sT}, {WS_KM - 131072}")
    sadd64(a, sKM, S_WS, f"s{sT+1}")
    a(f"s_lshl_b32 s{sT}, s{S_VR}, 11")
    a(f"s_add_u32 s{sT+1}, s{sT}, {WS_VM - 65536}")
    sadd64(a, sVM, S_WS, f"s{sT+1}")
    a(f"s_lshl_b32 s{sPRG}, s{S_VR}, 7")
    a(f"s_add_u32 s{sPRG}, s{sPRG}, {F_PROG}")
    a(f"v_mov_b32 v{vWV}, v{vL16}")
    a(f"v_add_u32 v{vWV+1}, 0x10000, v{vL16}")
    a(f"v_lshrrev_b32 v{vVXW}, 2, v{vL16}")
    a(f"v_bfe_u32 v{T}, v{vL16}, 5, 3")
    a(f"v_mul_u32_u24 v{T}, {RS}, v{T}")
    a(f"v_lshrrev_b32 v{T+1}, 8, v{vL16}")
    a(f"v_lshl_add_u32 v{T}, v{T+1}, 3, v{T}")
    a(f"v_add_u32 v{vOW}, {L_O}, v{T}")
    lnp = a.newlabel("c_np")
    a(f"s_cmp_lg_u32 s{S_WAVE}, 1")
    a(f"s_cbranch_scc1 {lnp}")
    a(f"v_mul_u32_u24 v{T}, {RS}, v{T+1}")
    a(f"v_and_b32 v{T+1}, 0xff, v{vL16}")
    a(f"v_add3_u32 v{vFLG}, v{T}, v{T+1}, v{vFLG}" if False else f"v_add_u32 v{T}, v{T}, v{T+1}")
    a(f"v_add_u32 v{vFLG}, {L_K}, v{T}")
    a.label(lnp)
    if dump: sadd64(a, sDUMP, S_WS, WS_DUMP)
    a(f"s_lshl_b32 s{sT}, s{S_WAVE}, 8")
    a(f"s_lshl_b32 s{sT+1}, s{S_VR}, 2")
    a(f"s_add_u32 s{sT}, s{sT}, s{sT+1}")
    a(f"s_add_u32 s{sT}, s{sT}, {F_PFL}")
    sadd64(a, sFLW, S_WS, f"s{sT}")
    a(f"s_lshr_b32 s{sT}, s{S_VR}, 2")
    a(f"s_lshl_b32 s{sT}, s{sT}, 7")
    a(f"s_add_u32 s{sT}, s{sT}, {F_PFL}")
    sadd64(a, sFLR, S_WS, f"s{sT}")
    for i in range(4): sadd64(a, sMB+2*i, S_WS, WS_MB + 8192*i)
    a(f"s_mov_b32 s{sSPIN}, 0")
    a(f"s_mov_b32 s{sSTEP}, 0")
    if prof:
        for r in range(18, 34): a(f"s_mov_b32 s{r}, 0")
    lw = [a.newlabel(f"c_w{i}") for i in range(4)]; lend = a.newlabel("c_end")
    for i in range(1, 4):
        a(f"s_cmp_eq_u32 s{S_WAVE}, {i}")
        a(f"s_cbranch_scc1 {lw[i]}")
    tails = []; slow = []; fbk = []; redo = []; ptail = []
    def retry_stub(lback):
        l = a.newlabel("c_retry"); tails.append((l, lback)); return l
    I = lambda txt: (lambda: a(txt))
    for w in range(4):
        role = ("R", "PUB", "DMA", "DMA")[w]
        if w: a.label(lw[w]); a.hist=[]
        KB = [w, w+4] + [k for k in range(8) if k not in (w, w+4)]
        VB = KB
        TL = [[], [0,1,2], [3,4,5], [6,7]][w]
        vops = [(kb, ti) for kb in KB for ti in range(len(TL))]
        NS = 5; SLOT = [R0, R0+8, R1, R1+8, R2]
        VACC = [VA, VA+4, R2+12]; VFR = [QA, QA+4, R2+8]; VH = [vQR, vKR, vVOFF]
        def wvr(n):
            kb, ti = vops[n]; sl_ = SLOT[n % NS]
            for hf in range(2):
                C.lds(f"ds_read_b128 v[{sl_+4*hf}:{sl_+4*hf+3}], v{vWV+(kb>>2)} offset:{(kb&3)*16384+TL[ti]*2048+hf*1024}", ("wv", n))
        def wait_flag_spin(off_sgpr):
            l = a.newlabel("c_fl")
            a(f"v_mov_b32 v{T}, s{off_sgpr}")
            a.label(l)
            a(f"global_load_dword v{vFLG}, v{T}, s[{S_WS}:{S_WS+1}] sc1")
            a(f"s_add_u32 s{sSPIN}, s{sSPIN}, 1")
            a(f"s_cmp_gt_u32 s{sSPIN}, 0x80000")
            a("s_cbranch_scc1 L_fail")
            a("s_waitcnt vmcnt(0)")
            a(f"v_cmp_gt_u32 vcc, {KV_TARGET}, v{vFLG}")
            a(f"s_cbranch_vccnz {l}")
        def wv_read(kb, t, slot, hf):
            C.lds(f"ds_read_b128 v[{slot+4*hf}:{slot+4*hf+3}], v{vWV+(kb>>2)} offset:{(kb&3)*16384+t*2048+hf*1024}", ("wv",kb,t))
        def wv4(kb, R): return [(lambda t=t, hf=hf: wv_read(kb, t, R+8*t, hf)) for t in range(2) for hf in range(2)]
        def vmf(kb, t, R):
            C.wait_l(("wv",kb,t))
            a(f"v_smfmac_f32_16x16x64_bf16 v[{VA+4*t}:{VA+4*t+3}], v[{M(kb)}:{M(kb)+3}], v[{R+8*t}:{R+8*t+7}], v{vIDX}")
        def qmf(kb, t):
            C.wait_l(("m",kb))
            a(f"v_smfmac_f32_16x16x64_bf16 v[{QA+4*t}:{QA+4*t+3}], v[{M(kb)}:{M(kb)+3}], a[{WQ(t,kb)}:{WQ(t,kb)+7}], v{vIDX}")
        def kmf(kb, t): a(f"v_smfmac_f32_16x16x64_bf16 v[{KA+4*t}:{KA+4*t+3}], v[{M(kb)}:{M(kb)+3}], a[{WK(t,kb)}:{WK(t,kb)+7}], v{vIDX}")
        def weave(mf, fill, per=1, drain=True):
            for m in mf:
                m()
                for _ in range(per):
                    if fill: fill.pop(0)()
            if drain:
                while fill: fill.pop(0)()
        if role == "R":
            a(f"v_bfe_u32 v{T}, v{vPUB}, 5, 3")
            a(f"v_lshrrev_b32 v{T+1}, 8, v{vPUB}")
            a(f"v_lshlrev_b32 v{T}, 10, v{T}")
            a(f"v_lshl_add_u32 v{T}, v{T+1}, 5, v{T}")
            a(f"v_and_b32 v{T+1}, 31, v{vPUB}")
            a(f"v_add_u32 v{T}, v{T}, v{T+1}")
            a(f"s_mov_b64 exec, s[{sPUBM}:{sPUBM+1}]")
            a(f"global_load_dwordx2 v[{T+2}:{T+3}], v{T}, s[{S_MEM0}:{S_MEM0+1}]")
            a("s_waitcnt vmcnt(0)")
            a(f"v_min_u32 v{T+2}, -2, v{T+2}")
            a(f"v_min_u32 v{T+3}, -2, v{T+3}")
            a(f"global_store_dwordx2 v{vPUB}, v[{T+2}:{T+3}], s[{sMB}:{sMB+1}] {sc}")
            if dump: a(f"global_store_dwordx2 v{vPUB}, v[{T+2}:{T+3}], s[{sDUMP}:{sDUMP+1}]")
            a("s_mov_b64 exec, -1")
        elif role == "DMA":
            a(f"s_mov_b32 s{sFOFF}, {F_KVRDY}")
            if kvflags: wait_flag_spin(sFOFF)
            a(f"s_mov_b32 m0, {L_DUM}")
            a(f"v_lshlrev_b32 v{T}, 3, v{vL16}")
            a(f"global_load_lds_dword v{T}, s[{sKF}:{sKF+1}] sc1")
            a(f"v_add_u32 v{T}, 0x40000, v{T}")
            a(f"global_load_lds_dword v{T}, s[{sKF}:{sKF+1}] sc1")
            a(f"v_lshlrev_b32 v{T+5}, 3, v{vL16}")
            a(f"s_mov_b32 s{sFOFF}, {F_KVRDY+128}")
            if kvflags: wait_flag_spin(sFOFF)
            a(f"s_mov_b32 s{sFOFF}, {F_KVRDY+256}")
        for r in range(QA, QA+24, 2): a(f"v_mov_b64 v[{r}:{r+1}], 0")
        if w:
            for n in range(NS): wvr(n)
            a(f"v_mov_b64 v[{R2+12}:{R2+13}], 0"); a(f"v_mov_b64 v[{R2+14}:{R2+15}], 0")
        a(f"s_memtime s[{sT0}:{sT0+1}]")
        a("s_waitcnt lgkmcnt(0)")
        if prof: a(f"s_mov_b32 s2, s{sT0}")
        lloop = a.newlabel("c_loop"); lchk0 = a.newlabel("c_chk0")
        A_=M(KB[0]); B_=M(KB[1])
        def mloads(A_=A_, B_=B_):
            a(f"global_load_dwordx4 v[{A_}:{A_+3}], v{vMEMOFF}, s[{sMB}:{sMB+1}] sc1")
            a(f"global_load_dwordx4 v[{B_}:{B_+3}], v{vMEMOFF}, s[{sMB}:{sMB+1}] offset:1024 sc1")
        def dmal():
            lb = L_VT if w == 3 else L_KT
            l = [I(f"s_mov_b32 m0, {lb}")]
            l += [I(f"global_load_lds_dwordx4 v{vL16}, s[{sKF}:{sKF+1}] offset:{i*1024} {KVSC}") for i in range(4)]
            l += [I(f"v_add_u32 v{T}, 4096, v{vL16}"), I(f"s_mov_b32 m0, {lb+4096}")]
            l += [I(f"global_load_lds_dwordx4 v{T}, s[{sKF}:{sKF+1}] offset:{i*1024} {KVSC}") for i in range(4)]
            return l
        if role == "DMA":
            for f in dmal(): f()
            sadd64(a, sKF, sKF, 262144)
        def rotate():
            a(f"s_mov_b64 s[{sT}:{sT+1}], s[{sMB}:{sMB+1}]")
            a(f"s_mov_b64 s[{sMB}:{sMB+1}], s[{sMB+2}:{sMB+3}]")
            a(f"s_mov_b64 s[{sMB+2}:{sMB+3}], s[{sMB+4}:{sMB+5}]")
            a(f"s_mov_b64 s[{sMB+4}:{sMB+5}], s[{sMB+6}:{sMB+7}]")
            a(f"s_mov_b64 s[{sMB+6}:{sMB+7}], s[{sT}:{sT+1}]")
        mloads()
        a.flush_hazards()
        a.label(lloop)
        for par in range(2):
            C.l=[]; C.v=[]
            lp = a.newlabel("c_pollm")
            if par == 0:
                a(f"s_branch {lchk0}")
                a.label(lp)
                mloads()
                a.label(lchk0)
            else:
                lc1 = a.newlabel("c_chk1")
                ptail.append((lp, lc1, mloads))
                a.label(lc1)
            a("s_waitcnt vmcnt(1)")
            a(f"v_max3_u32 v{T}, v{A_}, v{A_+1}, v{A_+2}")
            a("s_waitcnt vmcnt(0)")
            a(f"v_max3_u32 v{T+1}, v{A_+3}, v{B_}, v{B_+1}")
            a(f"v_max3_u32 v{T}, v{T}, v{B_+2}, v{B_+3}")
            a(f"v_max_u32 v{T}, v{T}, v{T+1}")
            a(f"v_cmp_eq_u32 vcc, -1, v{T}")
            a(f"ds_write_b128 v{vMSW}, v[{A_}:{A_+3}]")
            a(f"ds_write_b128 v{vMSW}, v[{B_}:{B_+3}] offset:4096")
            a(f"s_cbranch_vccnz {retry_stub(lp)}")
            trace(a, 0); P.stamp("pollm")
            rf = []
            if role == "DMA":
                if 'nopf' not in WI: rf += [I(f"s_mov_b32 m0, {L_DUM}"), I(f"global_load_lds_dword v{T+5}, s[{sKF}:{sKF+1}]")]
                if par == 0 and kvflags:
                    rf += [I(f"v_mov_b32 v{T}, s{sFOFF}"), I(f"global_load_dword v{vFLG}, v{T}, s[{S_WS}:{S_WS+1}] sc1")]
            elif role == "PUB":
                slr = sPB + 2*(par^1); slr2 = sPBr + 2*(par^1)
                rf += [I(f"s_sub_u32 s{sT}, s{sSTEP}, 1"), I(f"s_max_i32 s{sT}, s{sT}, 0"), I(f"v_mov_b32 v{T}, s{sPRG}"), I(f"v_mov_b32 v{T+1}, s{sT}"),
                       I(f"global_store_dword v{T}, v{T+1}, s[{S_WS}:{S_WS+1}] sc1")]
            else:
                slr = sPB + 2*(par^1); slr2 = sPBr + 2*(par^1)
                rf += [I(f"v_mov_b32 v{T+2+i}, {SENT}") for i in range(4)]
                rf += [I(f"global_store_dwordx4 v{vPRD}, v[{T+2}:{T+5}], s[{slr}:{slr+1}] {sc}"),
                       I(f"global_store_dwordx4 v{vPRD}, v[{T+2}:{T+5}], s[{slr2}:{slr2+1}] {sc}")]
                for i in range(1, 4):
                    rf += [I(f"v_add_u32 v{T}, {8192*i}, v{vPRD}"),
                           I(f"global_store_dwordx4 v{T}, v[{T+2}:{T+5}], s[{slr}:{slr+1}] {sc}"),
                           I(f"global_store_dwordx4 v{T}, v[{T+2}:{T+5}], s[{slr2}:{slr2+1}] {sc}")]
            if w and 'novpub' not in WI:
                rf = [I(f"global_store_dword v{vVXW}, v{VH[ti]}, s[{sVM}:{sVM+1}] offset:{256*tau} sc1") for ti, tau in enumerate(TL)] + rf
            qmf(KB[0],0); qmf(KB[0],1); qmf(KB[1],0)
            a("s_waitcnt lgkmcnt(0)")
            a("s_barrier")
            P.stamp("barMS")
            if TS_ENABLED[0] and w == 0:
                a(f"s_add_u32 s76, s{sSTEP}, 16")
                TS(a, "s76", vt=T)
            mr = [(lambda kb=kb: C.lds(f"ds_read_b128 v[{M(kb)}:{M(kb)+3}], v{vKT} offset:{L_MS-L_KT+kb*1024}", ("m",kb))) for kb in KB[2:]]
            mr[0](); mr[1]()
            qmf(KB[1],1); mr[2]()
            kmf(KB[0],0); mr[3]()
            if role == "PUB" and 'nokpub' not in WI:
                a(f"global_store_dwordx4 v{vL16}, v[{M(KB[6])}:{M(KB[6])+3}], s[{sKM}:{sKM+1}] sc1")
                a(f"global_store_dwordx4 v{vL16}, v[{M(KB[7])}:{M(KB[7])+3}], s[{sKM}:{sKM+1}] offset:1024 sc1")
            kmf(KB[0],1); mr[4]()
            kmf(KB[1],0); mr[5]()
            mf = []
            for kb in KB[2:]: mf += [lambda kb=kb: qmf(kb,0), lambda kb=kb: qmf(kb,1)]
            weave(mf, rf, 1, True)
            P.stamp("q")
            late = []
            qpost = [I(f"v_add_f32 v{QA}, v{QA}, v{QA+2}"), I(f"v_add_f32 v{QA+1}, v{QA+1}, v{QA+3}"),
                     I(f"v_add_f32 v{QA+4}, v{QA+4}, v{QA+6}"), I(f"v_add_f32 v{QA+5}, v{QA+5}, v{QA+7}"),
                     I(f"v_cvt_pk_bf16_f32 v{QA}, v{QA}, v{QA+4}"), I(f"v_cvt_pk_bf16_f32 v{QA+1}, v{QA+1}, v{QA+5}"),
                     lambda: C.lds(f"ds_write2_b32 v{vQKW}, v{QA}, v{QA+1} offset0:0 offset1:{RS//4}")]
            kmf(KB[1],1); kmf(KB[2],0)
            weave([lambda: kmf(KB[2],1), lambda: kmf(KB[3],0), lambda: kmf(KB[3],1), lambda: kmf(KB[4],0)], qpost, 2, True)
            kmf(KB[4],1); kmf(KB[5],0)
            C.all_l()
            a("s_barrier")
            trace(a, 1); P.stamp("barQ")
            krest = [lambda: kmf(KB[5],1), lambda: kmf(KB[6],0), lambda: kmf(KB[6],1), lambda: kmf(KB[7],0), lambda: kmf(KB[7],1)]
            kpost = [I(f"v_add_f32 v{KA}, v{KA}, v{KA+2}"), I(f"v_add_f32 v{KA+1}, v{KA+1}, v{KA+3}"),
                     I(f"v_add_f32 v{KA+4}, v{KA+4}, v{KA+6}"), I(f"v_add_f32 v{KA+5}, v{KA+5}, v{KA+7}"),
                     I(f"v_cvt_pk_bf16_f32 v{KA}, v{KA}, v{KA+4}"), I(f"v_cvt_pk_bf16_f32 v{KA+1}, v{KA+1}, v{KA+5}"),
                     lambda: C.lds(f"ds_write_b32 v{vQKW}, v{KA} offset:{L_K-L_Q}"),
                     lambda: C.lds(f"ds_write_b32 v{vQKW}, v{KA+1} offset:{L_K-L_Q+RS}", "kw")]
            ZQ = R2
            if w == 0:
                QBr=R0
                S0=QA; S1=QA+4; SM=KA
                rd = []
                for ks in range(4):
                    rd += [lambda ks=ks: C.lds(f"ds_read_b128 v[{QBr+4*ks}:{QBr+4*ks+3}], v{vQR} offset:{64*ks}", ("q",ks)),
                           lambda ks=ks: C.lds(f"ds_read_b128 v[{R1+4*ks}:{R1+4*ks+3}], v{vKT} offset:{ks*1024}", ("kt",0,ks))]
                rd += [(lambda ks=ks: C.lds(f"ds_read_b128 v[{R2+4*ks}:{R2+4*ks+3}], v{vKT} offset:{4096+ks*1024}", ("kt",1,ks))) for ks in range(4)]
                rd[0](); rd[1](); rd = rd[2:]
                weave(krest, rd, 2, True)
                def smf(kt, ks):
                    Sx = (S0, S1)[kt]; R = (R1, R2)[kt]
                    if ks in (0, 2): C.wait_l(("kt",kt,ks+1))
                    c = "0" if ks == 0 else f"v[{Sx}:{Sx+3}]"
                    a(f"v_mfma_f32_16x16x32_bf16 v[{Sx}:{Sx+3}], v[{R+4*ks}:{R+4*ks+3}], v[{QBr+4*ks}:{QBr+4*ks+3}], {c}")
                smf(0,0); smf(0,1)
                weave([lambda: smf(0,2), lambda: smf(0,3), lambda: smf(1,0), lambda: smf(1,1)], kpost, 2, True)
                smf(1,2); smf(1,3)
                C.wait_l("kw")
                a("s_barrier")
                trace(a, 5); P.stamp("barK")
                for ks in range(4):
                    C.lds(f"ds_read_b128 v[{R1+4*ks}:{R1+4*ks+3}], v{vKR} offset:{64*ks}", ("km",ks))
                mx=T; tt=T+1; nm=T+2; ls=T+4
                Pr=KA+4; PX=VA
                a(f"v_max3_f32 v{mx}, v{S0}, v{S0+1}, v{S0+2}")
                a(f"v_max3_f32 v{mx}, v{mx}, v{S0+3}, v{S1}")
                a(f"v_max3_f32 v{mx}, v{mx}, v{S1+1}, v{S1+2}")
                a(f"v_max_f32 v{mx}, v{mx}, v{S1+3}")
                a(f"v_mov_b32 v{tt}, v{mx}")
                def mmf(ks):
                    if ks in (0, 2): C.wait_l(("km",ks+1))
                    c = "0" if ks == 0 else f"v[{SM}:{SM+3}]"
                    a(f"v_mfma_f32_16x16x32_bf16 v[{SM}:{SM+3}], v[{R1+4*ks}:{R1+4*ks+3}], v[{QBr+4*ks}:{QBr+4*ks+3}], {c}")
                mmf(0)
                a(f"v_permlane32_swap_b32 v{tt}, v{mx}")
                mmf(1)
                a(f"v_max_f32 v{mx}, v{tt}, v{mx}")
                a(f"v_mov_b32 v{tt}, v{mx}")
                mmf(2)
                a(f"v_permlane16_swap_b32 v{tt}, v{mx}")
                mmf(3)
                a(f"v_max_f32 v{mx}, v{tt}, v{mx}")
                a(f"v_mul_f32 v{nm}, s{sC1}, v{mx}")
                tok = [S0+i for i in range(8)]
                for x in (S0, S0+2, S1, S1+2, SM):
                    a(f"v_pk_fma_f32 v[{x}:{x+1}], v[{x}:{x+1}], s[{sC1}:{sC1+1}], v[{nm}:{nm+1}] op_sel_hi:[1,1,0] neg_lo:[0,0,1] neg_hi:[0,0,1]")
                a(f"v_max_f32 v{tt}, v{SM}, v{SM+1}")
                a(f"v_cmp_lt_f32 vcc, 0x42800000, v{tt}")
                for r in tok: a(f"v_exp_f32 v{r}, v{r}")
                lfb = a.newlabel("c_fb"); lfr = a.newlabel("c_fr")
                a(f"s_cbranch_vccnz {lfb}")
                a.label(lfr)
                fbk.append((lfb, lfr))
                a(f"v_exp_f32 v{SM}, v{SM}")
                a(f"v_exp_f32 v{SM+1}, v{SM+1}")
                for i in range(4): a(f"v_cvt_pk_bf16_f32 v{Pr+i}, v{tok[2*i]}, v{tok[2*i+1]}")
                C.lds(f"ds_write_b128 v{vKT}, v[{Pr}:{Pr+3}] offset:{L_MS-L_KT}")
                a(f"v_pk_add_f32 v[{ls}:{ls+1}], v[{S0}:{S0+1}], v[{S0+2}:{S0+3}]")
                a(f"v_pk_add_f32 v[{S1}:{S1+1}], v[{S1}:{S1+1}], v[{S1+2}:{S1+3}]")
                a(f"v_pk_add_f32 v[{ls}:{ls+1}], v[{ls}:{ls+1}], v[{SM}:{SM+1}]")
                a(f"v_pk_add_f32 v[{ls}:{ls+1}], v[{ls}:{ls+1}], v[{S1}:{S1+1}]")
                a(f"v_add_f32 v{ls}, v{ls}, v{ls+1}")
                a(f"v_mov_b32 v{tt}, v{ls}")
                a(f"v_cvt_pk_bf16_f32 v{PX}, v{SM}, v{SM+1}")
                a(f"v_permlane32_swap_b32 v{tt}, v{ls}")
                a(f"v_add_f32 v{ls}, v{tt}, v{ls}")
                a(f"v_mov_b32 v{tt}, v{ls}")
                a(f"v_mov_b64 v[{ZQ}:{ZQ+1}], 0")
                a(f"v_permlane16_swap_b32 v{tt}, v{ls}")
                a(f"v_add_f32 v{ls}, v{tt}, v{ls}")
                a(f"v_rcp_f32 v{PX+2}, v{ls}")
                a(f"v_mov_b64 v[{ZQ+2}:{ZQ+3}], 0")
                C.lds(f"ds_write_b128 v{vKT}, v[{PX}:{PX+3}] offset:{L_MS-L_KT+1024}")
                trace(a, 7)
                C.all_l()
                a("s_barrier")
                a(f"v_mfma_f32_32x32x16_bf16 v[0:15], v[{ZQ}:{ZQ+3}], v[{ZQ}:{ZQ+3}], 0")
                a(f"v_mfma_f32_32x32x16_bf16 v[16:31], v[{ZQ}:{ZQ+3}], v[{ZQ}:{ZQ+3}], 0")
                trace(a, 6)
                a("s_barrier")
            else:
                vfr = [(lambda ti=ti, tau=tau: C.lds(f"ds_read_b128 v[{VFR[ti]}:{VFR[ti]+3}], v{vKT} offset:{L_VT-L_KT+tau*1024}", "vf")) for ti, tau in enumerate(TL)]
                weave(krest, vfr + late, 1, True)
                vq = list(vops)
                def vstep(n):
                    kb, ti = vops[n]
                    C.wait_l(("wv", n))
                    sl_ = SLOT[n % NS]
                    a(f"v_smfmac_f32_16x16x64_bf16 v[{VACC[ti]}:{VACC[ti]+3}], v[{M(kb)}:{M(kb)+3}], v[{sl_}:{sl_+7}], v{vIDX}")
                    if n + NS < len(vops): wvr(n + NS)
                vstep(0); vstep(1)
                for f in kpost: f()
                vstep(2)
                C.wait_l("kw")
                a("s_barrier")
                trace(a, 5); P.stamp("barK")
                dq = dmal() if (role == "DMA" and 'nodma' not in WI) else []
                for n in range(3, len(vops)):
                    vstep(n)
                    if dq: dq.pop(0)()
                a(f"v_mov_b64 v[{R1}:{R1+1}], 0"); a(f"v_mov_b64 v[{R1+2}:{R1+3}], 0")
                for ti, tau in enumerate(TL):
                    x = VACC[ti]
                    a(f"v_pk_add_f32 v[{x}:{x+1}], v[{x}:{x+1}], v[{x+2}:{x+3}]")
                    a(f"v_cvt_pk_bf16_f32 v{x}, v{x}, v{x+1}")
                    a(f"v_mov_b32 v{x+1}, 0")
                a(f"v_mfma_f32_32x32x16_bf16 v[0:15], v[{R1}:{R1+3}], v[{R1}:{R1+3}], 0")
                a(f"v_mfma_f32_32x32x16_bf16 v[16:31], v[{R1}:{R1+3}], v[{R1}:{R1+3}], 0")
                for ti, tau in enumerate(TL):
                    a(f"v_mov_b32 v{VH[ti]}, v{VACC[ti]}")
                trace(a, 7)
                C.all_l()
                a("s_barrier")
                Pr=KA+4; PX=T+2
                C.lds(f"ds_read_b128 v[{Pr}:{Pr+3}], v{vKT} offset:{L_MS-L_KT}", "p0")
                C.lds(f"ds_read_b128 v[{PX}:{PX+3}], v{vKT} offset:{L_MS-L_KT+1024}", "p1")
                OO = [R0, R0+4, R0+8]
                C.wait_l("p0")
                for ti in range(len(TL)):
                    a(f"v_mfma_f32_16x16x32_bf16 v[{OO[ti]}:{OO[ti]+3}], v[{VFR[ti]}:{VFR[ti]+3}], v[{Pr}:{Pr+3}], 0")
                C.wait_l("p1")
                for ti in range(len(TL)):
                    a(f"v_mfma_f32_16x16x16_bf16 v[{OO[ti]}:{OO[ti]+3}], v[{VACC[ti]}:{VACC[ti]+1}], v[{PX}:{PX+1}], v[{OO[ti]}:{OO[ti]+3}]")
                for ti, tau in enumerate(TL):
                    o = OO[ti]
                    a(f"v_pk_mul_f32 v[{o}:{o+1}], v[{o}:{o+1}], v[{PX+2}:{PX+3}] op_sel_hi:[1,0]")
                    a(f"v_pk_mul_f32 v[{o+2}:{o+3}], v[{o+2}:{o+3}], v[{PX+2}:{PX+3}] op_sel_hi:[1,0]")
                    a(f"v_cvt_pk_bf16_f32 v{o}, v{o}, v{o+1}")
                    a(f"v_cvt_pk_bf16_f32 v{o+1}, v{o+2}, v{o+3}")
                    C.lds(f"ds_write_b64 v{vOW}, v[{o}:{o+1}] offset:{32*tau}")
                trace(a, 6)
                C.all_l()
                a("s_barrier")
                ZQ = R1
            trace(a, 2); P.stamp("barO")
            OA=KA
            for kb2 in range(2):
                C.lds(f"ds_read_b128 v[{OA+4*kb2}:{OA+4*kb2+3}], v{vOR} offset:{128*kb2}", ("oa",kb2))
            a(f"v_add_u32 v{T}, 32768, v{vPST}")
            a(f"s_add_u32 s{sT+6}, s{sSTEP}, 1")
            a(f"v_mov_b32 v{T+1}, 0")
            a(f"v_mov_b32 v{T+2}, s{sT+6}")
            if par == 1:
                a(f"s_cmp_eq_u32 s{sSTEP}, 63")
                a(f"s_cbranch_scc1 {lend}")
            pf = [(lambda n=n: wvr(n)) for n in range(NS)] if w else []
            C.wait_l(("oa",0))
            def omf(i, kb2):
                if kb2: C.wait_l(("oa",1))
                a(f"v_smfmac_f32_16x16x64_bf16 v[{4*i}:{4*i+3}], v[{OA+4*kb2}:{OA+4*kb2+3}], v[{WO(i,kb2)}:{WO(i,kb2)+7}], v{vIDX}")
            PK = QA
            def fin(i):
                return [I(f"v_add_f32 v{4*i}, v{4*i}, v{4*i+2}"), I(f"v_add_f32 v{4*i+1}, v{4*i+1}, v{4*i+3}"),
                        I(f"v_cvt_pk_bf16_f32 v{PK+i}, v{4*i}, v{4*i+1}")]
            sl = sPB + 2*par
            order = [(0,0),(1,0),(0,1),(1,1),(2,0),(3,0),(2,1),(3,1),(4,0),(5,0),(4,1),(5,1),(6,0),(7,0),(6,1),(7,1)]
            fq = []
            for n, (i, kb2) in enumerate(order):
                omf(i, kb2)
                if n in (5, 9, 13):
                    fq += fin((n-5)//2) + fin((n-5)//2+1)
                    if n == 9: fq += [I(f"global_store_dwordx4 v{vPST}, v[{PK}:{PK+3}], s[{sl}:{sl+1}] {sc}"),
                                      I(f"global_store_dword v{T+1}, v{T+2}, s[{sFLW}:{sFLW+1}] {sc}")]
                for _ in range(2 if n >= 5 else 1):
                    if fq: fq.pop(0)()
            for f in fq: f()
            a(f"v_pk_add_f32 v[24:25], v[24:25], v[26:27]")
            a(f"v_pk_add_f32 v[28:29], v[28:29], v[30:31]")
            a(f"v_cvt_pk_bf16_f32 v{PK+6}, v24, v25")
            a(f"v_cvt_pk_bf16_f32 v{PK+7}, v28, v29")
            a(f"global_store_dwordx4 v{T}, v[{PK+4}:{PK+7}], s[{sl}:{sl+1}] {sc}")
            a(f"global_store_dword v{T+1}, v{T+2}, s[{sFLW}:{sFLW+1}] offset:128 {sc}")
            trace(a, 3); P.stamp("outp")
            if role == "R":
                for f in pf: f()
            if role == "R":
                RB=0; BS=VA; D=KA
                a(f"v_lshrrev_b32 v{T+4}, 2, v{vL16}")
                a(f"v_and_b32 v{T+4}, 127, v{T+4}")
                a(f"global_load_dword v{T+5}, v{T+4}, s[{sFLR}:{sFLR+1}] sc1")
                for d in range(4):
                    a(f"v_cndmask_b32 v{BS+d}, 0, v{vSELX}, s[{sSEL+2*d}:{sSEL+2*d+1}]")
                for i in range(1, 4): a(f"v_add_u32 v{T+i}, {8192*i}, v{vPRD}")
                for r in range(QA, QA+8, 2): a(f"v_mov_b64 v[{r}:{r+1}], 0")
                a(f"v_mov_b64 v[{VA+4}:{VA+5}], 0"); a(f"v_mov_b64 v[{VA+6}:{VA+7}], 0")
                rotate()
                sadd64(a, sVM, sVM, 65536)
                lp = a.newlabel("c_pollp"); lslow = a.newlabel("c_slow"); lok = a.newlabel("c_ok")
                if 'nortt' in WI:
                    trace(a, 1)
                    a("s_waitcnt vmcnt(0)")
                    trace(a, 5)
                ll = a.newlabel("c_light"); lgo = a.newlabel("c_go")
                LT = T+5
                a.label(ll)
                a("s_waitcnt vmcnt(0)")
                a(f"v_cmp_eq_u32 vcc, s{sT+6}, v{LT}")
                a(f"global_load_dword v{LT}, v{T+4}, s[{sFLR}:{sFLR+1}] sc1")
                a(f"s_bcnt1_i32_b32 s{sT}, vcc_lo")
                a(f"s_cmp_lt_u32 s{sT}, {SPEC_T}")
                a(f"s_cbranch_scc1 {retry_stub(ll)}")
                a.label(lp)
                for i in range(8):
                    base = vPRD if i < 2 else T + (i >> 1)
                    sb = sl if (i & 1) == 0 else sPBr + 2*par
                    a(f"global_load_dwordx4 v[{RB+4*i}:{RB+4*i+3}], v{base}, s[{sb}:{sb+1}] sc1")
                a("s_waitcnt vmcnt(8)")
                a(f"v_cmp_ne_u32 vcc, s{sT+6}, v{LT}")
                lre = a.newlabel("c_re")
                a(f"s_cbranch_vccnz {lre}")
                redo.append((lre, lp, T+4, LT))
                for i in range(8):
                    a(f"s_waitcnt vmcnt({7-i})")
                    c = "0" if i == 0 else f"v[{D}:{D+3}]"
                    a(f"v_mfma_f32_16x16x32_bf16 v[{D}:{D+3}], v[{RB+4*i}:{RB+4*i+3}], v[{BS}:{BS+3}], {c}")
                a(f"s_mov_b64 exec, s[{sPUBM}:{sPUBM+1}]")
                a(f"v_pk_add_f32 v[{D+4}:{D+5}], v[{D}:{D+1}], v[{D+2}:{D+3}]")
                a(f"v_cmp_u_f32 vcc, v{D+4}, v{D+5}")
                a(f"v_cvt_pk_bf16_f32 v{D}, v{D}, v{D+1}")
                a(f"v_cvt_pk_bf16_f32 v{D+1}, v{D+2}, v{D+3}")
                a(f"v_min_u32 v{D}, -2, v{D}")
                a(f"v_min_u32 v{D+1}, -2, v{D+1}")
                a(f"s_cbranch_vccnz {lslow}")
                a.label(lok)
                a(f"global_store_dwordx2 v{vPUB}, v[{D}:{D+1}], s[{sMB}:{sMB+1}] {sc}")
                trace(a, 4)
                a("s_barrier")
                a(f"v_mov_b64 v[{D+2}:{D+3}], -1")
                a(f"global_store_dwordx2 v{vPUB}, v[{D+2}:{D+3}], s[{sMB+4}:{sMB+5}] {sc}")
                if dump:
                    sadd64(a, sDUMP, sDUMP, 8192)
                    a(f"global_store_dwordx2 v{vPUB}, v[{D}:{D+1}], s[{sDUMP}:{sDUMP+1}]")
                a("s_mov_b64 exec, -1")
                trace_flush(a)
                mloads()
                for r in range(KA, KA+12, 2): a(f"v_mov_b64 v[{r}:{r+1}], 0")
                a(f"s_add_u32 s{sSTEP}, s{sSTEP}, 1")
                slow.append((lslow, lp, lok))
            else:
                if role == "PUB": sadd64(a, sKM, sKM, 131072)
                if role == "DMA":
                    sadd64(a, sKF, sKF, 262144)
                    a(f"v_lshlrev_b32 v{T+5}, 3, v{vL16}")
                    if par == 1 and kvflags:
                        lok2 = a.newlabel("c_fok")
                        a(f"v_cmp_le_u32 vcc, {KV_TARGET}, v{vFLG}")
                        a(f"s_cbranch_vccnz {lok2}")
                        wait_flag_spin(sFOFF)
                        a.label(lok2)
                        a(f"s_add_u32 s{sFOFF}, s{sFOFF}, 128")
                        a(f"s_min_u32 s{sFOFF}, s{sFOFF}, {F_KVRDY+31*128}")
            if role != "R":
                sadd64(a, sVM, sVM, 65536)
                rotate()
                trace_flush(a)
                a(f"s_add_u32 s{sSTEP}, s{sSTEP}, 1")
                a(f"v_mfma_f32_32x32x16_bf16 v[{QA}:{QA+15}], v[{ZQ}:{ZQ+3}], v[{ZQ}:{ZQ+3}], 0")
                for x in VACC:
                    a(f"v_mfma_f32_16x16x32_bf16 v[{x}:{x+3}], v[{ZQ}:{ZQ+3}], v[{ZQ}:{ZQ+3}], 0")
                for f in pf: f()
                if role == "PUB":
                    a(f"ds_read_b128 v[{M(KB[6])}:{M(KB[6])+3}], v{vFLG}")
                    a(f"ds_read_b128 v[{M(KB[7])}:{M(KB[7])+3}], v{vFLG} offset:{4*RS}")
                    a("s_waitcnt lgkmcnt(0)")
                a("s_barrier")
                mloads()
            a.flush_hazards()
        a(f"s_branch {lchk0}")
    for (l, lc, ml) in ptail:
        a.label(l)
        ml()
        a(f"s_branch {lc}")
    for (l, lback) in tails:
        a.label(l)
        a(f"s_add_u32 s{sSPIN}, s{sSPIN}, 1")
        a(f"s_cmp_lt_u32 s{sSPIN}, 0x80000")
        a(f"s_cbranch_scc1 {lback}")
        a("s_branch L_fail")
    for (l, lp, va, lt) in redo:
        a.label(l); a.hist=[]
        a(f"global_load_dword v{lt}, v{va}, s[{sFLR}:{sFLR+1}] sc1")
        a(f"s_add_u32 s{sSPIN}, s{sSPIN}, 1")
        a(f"s_cmp_lt_u32 s{sSPIN}, 0x80000")
        a(f"s_cbranch_scc1 {lp}")
        a("s_branch L_fail")
    for (l, lp, lok) in slow:
        a.label(l); a.hist=[]
        a("s_mov_b64 exec, -1")
        a(f"s_add_u32 s{sSPIN}, s{sSPIN}, 1")
        a(f"s_cmp_gt_u32 s{sSPIN}, 0x80000")
        a("s_cbranch_scc1 L_fail")
        a(f"s_and_b32 s{sT}, s{sSPIN}, 31")
        a(f"s_cmp_lg_u32 s{sT}, 0")
        a(f"s_cbranch_scc1 {lp}")
        a(f"s_mov_b32 s{sT}, {SENT}")
        a(f"s_mov_b64 s[{sT+2}:{sT+3}], 0")
        for r in range(32):
            a(f"v_cmp_eq_u32 vcc, s{sT}, v{r}")
            a(f"s_or_b64 s[{sT+2}:{sT+3}], s[{sT+2}:{sT+3}], vcc")
        a(f"s_cmp_lg_u64 s[{sT+2}:{sT+3}], 0")
        a(f"s_cbranch_scc1 {lp}")
        a(f"s_mov_b64 exec, s[{sPUBM}:{sPUBM+1}]")
        a(f"s_branch {lok}")
    for (l, lr) in fbk:
        a.label(l); a.hist=[]
        a("s_nop 7")
        SM=KA; S0=QA; Pr=KA+4; tt=T+1; d=T
        a(f"v_max_f32 v{d}, v{SM}, v{SM+1}")
        xl(a, d, tt, "v_max_f32")
        a(f"v_max_f32 v{d}, 0, v{d}")
        a(f"v_sub_f32 v{SM}, v{SM}, v{d}")
        a(f"v_sub_f32 v{SM+1}, v{SM+1}, v{d}")
        a(f"v_sub_f32 v{d}, 0, v{d}")
        a(f"v_exp_f32 v{d}, v{d}")
        for r in range(8): a(f"v_mul_f32 v{S0+r}, v{S0+r}, v{d}")
        a(f"s_branch {lr}")
    a.label(lend)
    a.flush_hazards()
    a(f"s_memtime s[{sT0+2}:{sT0+3}]")
    l0 = a.newlabel("c_fin")
    sadd64(a, sVM, sVM, 65536)
    for w in range(1, 4):
        lx = a.newlabel("c_fv")
        a(f"s_cmp_lg_u32 s{S_WAVE}, {w}")
        a(f"s_cbranch_scc1 {lx}")
        if w == 1:
            sadd64(a, sKM, sKM, 131072)
            a(f"ds_read_b128 v[0:3], v{vFLG}")
            a(f"ds_read_b128 v[4:7], v{vFLG} offset:{4*RS}")
            a("s_waitcnt lgkmcnt(0)")
            a(f"global_store_dwordx4 v{vL16}, v[0:3], s[{sKM}:{sKM+1}] sc1")
            a(f"global_store_dwordx4 v{vL16}, v[4:7], s[{sKM}:{sKM+1}] offset:1024 sc1")
        for ti, tau in enumerate([[], [0,1,2], [3,4,5], [6,7]][w]):
            a(f"global_store_dword v{vVXW}, v{[vQR, vKR, vVOFF][ti]}, s[{sVM}:{sVM+1}] offset:{256*tau} sc1")
        a.label(lx)
    a("s_waitcnt vmcnt(0) lgkmcnt(0)")
    a("s_barrier")
    a(f"s_cmp_lg_u32 s{S_WAVE}, 1")
    a(f"s_cbranch_scc1 {l0}")
    a(f"v_mov_b32 v{T}, s{sPRG}")
    a(f"v_mov_b32 v{T+2}, 64")
    a(f"global_store_dword v{T}, v{T+2}, s[{S_WS}:{S_WS+1}] sc1")
    a.label(l0)
    a("s_waitcnt lgkmcnt(0) vmcnt(0)")
    return P
```

```python
import sys
from asmlib import *
from layout import *
import bulk, ef, final
import chain7 as chain
from bulk import S_XCC, sT
import os
WB = bool(os.environ.get('WB'))
KNAME = "adaLN_cond__memory_aug_recurrent_mem_tr__moe_arch_mod__prompt"
def gen(force_fallback=False, dump=False):
    a = Asm()
    bulk.startup(a)
    TS(a, 0)
    a(f"s_cmp_lt_u32 s{S_TK}, 224")
    a("s_cbranch_scc1 L_bulk")
    a(f"s_cmp_eq_u32 s{S_TK}, 0xffff")
    a("s_cbranch_scc1 L_chain")
    bulk.decide(a, force_fallback)
    a(f"s_add_u32 s{S_VR}, s{sT+8}, s{S_TK}")
    a(f"s_sub_u32 s{S_VR}, s{S_VR}, 224")
    a(f"s_mov_b32 s{S_VX}, 0")
    a(f"s_cmp_ge_u32 s{S_VR}, 32")
    a("s_cbranch_scc1 L_fail")
    a.label("L_chain")
    a.flush_hazards()
    chain.lane_consts(a)
    chain.setup_weights(a)
    bulk.decide(a, force_fallback)
    TS(a, 1, vt=0)
    a(f"s_cmp_eq_u32 s{S_MODE}, 0")
    a("s_cbranch_scc1 L_chain0")
    chain.chain_main(a, "sc1", dump=dump)
    a("s_endpgm")
    a.label("L_chain0")
    a.flush_hazards()
    chain.chain_main(a, "", dump=dump)
    TS(a, 2, vt=0)
    if TS_ENABLED[0]:
        a(f"s_sub_u32 s70, s{chain.sT0+2}, s{chain.sT0}")
        a("v_mov_b32 v1, 0")
        a("v_mov_b32 v2, s70")
        a(f"global_store_dword v1, v2, s[{S_DBG}:{S_DBG+1}] offset:64")
    a("s_endpgm")
    a.label("L_bulk")
    a.flush_hazards()
    sB = 50
    a(f"s_sub_u32 s{sB}, s{S_TK}, 32")
    TS(a, 1)
    a(f"s_cmp_lt_u32 s{S_TK}, 32")
    a("s_cbranch_scc1 L_front")
    a(f"s_cmp_ge_u32 s{sB}, 128")
    a("s_cbranch_scc1 L_gonly")
    bulk.ln1_pre(a, sB)
    n = bulk.gemm_pre(a, sB)
    bulk.ln1_stage(a, sB, n)
    a("s_branch L_gemm")
    a.label("L_gonly")
    a.flush_hazards()
    bulk.gemm_pre(a, sB)
    a.label("L_gemm")
    a.flush_hazards()
    TS(a, 2)
    bulk.gemm_stage(a)
    TS(a, 4)
    a("s_branch L_ef")
    a.label("L_front")
    a.flush_hazards()
    bulk.mod_stage(a)
    TS(a, 8)
    a.label("L_ef")
    a.flush_hazards()
    bulk.decide(a, force_fallback)
    a(f"s_cmp_eq_u32 s{S_MODE}, 0")
    a("s_cbranch_scc1 L_efn")
    a(f"s_lshr_b32 s{S_VX}, s{S_TK}, 5")
    a(f"s_add_u32 s{S_VX}, s{S_VX}, 1")
    a(f"s_and_b32 s{S_VR}, s{S_TK}, 31")
    a.label("L_efn")
    a(f"s_cmp_ge_u32 s{S_VR}, 32")
    a("s_cbranch_scc1 L_fail")
    a(f"s_sub_u32 s{sT}, s{S_VX}, 1")
    a(f"s_cmp_ge_u32 s{sT}, 7")
    a("s_cbranch_scc1 L_fail")
    a(f"s_cmp_lg_u32 s{S_VX}, {FIN_UNIT}")
    a("s_cbranch_scc1 L_efs")
    final.ffn_preload(a)
    a.label("L_efs")
    a.flush_hazards()
    ef.ef_setup(a)
    TS(a, 5)
    a(f"s_cmp_lg_u32 s{S_MODE}, 0")
    a("s_cbranch_scc1 L_ef1")
    for sc, lab in (("", None), ("sc1", "L_ef1")):
        if lab: a.label(lab); a.flush_hazards()
        ef.ef_loop(a, sc)
        if WB:
            lwb = a.newlabel("wb")
            a(f"s_cmp_lg_u32 s{S_WAVE}, 0")
            a(f"s_cbranch_scc1 {lwb}")
            a(f"s_cmp_lg_u32 s{S_VR}, 0")
            a(f"s_cbranch_scc1 {lwb}")
            a("buffer_wbl2 sc1")
            a.label(lwb)
        a(f"s_cmp_lg_u32 s{S_VX}, {FIN_UNIT}")
        a("s_cbranch_scc1 L_exit")
        TS(a, 6)
        final.final_stage(a, sc)
        TS(a, 7)
        a("s_endpgm")
    a.label("L_fail")
    a("s_mov_b64 exec, -1")
    a("v_mov_b32 v1, 0")
    a("v_mov_b32 v2, 0xdead")
    a(f"global_store_dword v1, v2, s[{S_DBG}:{S_DBG+1}] offset:252")
    a.label("L_exit")
    a("s_endpgm")
    return a
def write(path, a):
    hdr = open(f"cdna_kernels/{KNAME}.s.ref").read().split("; Override launch geometry")[0]
    txt = hdr + f"""; @launch grid=(256,1,1) block=(256,1,1) lds=163840
.amdgcn_target "amdgcn-amd-amdhsa--gfx950"
.text
.globl {KNAME}_kernel
.p2align 8
.type {KNAME}_kernel,@function
{KNAME}_kernel:
{a.text()}
.section .rodata,"a"
.p2align 6
.amdhsa_kernel {KNAME}_kernel
  .amdhsa_next_free_vgpr 512
  .amdhsa_next_free_sgpr 102
  .amdhsa_accum_offset 256
  .amdhsa_group_segment_fixed_size 0
  .amdhsa_kernarg_size 136
  .amdhsa_user_sgpr_count 2
  .amdhsa_user_sgpr_kernarg_segment_ptr 1
  .amdhsa_system_sgpr_workgroup_id_x 1
.end_amdhsa_kernel
"""
    open(path, "w").write(txt)
if __name__ == "__main__":
    fb = "fb" in sys.argv; dump = "dump" in sys.argv
    TS_ENABLED[0] = "ts" in sys.argv
    a = gen(fb, dump)
    print("instrs", a.ninstr, "nops", a.nops_inserted)
    out = [x for x in sys.argv[1:] if x.endswith(".s")]
    write(out[0] if out else f"cdna_kernels/{KNAME}.s", a)
```

```python
import sys
from asmlib import *
from layout import *
import bulk, ef, final
import chain7 as chain
from bulk import S_XCC, sT
import os
WB = bool(os.environ.get('WB'))
KNAME = "adaLN_cond__memory_aug_recurrent_mem_tr__moe_arch_mod__prompt"
def gen(force_fallback=False, dump=False):
    a = Asm()
    a.label("L_code_start")
    a("s_getpc_b64 s[90:91]")
    bulk.startup(a)
    a(f"s_cmp_lg_u32 s{S_WAVE}, 3")
    a("s_cbranch_scc1 L_nowarm")
    a("v_and_b32 v1, 63, v0")
    a("v_lshlrev_b32 v1, 7, v1")
    a.raw("    s_mov_b32 s70, L_code_end - L_code_start - 128")
    a.label("L_warm")
    a("v_min_u32 v3, s70, v1")
    a("global_load_dword v249, v3, s[90:91]")
    a("v_add_u32 v1, 0x2000, v1")
    a("v_readfirstlane_b32 s71, v1")
    a("s_cmp_lt_u32 s71, s70")
    a("s_cbranch_scc1 L_warm")
    a.label("L_nowarm")
    a.flush_hazards()
    TS(a, 0)
    a(f"s_cmp_lt_u32 s{S_TK}, 224")
    a("s_cbranch_scc1 L_bulk")
    a(f"s_cmp_eq_u32 s{S_TK}, 0xffff")
    a("s_cbranch_scc1 L_chain")
    bulk.decide(a, force_fallback)
    a(f"s_add_u32 s{S_VR}, s{sT+8}, s{S_TK}")
    a(f"s_sub_u32 s{S_VR}, s{S_VR}, 224")
    a(f"s_mov_b32 s{S_VX}, 0")
    a(f"s_cmp_ge_u32 s{S_VR}, 32")
    a("s_cbranch_scc1 L_fail")
    a.label("L_chain")
    a.flush_hazards()
    chain.lane_consts(a)
    chain.setup_weights(a)
    bulk.decide(a, force_fallback)
    TS(a, 1, vt=0)
    a(f"s_cmp_eq_u32 s{S_MODE}, 0")
    a("s_cbranch_scc1 L_chain0")
    chain.chain_main(a, "sc1", dump=dump)
    a("s_endpgm")
    a.label("L_chain0")
    a.flush_hazards()
    chain.chain_main(a, "", dump=dump)
    TS(a, 2, vt=0)
    if TS_ENABLED[0]:
        a(f"s_sub_u32 s70, s{chain.sT0+2}, s{chain.sT0}")
        a("v_mov_b32 v1, 0")
        a("v_mov_b32 v2, s70")
        a(f"global_store_dword v1, v2, s[{S_DBG}:{S_DBG+1}] offset:64")
    a("s_endpgm")
    a.label("L_bulk")
    a.flush_hazards()
    sB = 50
    a(f"s_sub_u32 s{sB}, s{S_TK}, 32")
    TS(a, 1)
    a(f"s_cmp_lt_u32 s{S_TK}, 32")
    a("s_cbranch_scc1 L_front")
    a(f"s_cmp_ge_u32 s{sB}, 128")
    a("s_cbranch_scc1 L_gonly")
    bulk.ln1_pre(a, sB)
    n = bulk.gemm_pre(a, sB)
    bulk.ln1_stage(a, sB, n)
    a("s_branch L_gemm")
    a.label("L_gonly")
    a.flush_hazards()
    bulk.gemm_pre(a, sB)
    a.label("L_gemm")
    a.flush_hazards()
    TS(a, 2)
    bulk.gemm_stage(a)
    TS(a, 4)
    a("s_branch L_ef")
    a.label("L_front")
    a.flush_hazards()
    bulk.mod_stage(a)
    TS(a, 8)
    a.label("L_ef")
    a.flush_hazards()
    bulk.decide(a, force_fallback)
    a(f"s_cmp_eq_u32 s{S_MODE}, 0")
    a("s_cbranch_scc1 L_efn")
    a(f"s_lshr_b32 s{S_VX}, s{S_TK}, 5")
    a(f"s_add_u32 s{S_VX}, s{S_VX}, 1")
    a(f"s_and_b32 s{S_VR}, s{S_TK}, 31")
    a.label("L_efn")
    a(f"s_cmp_ge_u32 s{S_VR}, 32")
    a("s_cbranch_scc1 L_fail")
    a(f"s_sub_u32 s{sT}, s{S_VX}, 1")
    a(f"s_cmp_ge_u32 s{sT}, 7")
    a("s_cbranch_scc1 L_fail")
    a(f"s_cmp_lg_u32 s{S_VX}, {FIN_UNIT}")
    a("s_cbranch_scc1 L_efs")
    final.ffn_preload(a)
    a.label("L_efs")
    a.flush_hazards()
    ef.ef_setup(a)
    TS(a, 5)
    a(f"s_cmp_lg_u32 s{S_MODE}, 0")
    a("s_cbranch_scc1 L_ef1")
    for sc, lab in (("", None), ("sc1", "L_ef1")):
        if lab: a.label(lab); a.flush_hazards()
        ef.ef_loop(a, sc)
        if WB:
            lwb = a.newlabel("wb")
            a(f"s_cmp_lg_u32 s{S_WAVE}, 0")
            a(f"s_cbranch_scc1 {lwb}")
            a(f"s_cmp_lg_u32 s{S_VR}, 0")
            a(f"s_cbranch_scc1 {lwb}")
            a("buffer_wbl2 sc1")
            a.label(lwb)
        a(f"s_cmp_lg_u32 s{S_VX}, {FIN_UNIT}")
        a("s_cbranch_scc1 L_exit")
        TS(a, 6)
        final.final_stage(a, sc)
        TS(a, 7)
        a("s_endpgm")
    a.label("L_fail")
    a("s_mov_b64 exec, -1")
    a("v_mov_b32 v1, 0")
    a("v_mov_b32 v2, 0xdead")
    a(f"global_store_dword v1, v2, s[{S_DBG}:{S_DBG+1}] offset:252")
    a.label("L_exit")
    a("s_endpgm")
    a.label("L_code_end")
    return a
def write(path, a):
    hdr = open(f"cdna_kernels/{KNAME}.s.ref").read().split("; Override launch geometry")[0]
    txt = hdr + f"""; @launch grid=(256,1,1) block=(256,1,1) lds=163840
.amdgcn_target "amdgcn-amd-amdhsa--gfx950"
.text
.globl {KNAME}_kernel
.p2align 8
.type {KNAME}_kernel,@function
{KNAME}_kernel:
{a.text()}
.section .rodata,"a"
.p2align 6
.amdhsa_kernel {KNAME}_kernel
  .amdhsa_next_free_vgpr 512
  .amdhsa_next_free_sgpr 102
  .amdhsa_accum_offset 256
  .amdhsa_group_segment_fixed_size 0
  .amdhsa_kernarg_size 136
  .amdhsa_user_sgpr_count 2
  .amdhsa_user_sgpr_kernarg_segment_ptr 1
  .amdhsa_system_sgpr_workgroup_id_x 1
.end_amdhsa_kernel
"""
    open(path, "w").write(txt)
if __name__ == "__main__":
    fb = "fb" in sys.argv; dump = "dump" in sys.argv
    TS_ENABLED[0] = "ts" in sys.argv
    a = gen(fb, dump)
    print("instrs", a.ninstr, "nops", a.nops_inserted)
    out = [x for x in sys.argv[1:] if x.endswith(".s")]
    write(out[0] if out else f"cdna_kernels/{KNAME}.s", a)
```

```python
from asmlib import *
from layout import *
S_XCC=39
sT=70
F_HALL = F_FFN

def load_args(a):
    for (reg, off) in ((S_WS,K_WS),(S_DBG,K_DBG),(S_WQ,K_WQ),(S_WK,K_WK),(S_WV,K_WV),(S_WO,K_WO),(S_MEM0,K_MEM0),(S_X,K_X),(S_OUT,K_OUT),
                       (S_WMOD,K_WMOD),(S_C,K_C),(S_WR,K_WR),(S_WG,K_WG),(S_WU,K_WU),(S_WD,K_WD)):
        a(f"s_load_dwordx2 s[{reg}:{reg+1}], s[0:1], {off}")

def startup(a, force_fallback=False):
    a("s_cmp_ge_u32 s2, 256")
    a("s_cbranch_scc1 L_exit")
    load_args(a)
    a(f"s_mov_b32 s{S_WGID}, s2")
    a(f"s_getreg_b32 s{S_XCC}, hwreg(HW_REG_XCC_ID, 0, 4)")
    a("v_lshrrev_b32 v1, 6, v0")
    a(f"v_readfirstlane_b32 s{S_WAVE}, v1")
    a(f"s_and_b32 s{S_XCC}, s{S_XCC}, 7")
    a(f"s_lshl_b32 s{sT}, s{S_XCC}, 3")
    a(f"s_lshl_b64 s[{sT+2}:{sT+3}], 1, s{sT}")
    a("v_mov_b32 v1, 0")
    a("v_mov_b32 v2, 1")
    a(f"v_mov_b32 v10, s{sT+2}")
    a(f"v_mov_b32 v11, s{sT+3}")
    a("v_mov_b32 v9, 0xffff")
    a("v_and_b32 v3, 63, v0")
    a(f"s_lshl_b32 s{sT+1}, s{S_WGID}, 8")
    a(f"v_lshl_add_u32 v4, v3, 2, s{sT+1}")
    a("s_waitcnt lgkmcnt(0)")
    a(f"s_cmp_lg_u32 s{S_WAVE}, 0")
    a("s_cbranch_scc1 L_st1")
    a("s_mov_b64 exec, 1")
    a(f"s_cmp_lg_u32 s{S_XCC}, 0")
    a("s_cbranch_scc1 L_st0")
    a(f"global_atomic_add v8, v1, v2, s[{S_DBG}:{S_DBG+1}] sc0")
    a("s_waitcnt vmcnt(0)")
    import os
    a(f"v_cmp_gt_u32 vcc, {os.environ.get('TH','32')}, v8")
    a("s_cbranch_vccnz L_st0b")
    a.label("L_st0")
    a(f"global_atomic_add_x2 v[12:13], v1, v[10:11], s[{S_DBG}:{S_DBG+1}] offset:{D_PACK} sc0")
    a("s_waitcnt vmcnt(0)")
    a(f"v_lshrrev_b64 v[14:15], s{sT}, v[12:13]")
    a("v_and_b32 v8, 0xff, v14")
    a("v_sad_u8 v9, v12, 0, 0")
    a("v_sad_u8 v9, v13, 0, v9")
    a.label("L_st0b")
    a("ds_write_b64 v1, v[8:9]")
    a("s_mov_b64 exec, -1")
    a("s_branch L_st3")
    a.label("L_st1")
    a(f"s_cmp_lg_u32 s{S_WAVE}, 1")
    a("s_cbranch_scc1 L_st2")
    a("v_mov_b32 v6, 0")
    a(f"global_store_dword v4, v6, s[{S_WS}:{S_WS+1}] sc1")
    a("v_mov_b32 v6, -1")
    a(f"v_add_u32 v4, {WS_MB}, v4")
    a(f"global_store_dword v4, v6, s[{S_WS}:{S_WS+1}] sc1")
    a("s_branch L_st3")
    a.label("L_st2")
    a(f"s_lshl_b32 s{sT+1}, s{S_WGID}, 11")
    a(f"s_and_b32 s{sT}, s{S_WAVE}, 1")
    a(f"s_lshl_b32 s{sT}, s{sT}, 10")
    a(f"s_add_u32 s{sT+1}, s{sT+1}, s{sT}")
    a(f"s_add_u32 s{sT+1}, s{sT+1}, {WS_PB}")
    a(f"v_lshl_add_u32 v5, v3, 4, s{sT+1}")
    for r in range(12, 16): a(f"v_mov_b32 v{r}, {SENT}")
    a(f"global_store_dwordx4 v5, v[12:15], s[{S_WS}:{S_WS+1}] sc1")
    a.label("L_st3")
    a("s_waitcnt vmcnt(0) lgkmcnt(0)")
    a("s_barrier")
    a("v_mov_b32 v1, 0")
    a("ds_read_b64 v[8:9], v1")
    a(f"s_cmp_lg_u32 s{S_WAVE}, 1")
    a("s_cbranch_scc1 L_st4")
    a("s_mov_b64 exec, 1")
    a(f"v_mov_b32 v1, {D_TOTAL}")
    a(f"global_atomic_add v1, v2, s[{S_DBG}:{S_DBG+1}]")
    a("s_mov_b64 exec, -1")
    a.label("L_st4")
    a("s_waitcnt lgkmcnt(0)")
    a(f"v_readfirstlane_b32 s{S_RANK}, v8")
    a(f"v_readfirstlane_b32 s{S_TK}, v9")
    a(f"s_mov_b32 s{S_VX}, s{S_XCC}")
    a(f"s_mov_b32 s{S_VR}, s{S_RANK}")
    a("s_barrier")

def decide(a, force_fallback=False):
    poll_counter(a, D_TOTAL, 256, vt=2)
    a("v_mov_b32 v1, 0")
    a(f"global_load_dwordx2 v[4:5], v1, s[{S_DBG}:{S_DBG+1}] offset:{D_PACK} sc1")
    a(f"global_load_dword v6, v1, s[{S_DBG}:{S_DBG+1}] sc1")
    a("s_waitcnt vmcnt(0)")
    a(f"v_readfirstlane_b32 s{sT+8}, v6")
    a("v_xor_b32 v4, 0x20202000, v4")
    a("v_xor_b32 v5, 0x20202020, v5")
    a("v_xor_b32 v6, 32, v6")
    a("v_or3_b32 v4, v4, v5, v6")
    a(f"v_readfirstlane_b32 s{S_MODE}, v4")
    a(f"s_cmp_lg_u32 s{S_MODE}, 0")
    a(f"s_cselect_b32 s{S_MODE}, 1, 0")
    if force_fallback:
        a(f"s_mov_b32 s{S_MODE}, 1")

def poll_counter(a, off, val, vt=1, base=S_DBG, sleep=4):
    l = a.newlabel("poll"); ld = a.newlabel("polld")
    a(f"s_cmp_lg_u32 s{S_WAVE}, 0")
    a(f"s_cbranch_scc1 {ld}")
    a(f"v_mov_b32 v{vt}, {off}")
    a(f"s_mov_b32 s{sT+9}, 0")
    a("s_mov_b64 exec, 1")
    a.label(l)
    a(f"global_load_dword v{vt+1}, v{vt}, s[{base}:{base+1}] sc1")
    a(f"s_add_u32 s{sT+9}, s{sT+9}, 1")
    a(f"s_cmp_gt_u32 s{sT+9}, 0x80000")
    a("s_cbranch_scc1 L_fail")
    a("s_waitcnt vmcnt(0)")
    a(f"v_cmp_le_u32 vcc, {val}, v{vt+1}")
    a(f"s_cbranch_vccnz {ld}")
    if sleep: a(f"s_sleep {sleep}")
    a(f"s_branch {l}")
    a.label(ld)
    a("s_mov_b64 exec, -1")
    a("s_barrier")

def signal_add(a, off, vt=1, base=S_DBG):
    l = a.newlabel("sig")
    a(f"s_cmp_lg_u32 s{S_WAVE}, 0")
    a(f"s_cbranch_scc1 {l}")
    a(f"v_mov_b32 v{vt}, {off}")
    a(f"v_mov_b32 v{vt+1}, 1")
    a("s_mov_b64 exec, 1")
    a(f"global_atomic_add v{vt}, v{vt+1}, s[{base}:{base+1}]")
    a("s_mov_b64 exec, -1")
    a.label(l)

def lane_ids(a, l, g, c):
    a(f"v_mbcnt_lo_u32_b32 v{l}, -1, 0")
    a(f"v_mbcnt_hi_u32_b32 v{l}, -1, v{l}")
    a(f"v_lshrrev_b32 v{g}, 4, v{l}")
    a(f"v_and_b32 v{c}, 15, v{l}")

def stage_rows(a, sbase, row_shift_or_stride, nrows, lds_base, v0, clamp12=False):
    stride = row_shift_or_stride
    l=v0; g=v0+1; c=v0+2; t=v0+3; o0=v0+4; o1=v0+5
    lane_ids(a, l, g, c)
    a(f"v_lshrrev_b32 v{t}, 1, v{c}")
    a(f"v_xor_b32 v{t}, v{t}, v{g}")
    for (o, x) in ((o0, 0), (o1, 4)):
        a(f"v_xor_b32 v{o}, {x}, v{t}")
        if clamp12:
            a(f"v_subrev_u32 v{l}, 2, v{o}")
            a(f"v_cmp_lt_u32 vcc, 5, v{o}")
            a(f"v_cndmask_b32 v{o}, v{o}, v{l}, vcc")
        a(f"v_lshlrev_b32 v{o}, 5, v{o}")
        a(f"v_and_b32 v{l}, 1, v{c}")
        a(f"v_lshl_add_u32 v{o}, v{l}, 4, v{o}")
        a(f"s_mov_b32 s{sT}, {stride}")
        a(f"v_mad_u32_u24 v{o}, v{g}, s{sT}, v{o}")
    per = nrows // 4
    a(f"s_mul_i32 s{sT}, s{S_WAVE}, {per*stride}")
    a(f"s_add_u32 s{sT+2}, s{sbase}, s{sT}")
    a(f"s_addc_u32 s{sT+3}, s{sbase+1}, 0")
    a(f"s_mul_i32 s{sT+1}, s{S_WAVE}, {per*256}")
    a(f"s_add_u32 s{sT+1}, s{sT+1}, {lds_base}")
    n = per // 4
    for i in range(n):
        a(f"s_add_u32 m0, s{sT+1}, {i*1024}")
        a(f"global_load_lds_dwordx4 v{o1 if (i>>1)&1 else o0}, s[{sT+2}:{sT+3}]")
        if i < n-1:
            a(f"s_add_u32 s{sT+2}, s{sT+2}, {4*stride}")
            a(f"s_addc_u32 s{sT+3}, s{sT+3}, 0")
    return n

def tr_base(a, dst, v0, unit_expr=None):
    l=v0; g=v0+1; c=v0+2; t=v0+3
    lane_ids(a, l, g, c)
    a(f"v_lshrrev_b32 v{t}, 2, v{c}")
    a(f"v_lshl_add_u32 v{dst}, v{g}, 3, v{t}")
    a(f"v_lshlrev_b32 v{dst}, 8, v{dst}")
    a(f"v_and_b32 v{l}, 1, v{g}")
    a(f"v_lshl_add_u32 v{dst+1}, v{l}, 2, v{t}")
    a(f"v_and_b32 v{l}, 3, v{c}")
    return l

def rnd_pair(a, x, tmp=None):
    a(f"v_cvt_pk_bf16_f32 v{x+1}, v{x}, v{x+1}")
    a(f"v_lshlrev_b32 v{x}, 16, v{x+1}")
    a(f"v_and_b32 v{x+1}, 0xffff0000, v{x+1}")
def rnd1(a, x):
    a(f"v_cvt_pk_bf16_f32 v{x}, v{x}, v{x}")
    a(f"v_lshlrev_b32 v{x}, 16, v{x}")

LOG2E = 1.4426950408889634
def mod_stage(a):
    L_S = 131072; L_Z = L_S + 1024; L_R = L_Z + 1024
    a("v_lshlrev_b32 v20, 2, v0")
    a(f"global_load_dword v21, v20, s[{S_C}:{S_C+1}]")
    lane_ids(a, 2, 3, 4)
    parts = ((2, 0, 0), (4, 1024, 32768))
    def mdma(nt, col0, lb):
        RB = 32*nt; rpi = 1024 // RB; sh = {2: 2, 4: 3}[nt]
        a(f"v_lshrrev_b32 v5, {sh}, v2")
        a(f"s_mov_b32 s{sT}, 6144")
        a(f"v_mul_lo_u32 v5, v5, s{sT}")
        a(f"v_and_b32 v6, {2*nt-1}, v2")
        a(f"v_lshl_add_u32 v5, v6, 4, v5")
        a(f"s_mul_i32 s{sT}, s{S_TK}, {RB}")
        a(f"s_mul_i32 s{sT+1}, s{S_WAVE}, {128*6144}")
        a(f"s_add_u32 s{sT}, s{sT}, s{sT+1}")
        a(f"s_add_u32 s{sT}, s{sT}, {col0*2}")
        a(f"s_add_u32 s{sT+2}, s{S_WMOD}, s{sT}")
        a(f"s_addc_u32 s{sT+3}, s{S_WMOD+1}, 0")
        a(f"s_mul_i32 s{sT+1}, s{S_WAVE}, {128*RB}")
        n = 128 // rpi
        for i in range(n):
            a(f"s_add_u32 m0, s{sT+1}, {lb + i*1024}")
            a(f"global_load_lds_dwordx4 v5, s[{sT+2}:{sT+3}]")
            if i < n-1:
                a(f"s_add_u32 s{sT+2}, s{sT+2}, {rpi*6144}")
                a(f"s_addc_u32 s{sT+3}, s{sT+3}, 0")
        return n
    nd = mdma(*parts[0])
    a(f"s_waitcnt vmcnt({nd})")
    a("v_lshlrev_b32 v22, 16, v21")
    a("v_and_b32 v23, 0xffff0000, v21")
    a(f"s_mov_b32 s{sT}, {f2u(-LOG2E)}")
    for r in (22, 23):
        a(f"v_mul_f32 v{r+2}, s{sT}, v{r}")
        a(f"v_exp_f32 v{r+2}, v{r+2}")
        a(f"v_add_f32 v{r+2}, 1.0, v{r+2}")
        a(f"v_rcp_f32 v{r+2}, v{r+2}")
        a(f"v_mul_f32 v{r}, v{r}, v{r+2}")
    a("v_cvt_pk_bf16_f32 v22, v22, v23")
    a(f"v_add_u32 v20, {L_S}, v20")
    a("v_mov_b32 v23, 0")
    a("ds_write_b32 v20, v22")
    a("ds_write_b32 v20, v23 offset:1024")
    a(f"s_lshl_b32 s{sT}, s{S_WAVE}, 8")
    a(f"s_add_u32 s{sT+1}, s{sT}, {L_S}")
    a(f"v_lshl_add_u32 v12, v3, 4, s{sT+1}")
    a(f"s_add_u32 s{sT+1}, s{sT}, {L_Z}")
    a(f"v_mov_b32 v13, s{sT+1}")
    a("v_cmp_eq_u32 vcc, 0, v4")
    a("v_cndmask_b32 v12, v13, v12, vcc")
    a("s_waitcnt lgkmcnt(0)")
    for ks in range(4):
        a(f"ds_read_b128 v[{32+4*ks}:{35+4*ks}], v12 offset:{64*ks}")
    a("v_lshrrev_b32 v7, 2, v4")
    a("v_lshl_add_u32 v7, v3, 3, v7")
    a("v_and_b32 v8, 3, v4")
    for pi, (nt, col0, lb) in enumerate(parts):
        RB = 32*nt
        a(f"v_mul_u32_u24 v9, {RB}, v7")
        a("v_lshl_add_u32 v9, v8, 3, v9")
        a(f"s_mul_i32 s{sT+1}, s{S_WAVE}, {128*RB}")
        a(f"s_add_u32 s{sT+1}, s{sT+1}, {lb}")
        a(f"v_add_u32 v9, s{sT+1}, v9")
        if pi == 1: mdma(*parts[1])
        a("s_waitcnt vmcnt(0)")
        for u in range(nt):
            for ks in range(4):
                for m in range(2):
                    a(f"ds_read_b64_tr_b16 v[{64+16*u+4*ks+2*m}:{65+16*u+4*ks+2*m}], v9 offset:{(32*ks+4*m)*RB+32*u}")
        a("s_waitcnt lgkmcnt(0)")
        for u in range(nt):
            for ks in range(4):
                c = "0" if ks == 0 else f"v[{48+4*u}:{51+4*u}]"
                a(f"v_mfma_f32_16x16x32_bf16 v[{48+4*u}:{51+4*u}], v[{32+4*ks}:{35+4*ks}], v[{64+16*u+4*ks}:{67+16*u+4*ks}], {c}")
        a(f"s_lshl_b32 s{sT}, s{S_WAVE}, 8")
        a(f"s_add_u32 s{sT}, s{sT}, {L_R + pi*1024}")
        a(f"v_lshl_add_u32 v10, v4, 2, s{sT}")
        a("s_mov_b64 exec, 0xffff")
        for u in range(nt):
            a(f"ds_write_b32 v10, v{48+4*u} offset:{64*u}")
        a("s_mov_b64 exec, -1")
        a("s_waitcnt lgkmcnt(0)")
        a("s_barrier")
        lsk = a.newlabel("modw")
        a(f"s_cmp_lg_u32 s{S_WAVE}, 0")
        a(f"s_cbranch_scc1 {lsk}")
        a(f"v_lshlrev_b32 v10, 2, v2")
        a(f"v_add_u32 v11, {L_R + pi*1024}, v10")
        for w in range(4): a(f"ds_read_b32 v{14+w}, v11 offset:{256*w}")
        a("s_waitcnt lgkmcnt(0)")
        a("v_add_f32 v14, v14, v15")
        a("v_add_f32 v16, v16, v17")
        a("v_add_f32 v16, v14, v16")
        rnd1(a, 16)
        a(f"s_mul_i32 s{sT+1}, s{S_TK}, {16*nt}")
        a(f"s_add_u32 s{sT+1}, s{sT+1}, {col0}")
        a(f"s_lshr_b32 s{sT+2}, s{sT+1}, 9")
        a(f"s_cmp_eq_u32 s{sT+2}, 1")
        a(f"s_cselect_b32 s{sT+3}, 1.0, 0")
        a(f"s_cmp_eq_u32 s{sT+2}, 4")
        a(f"s_cselect_b32 s{sT+3}, 1.0, s{sT+3}")
        a(f"v_add_f32 v16, s{sT+3}, v16")
        rnd1(a, 16)
        a(f"s_lshl_b32 s{sT+1}, s{sT+1}, 2")
        a(f"s_add_u32 s{sT+1}, s{sT+1}, {WS_MOD}")
        a(f"v_add_u32 v10, s{sT+1}, v10")
        if nt == 2: a("s_mov_b32 exec_hi, 0")
        a(f"global_store_dword v10, v16, s[{S_WS}:{S_WS+1}] sc1")
        a("s_mov_b64 exec, 1")
        a(f"v_mov_b32 v10, {D_MODRDY + 4*pi}")
        a("v_mov_b32 v11, 1")
        a("s_waitcnt vmcnt(0)")
        a(f"global_atomic_add v10, v11, s[{S_DBG}:{S_DBG+1}]")
        a("s_mov_b64 exec, -1")
        a.label(lsk)
        a.flush_hazards()
        if pi == 0:
            TS(a, 9)
            a("s_barrier")
            a(f"s_lshl_b32 s{sT}, s{S_TK}, 17")
            a(f"s_lshl_b32 s{sT+1}, s{S_WAVE}, 15")
            a(f"s_add_u32 s{sT}, s{sT}, s{sT+1}")
            a(f"v_lshl_add_u32 v10, v2, 7, s{sT}")
            for i in range(4):
                a(f"global_load_dword v248, v10, s[{S_WO}:{S_WO+1}]")
                a("v_add_u32 v10, 0x2000, v10")

def row16_sum(a, x, t):
    for sh in (8, 4, 2, 1):
        a(f"v_add_f32_dpp v{x}, v{x}, v{x} row_ror:{sh} row_mask:0xf bank_mask:0xf")

def ln_rows(a, X, MV, T0):
    s=T0; q=T0+2
    a(f"v_pk_add_f32 v[{s}:{s+1}], v[{X}:{X+1}], v[{X+2}:{X+3}]")
    for i in range(4, 32, 2):
        a(f"v_pk_add_f32 v[{s}:{s+1}], v[{s}:{s+1}], v[{X+i}:{X+i+1}]")
    a(f"v_add_f32 v{s}, v{s}, v{s+1}")
    row16_sum(a, s, None)
    a(f"v_mul_f32 v{s}, {f2u(1/512)}, v{s}")
    a(f"v_mov_b32 v{s+1}, v{s}")
    a(f"v_mov_b64 v[{q}:{q+1}], 0")
    for i in range(0, 32, 2):
        a(f"v_pk_add_f32 v[{T0+4}:{T0+5}], v[{X+i}:{X+i+1}], v[{s}:{s+1}] neg_lo:[0,1] neg_hi:[0,1]")
        a(f"v_pk_fma_f32 v[{q}:{q+1}], v[{T0+4}:{T0+5}], v[{T0+4}:{T0+5}], v[{q}:{q+1}]")
    a(f"v_add_f32 v{q}, v{q}, v{q+1}")
    row16_sum(a, q, None)
    a(f"v_mul_f32 v{q}, {f2u(1/512)}, v{q}")
    rnd1(a, q)
    a(f"v_add_f32 v{q}, {f2u(1e-5)}, v{q}")
    rnd1(a, q)
    a(f"v_sqrt_f32 v{q}, v{q}")
    rnd1(a, q)
    a(f"v_rcp_f32 v{s+1}, v{q}")
    rnd1(a, s)

def ln_apply(a, X, s, CA, SA, OUT):
    a(f"v_mov_b32 v{s+2}, v{s}")
    a(f"v_mov_b32 v{s+3}, v{s}")
    a(f"v_mov_b32 v{s+4}, v{s+1}")
    a(f"v_mov_b32 v{s+5}, v{s+1}")
    for i in range(0, 32, 2):
        x = X+i
        a(f"v_pk_add_f32 v[{x}:{x+1}], v[{x}:{x+1}], v[{s+2}:{s+3}] neg_lo:[0,1] neg_hi:[0,1]")
        rnd_pair(a, x)
        a(f"v_pk_mul_f32 v[{x}:{x+1}], v[{x}:{x+1}], v[{s+4}:{s+5}]")
        rnd_pair(a, x)
        a(f"v_pk_mul_f32 v[{x}:{x+1}], v[{x}:{x+1}], v[{CA+i}:{CA+i+1}]")
        rnd_pair(a, x)
        a(f"v_pk_add_f32 v[{x}:{x+1}], v[{x}:{x+1}], v[{SA+i}:{SA+i+1}]")
        a(f"v_cvt_pk_bf16_f32 v{OUT+i//2}, v{x}, v{x+1}")

def ln1_all(a, sB):
    CA=176; SA=208
    sets = ((128, 144, 240, 0), (96, 64, 112, 64))
    lane_ids(a, 120, 121, 122)
    a(f"s_lshl_b32 s{sT}, s{sB}, 4")
    a(f"s_lshl_b32 s{sT+1}, s{S_WAVE}, 2")
    a(f"s_add_u32 s{sT}, s{sT}, s{sT+1}")
    a(f"v_add_u32 v123, s{sT}, v121")
    a("v_lshlrev_b32 v123, 10, v123")
    a("v_lshl_add_u32 v123, v122, 4, v123")
    for (RW, X, T0, add) in sets:
        if add: a(f"v_add_u32 v123, {add*16*1024}, v123")
        for j in range(4):
            a(f"global_load_dwordx4 v[{RW+4*j}:{RW+4*j+3}], v123, s[{S_X}:{S_X+1}] offset:{256*j}")
    for k, (RW, X, T0, add) in enumerate(sets):
        a(f"s_waitcnt vmcnt({4*(1-k)})")
        for i in range(16):
            a(f"v_lshlrev_b32 v{X+2*i}, 16, v{RW+i}")
            a(f"v_and_b32 v{X+2*i+1}, 0xffff0000, v{RW+i}")
        ln_rows(a, X, None, T0)
    poll_counter(a, D_TOTAL, 256, vt=124)
    poll_counter(a, D_MODRDY, 32, vt=124, sleep=2)
    a("v_lshlrev_b32 v124, 5, v122")
    a(f"v_add_u32 v124, {WS_MOD}, v124")
    for j in range(4):
        for h in range(2):
            a(f"global_load_dwordx4 v[{SA+8*j+4*h}:{SA+8*j+4*h+3}], v124, s[{S_WS}:{S_WS+1}] offset:{512*j+16*h} sc1")
            a(f"global_load_dwordx4 v[{CA+8*j+4*h}:{CA+8*j+4*h+3}], v124, s[{S_WS}:{S_WS+1}] offset:{2048+512*j+16*h} sc1")
    a("v_lshrrev_b32 v126, 2, v122")
    a("v_lshlrev_b32 v126, 10, v126")
    a("v_and_b32 v125, 3, v122")
    a("v_lshl_add_u32 v126, v125, 8, v126")
    a(f"s_lshl_b32 s{sT+1}, s{S_WAVE}, 2")
    a(f"v_add_u32 v125, s{sT+1}, v121")
    a("v_lshl_add_u32 v126, v125, 4, v126")
    a(f"s_lshl_b32 s{sT}, s{sB}, 14")
    a(f"s_add_u32 s{sT}, s{sT}, {WS_H}")
    a(f"v_add_u32 v126, s{sT}, v126")
    a("s_waitcnt vmcnt(0)")
    for (RW, X, T0, add) in sets:
        ln_apply(a, X, T0, CA, SA, RW)
        a(f"v_add_u32 v127, {add*16384}, v126")
        for j in range(4):
            if j: a("v_add_u32 v127, 4096, v127")
            a(f"global_store_dwordx4 v127, v[{RW+4*j}:{RW+4*j+3}], s[{S_WS}:{S_WS+1}] sc1")
        a("s_waitcnt vmcnt(0)")
        a("s_barrier")
        a(f"s_add_u32 s{sT+8}, s{sB}, {add}")
        a(f"s_lshr_b32 s{sT+8}, s{sT+8}, 2")
        a(f"s_lshl_b32 s{sT+8}, s{sT+8}, 7")
        a(f"s_add_u32 s{sT+8}, s{sT+8}, {F_HRDY}")
        signal_add(a, f"s{sT+8}", vt=124, base=S_WS)
        signal_add(a, F_HALL, vt=124, base=S_WS)

sNT=40; sMH=41; sMTX=42; sHEAD=43; sOUTB=44; sHB=46; sIT=48; sSIG=49
def gemm_pre(a, sB, isQ):
    if isQ:
        a(f"s_lshr_b32 s{sMH}, s{sB}, 5")
        a(f"s_mov_b32 s{sMTX}, 2")
    else:
        a(f"s_lshr_b32 s{sMH}, s{sB}, 6")
        a(f"s_bfe_u32 s{sMTX}, s{sB}, 0x10005")
    a(f"s_and_b32 s{sHEAD}, s{sB}, 31")
    a(f"s_mov_b64 s[{sT+6}:{sT+7}], s[{S_WK}:{S_WK+1}]")
    a(f"s_cmp_eq_u32 s{sMTX}, 1")
    a(f"s_cselect_b64 s[{sT+6}:{sT+7}], s[{S_WV}:{S_WV+1}], s[{sT+6}:{sT+7}]")
    a(f"s_cmp_eq_u32 s{sMTX}, 2")
    a(f"s_cselect_b64 s[{sT+6}:{sT+7}], s[{S_WQ}:{S_WQ+1}], s[{sT+6}:{sT+7}]")
    a(f"s_lshl_b32 s{sT}, s{sHEAD}, 8")
    a(f"s_add_u32 s{sT+6}, s{sT+6}, s{sT}")
    a(f"s_addc_u32 s{sT+7}, s{sT+7}, 0")
    return stage_rows(a, sT+6, 8192, 512, 0, 2)

def gemm_stage(a):
    C = Cnt(a)
    a("s_waitcnt vmcnt(0)")
    a("s_barrier")
    cp = tr_base(a, 10, 2)
    a(f"v_lshl_add_u32 v10, v{cp}, 3, v10")
    WF = lambda t, ks: (t*16+ks)*4
    for t in range(2):
        a(f"s_lshl_b32 s{sT}, s{S_WAVE}, 1")
        a(f"s_add_u32 s{sT}, s{sT}, {t}")
        a(f"v_xor_b32 v14, s{sT}, v11")
        a("v_lshl_add_u32 v14, v14, 5, v10")
        a("v_add_u32 v15, 0x10000, v14")
        for ks in range(16):
            for m in range(2):
                a(f"ds_read_b64_tr_b16 a[{WF(t,ks)+2*m}:{WF(t,ks)+2*m+1}], v{14+(ks>>3)} offset:{(ks&7)*8192+m*1024}")
    a("s_waitcnt lgkmcnt(0)")
    a(f"s_mov_b32 s{sT}, {WS_KF}")
    a(f"s_cmp_eq_u32 s{sMTX}, 1")
    a(f"s_cselect_b32 s{sT}, {WS_VF}, s{sT}")
    a(f"s_cmp_eq_u32 s{sMTX}, 2")
    a(f"s_cselect_b32 s{sT}, {WS_QF}, s{sT}")
    a(f"s_lshl_b32 s{sT+1}, s{sHEAD}, 13")
    a(f"s_add_u32 s{sT}, s{sT}, s{sT+1}")
    a(f"s_lshl_b32 s{sT+1}, s{sMH}, 19")
    a(f"s_add_u32 s{sT}, s{sT}, s{sT+1}")
    sadd64(a, sOUTB, S_WS, f"s{sT}")
    a(f"s_lshl_b32 s{sT}, s{sMH}, 16")
    a(f"s_lshl_b32 s{sT+1}, s{S_WAVE}, 14")
    a(f"s_add_u32 s{sT}, s{sT}, s{sT+1}")
    a(f"s_add_u32 s{sT}, s{sT}, {WS_H}")
    sadd64(a, sHB, S_WS, f"s{sT}")
    lane_ids(a, 2, 3, 4)
    a("v_lshlrev_b32 v5, 4, v2")
    a("v_add_u32 v6, 0x10000, v5")
    for i in range(1, 4): a(f"v_add_u32 v{6+i}, {4096*i}, v5")
    a(f"s_lshl_b32 s{sT}, s{S_WAVE}, 10")
    a(f"v_add_u32 v12, s{sT}, v5")
    a(f"s_lshl_b32 s{sT}, s{S_WAVE}, 11")
    a(f"v_add_u32 v13, s{sT}, v5")
    a(f"v_add_u32 v14, 0x40000, v12")
    a(f"v_add_u32 v15, 0x40000, v13")
    a(f"v_add_u32 v19, 4096, v12")
    a(f"v_add_u32 v20, 4096, v14")
    poll_counter(a, D_TOTAL, 256, vt=16)
    a(f"s_lshl_b32 s{sT+8}, s{sMH}, 7")
    a(f"s_add_u32 s{sT+8}, s{sT+8}, {F_HRDY}")
    poll_counter(a, f"s{sT+8}", 4, vt=16, base=S_WS, sleep=2)
    TS(a, 3)
    a("s_barrier")
    def dma(buf):
        a(f"s_lshl_b32 s{sT}, s{S_WAVE}, 14")
        for q in range(4):
            a(f"s_add_u32 m0, s{sT}, {buf*65536 + q*4096}")
            for i in range(4):
                a(f"global_load_lds_dwordx4 v{5 if q==0 else 6+q}, s[{sHB}:{sHB+1}] offset:{i*1024} sc1")
        sadd64(a, sHB, sHB, 131072)
    dma(0)
    a("s_waitcnt vmcnt(0)")
    a(f"s_mov_b32 s{sIT}, 0")
    a(f"s_lshl_b32 s{sSIG}, s{sMH}, 7")
    a(f"s_add_u32 s{sSIG}, s{sSIG}, {F_KVRDY - 256}")
    a(f"s_cmp_eq_u32 s{sMTX}, 2")
    a(f"s_cselect_b32 s{sT}, {F_QRDY - F_KVRDY}, 0")
    a(f"s_add_u32 s{sSIG}, s{sSIG}, s{sT}")
    lv = a.newlabel("gemmV"); ldone = a.newlabel("gemmdone")
    a(f"s_cmp_eq_u32 s{sMTX}, 1")
    a(f"s_cbranch_scc1 {lv}")
    ACC=32; HF=64
    for isV in (0, 1):
        if isV: a.label(lv)
        a.flush_hazards()
        lloop = a.newlabel("gloop")
        a.label(lloop)
        for buf in range(2):
            a("s_waitcnt vmcnt(4)")
            a("s_barrier")
            ls = a.newlabel("gs")
            a(f"s_cmp_lt_u32 s{sIT}, 3")
            a(f"s_cbranch_scc1 {ls}")
            a(f"s_sub_u32 s{sT+8}, s{sSIG}, 256")
            signal_add(a, f"s{sT+8}", vt=16, base=S_WS)
            a.label(ls)
            ln = a.newlabel("gn")
            a(f"s_cmp_ge_u32 s{sIT}, 15")
            a(f"s_cbranch_scc1 {ln}")
            if buf == 0:
                a(f"s_cmp_eq_u32 s{sIT}, 0")
                a(f"s_cbranch_scc1 {ln}")
            dma(1-buf)
            a.label(ln)
            C.l = []
            order = [(ks, mt) for ks in range(16) for mt in range(4)]
            PF = 6
            def rd(n):
                ks, mt = order[n]
                C.lds(f"ds_read_b128 v[{HF+4*(n%8)}:{HF+4*(n%8)+3}], v{5+buf} offset:{mt*16384+ks*1024}", n)
            for n in range(PF): rd(n)
            for n, (ks, mt) in enumerate(order):
                C.wait_l(n)
                for t in range(2):
                    d = ACC + (mt*2+t)*4
                    c = "0" if ks == 0 else f"v[{d}:{d+3}]"
                    w = f"a[{WF(t,ks)}:{WF(t,ks)+3}]"; h = f"v[{HF+4*(n%8)}:{HF+4*(n%8)+3}]"
                    if isV: a(f"v_mfma_f32_16x16x32_bf16 v[{d}:{d+3}], {h}, {w}, {c}")
                    else: a(f"v_mfma_f32_16x16x32_bf16 v[{d}:{d+3}], {w}, {h}, {c}")
                    if t == 0 and n + PF < 64: rd(n + PF)
            E=96
            if not isV:
                for mt in range(4):
                    for r in range(4):
                        a(f"v_cvt_pk_bf16_f32 v{E+4*mt+r}, v{ACC+mt*8+r}, v{ACC+mt*8+4+r}")
                    a(f"global_store_dwordx4 v{(12,19,14,20)[mt]}, v[{E+4*mt}:{E+4*mt+3}], s[{sOUTB}:{sOUTB+1}] sc1")
            else:
                for sg in range(2):
                    for t in range(2):
                        e = E + (sg*2+t)*4
                        for kt in range(2):
                            d = ACC + ((2*sg+kt)*2+t)*4
                            a(f"v_cvt_pk_bf16_f32 v{e+2*kt}, v{d}, v{d+1}")
                            a(f"v_cvt_pk_bf16_f32 v{e+2*kt+1}, v{d+2}, v{d+3}")
                        a(f"global_store_dwordx4 v{13 if sg==0 else 15}, v[{e}:{e+3}], s[{sOUTB}:{sOUTB+1}] offset:{t*1024} sc1")
            sadd64(a, sOUTB, sOUTB, 1048576)
            a(f"s_add_u32 s{sSIG}, s{sSIG}, 256")
            if buf == 0:
                lf = a.newlabel("gfirst")
                a(f"s_cmp_lg_u32 s{sIT}, 0")
                a(f"s_cbranch_scc1 {lf}")
                a("s_waitcnt vmcnt(0)")
                a("s_barrier")
                signal_add(a, f"s{sSIG}", vt=16, base=S_WS)
                poll_counter(a, F_HALL, 128, vt=16, base=S_WS, sleep=8)
                dma(1)
                a("s_waitcnt vmcnt(0)")
                a.label(lf)
            a(f"s_add_u32 s{sIT}, s{sIT}, 1")
            a.flush_hazards()
        a(f"s_cmp_lt_u32 s{sIT}, 16")
        a(f"s_cbranch_scc1 {lloop}")
        if not isV: a(f"s_branch {ldone}")
    a.label(ldone)
    a.flush_hazards()
    a("s_waitcnt vmcnt(0)")
    a("s_barrier")
    a(f"s_sub_u32 s{sT+8}, s{sSIG}, 256")
    signal_add(a, f"s{sT+8}", vt=16, base=S_WS)
    signal_add(a, f"s{sSIG}", vt=16, base=S_WS)
```

```python
import sys
from asmlib import *
from layout import *
import bulk, ef, final
import chain7 as chain
from bulk import S_XCC, sT
import os
WB = bool(os.environ.get('WB'))
KNAME = "adaLN_cond__memory_aug_recurrent_mem_tr__moe_arch_mod__prompt"
def gen(force_fallback=False, dump=False):
    a = Asm()
    a.label("L_code_start")
    a("s_getpc_b64 s[90:91]")
    bulk.startup(a)
    a(f"s_cmp_lg_u32 s{S_WAVE}, 3")
    a("s_cbranch_scc1 L_nowarm")
    a("v_and_b32 v1, 63, v0")
    a("v_lshlrev_b32 v1, 7, v1")
    a.raw("    s_mov_b32 s70, L_code_end - L_code_start - 128")
    a.label("L_warm")
    a("v_min_u32 v3, s70, v1")
    a("global_load_dword v249, v3, s[90:91]")
    a("v_add_u32 v1, 0x2000, v1")
    a("v_readfirstlane_b32 s71, v1")
    a("s_cmp_lt_u32 s71, s70")
    a("s_cbranch_scc1 L_warm")
    a.label("L_nowarm")
    a.flush_hazards()
    TS(a, 0)
    a(f"s_cmp_lt_u32 s{S_TK}, 224")
    a("s_cbranch_scc1 L_bulk")
    a(f"s_cmp_eq_u32 s{S_TK}, 0xffff")
    a("s_cbranch_scc1 L_chain")
    bulk.decide(a, force_fallback)
    a(f"s_add_u32 s{S_VR}, s{sT+8}, s{S_TK}")
    a(f"s_sub_u32 s{S_VR}, s{S_VR}, 224")
    a(f"s_mov_b32 s{S_VX}, 0")
    a(f"s_cmp_ge_u32 s{S_VR}, 32")
    a("s_cbranch_scc1 L_fail")
    a.label("L_chain")
    a.flush_hazards()
    chain.lane_consts(a)
    chain.setup_weights(a)
    bulk.decide(a, force_fallback)
    TS(a, 1, vt=0)
    a(f"s_cmp_eq_u32 s{S_MODE}, 0")
    a("s_cbranch_scc1 L_chain0")
    chain.chain_main(a, "sc1", dump=dump)
    a("s_endpgm")
    a.label("L_chain0")
    a.flush_hazards()
    chain.chain_main(a, "", dump=dump)
    TS(a, 2, vt=0)
    if TS_ENABLED[0]:
        a(f"s_sub_u32 s70, s{chain.sT0+2}, s{chain.sT0}")
        a("v_mov_b32 v1, 0")
        a("v_mov_b32 v2, s70")
        a(f"global_store_dword v1, v2, s[{S_DBG}:{S_DBG+1}] offset:64")
    a("s_endpgm")
    a.label("L_bulk")
    a.flush_hazards()
    sB = 50
    a(f"s_sub_u32 s{sB}, s{S_TK}, 32")
    TS(a, 1)
    a(f"s_cmp_lt_u32 s{S_TK}, 32")
    a("s_cbranch_scc1 L_front")
    a(f"s_cmp_ge_u32 s{sB}, 64")
    a("s_cbranch_scc1 L_gonly")
    bulk.ln1_all(a, sB)
    bulk.gemm_pre(a, sB, True)
    a("s_branch L_gemm")
    a.label("L_gonly")
    a.flush_hazards()
    a(f"s_sub_u32 s{sB}, s{sB}, 64")
    bulk.gemm_pre(a, sB, False)
    a.label("L_gemm")
    a.flush_hazards()
    TS(a, 2)
    bulk.gemm_stage(a)
    TS(a, 4)
    a("s_branch L_ef")
    a.label("L_front")
    a.flush_hazards()
    bulk.mod_stage(a)
    TS(a, 8)
    a.label("L_ef")
    a.flush_hazards()
    bulk.decide(a, force_fallback)
    a(f"s_cmp_eq_u32 s{S_MODE}, 0")
    a("s_cbranch_scc1 L_efn")
    a(f"s_lshr_b32 s{S_VX}, s{S_TK}, 5")
    a(f"s_add_u32 s{S_VX}, s{S_VX}, 1")
    a(f"s_and_b32 s{S_VR}, s{S_TK}, 31")
    a.label("L_efn")
    a(f"s_cmp_ge_u32 s{S_VR}, 32")
    a("s_cbranch_scc1 L_fail")
    a(f"s_sub_u32 s{sT}, s{S_VX}, 1")
    a(f"s_cmp_ge_u32 s{sT}, 7")
    a("s_cbranch_scc1 L_fail")
    a(f"s_cmp_lg_u32 s{S_VX}, {FIN_UNIT}")
    a("s_cbranch_scc1 L_efs")
    final.ffn_preload(a)
    a.label("L_efs")
    a.flush_hazards()
    ef.ef_setup(a)
    TS(a, 5)
    a(f"s_cmp_lg_u32 s{S_MODE}, 0")
    a("s_cbranch_scc1 L_ef1")
    for sc, lab in (("", None), ("sc1", "L_ef1")):
        if lab: a.label(lab); a.flush_hazards()
        ef.ef_loop(a, sc)
        if WB:
            lwb = a.newlabel("wb")
            a(f"s_cmp_lg_u32 s{S_WAVE}, 0")
            a(f"s_cbranch_scc1 {lwb}")
            a(f"s_cmp_lg_u32 s{S_VR}, 0")
            a(f"s_cbranch_scc1 {lwb}")
            a("buffer_wbl2 sc1")
            a.label(lwb)
        a(f"s_cmp_lg_u32 s{S_VX}, {FIN_UNIT}")
        a("s_cbranch_scc1 L_exit")
        TS(a, 6)
        final.final_stage(a, sc)
        TS(a, 7)
        a("s_endpgm")
    a.label("L_fail")
    a("s_mov_b64 exec, -1")
    a("v_mov_b32 v1, 0")
    a("v_mov_b32 v2, 0xdead")
    a(f"global_store_dword v1, v2, s[{S_DBG}:{S_DBG+1}] offset:252")
    a.label("L_exit")
    a("s_endpgm")
    a.label("L_code_end")
    return a
def write(path, a):
    hdr = open(f"cdna_kernels/{KNAME}.s.ref").read().split("; Override launch geometry")[0]
    txt = hdr + f"""; @launch grid=(256,1,1) block=(256,1,1) lds=163840
.amdgcn_target "amdgcn-amd-amdhsa--gfx950"
.text
.globl {KNAME}_kernel
.p2align 8
.type {KNAME}_kernel,@function
{KNAME}_kernel:
{a.text()}
.section .rodata,"a"
.p2align 6
.amdhsa_kernel {KNAME}_kernel
  .amdhsa_next_free_vgpr 512
  .amdhsa_next_free_sgpr 102
  .amdhsa_accum_offset 256
  .amdhsa_group_segment_fixed_size 0
  .amdhsa_kernarg_size 136
  .amdhsa_user_sgpr_count 2
  .amdhsa_user_sgpr_kernarg_segment_ptr 1
  .amdhsa_system_sgpr_workgroup_id_x 1
.end_amdhsa_kernel
"""
    open(path, "w").write(txt)
if __name__ == "__main__":
    fb = "fb" in sys.argv; dump = "dump" in sys.argv
    TS_ENABLED[0] = "ts" in sys.argv
    a = gen(fb, dump)
    print("instrs", a.ninstr, "nops", a.nops_inserted)
    out = [x for x in sys.argv[1:] if x.endswith(".s")]
    write(out[0] if out else f"cdna_kernels/{KNAME}.s", a)
```

```python
from asmlib import *
from layout import *

L_WV   = 0
L_X    = 131072
L_KT   = L_X
L_VT   = L_X + 8192
L_MS   = L_X + 16384
L_Q    = L_X + 24576
RS = 288
L_K    = L_Q + 2304
L_O    = L_K + 2304
L_VX   = L_Q
L_DUM  = L_O + 2304
L_END  = L_DUM + 256
assert L_END <= 163840

M = lambda kb: 4*kb
QA=32; KA=40; VA=48; WVS=56; QB=72; AF=88
vIDX=104; vL16=105; vMEMOFF=106; vPST=107; vPUB=108; vQKW=109; vQR=110; vKR=111; vOW=112; vOR=113; vWV=114
vKT=116; vMSW=117; vPRD=118; vVOFF=119; vFLG=120; vVXW=121
vSELX=vFLG
T=122
vTR=254
WO = lambda i,kb2: 128 + (i*2+kb2)*8
WQ = lambda t,kb: (t*8+kb)*8
WK = lambda t,kb: 128 + (t*8+kb)*8
sHALF=40; sPUBM=42; sPB=44
sSEL=52
sHALF2=92
sMB=60
sSTEP=68; sSPIN=69
sT=70
sKF=80; sVF=82; sKM=84; sVM=86; sC1=88
sDUMP=90; sPBr=48; sT0=94; sKMM=98; sPRG=100; sFOFF=101
C1 = 0.08838834764831845 * 1.4426950408889634

def lane_consts(a):
    l=T; g=T+1; c=T+2; t0=T+3; t1=T+4; t2=T+5
    a(f"v_mbcnt_lo_u32_b32 v{l}, -1, 0")
    a(f"v_mbcnt_hi_u32_b32 v{l}, -1, v{l}")
    a(f"v_lshrrev_b32 v{g}, 4, v{l}")
    a(f"v_and_b32 v{c}, 15, v{l}")
    a(f"v_lshlrev_b32 v{vL16}, 4, v{l}")
    a(f"v_add_u32 v{vKT}, {L_KT}, v{vL16}")
    a(f"s_lshl_b32 s{sT}, s{S_WAVE}, 10")
    a(f"s_add_u32 s{sT}, s{sT}, {L_MS}")
    a(f"v_add_u32 v{vMSW}, s{sT}, v{vL16}")
    a(f"s_lshl_b32 s{sT}, s{S_WAVE}, 11")
    a(f"s_add_u32 s{sT}, s{sT}, {L_VT}")
    a(f"v_add_u32 v{vVOFF}, s{sT}, v{vL16}")
    a(f"s_lshl_b32 s{sT}, s{S_WAVE}, 12")
    a(f"v_add_u32 v{vWV}, s{sT}, v{vL16}")
    a(f"v_add_u32 v{vWV+1}, 0x10000, v{vWV}")
    a(f"s_lshl_b32 s{sT}, s{S_WAVE}, 9")
    a(f"v_lshl_add_u32 v{vVXW}, v{l}, 2, s{sT}")
    a(f"s_mov_b32 s{sHALF}, 0xAAAAAAAA")
    a(f"s_mov_b32 s{sHALF+1}, 0xAAAAAAAA")
    a(f"v_mov_b32 v{t0}, 0x4444")
    a(f"v_mov_b32 v{t1}, 0xEEEE")
    a(f"s_mov_b32 s{sHALF2}, 0xCCCCCCCC")
    a(f"s_mov_b32 s{sHALF2+1}, 0xCCCCCCCC")
    a(f"v_cndmask_b32 v{vIDX}, v{t0}, v{t1}, s[{sHALF2}:{sHALF2+1}]")
    a(f"v_lshrrev_b32 v30, 2, v{c}")
    a(f"v_and_b32 v31, 1, v{c}")
    a(f"v_lshl_add_u32 v30, v30, 1, v31")
    a(f"v_bfe_u32 v31, v{c}, 1, 1")
    a(f"v_lshlrev_b32 v{t0}, 11, v{g}")
    a(f"v_lshl_add_u32 v{t0}, v30, 5, v{t0}")
    a(f"v_lshl_add_u32 v{t0}, v31, 4, v{t0}")
    a(f"s_lshl_b32 s{sT}, s{S_WAVE}, 8")
    a(f"v_add_u32 v{vMEMOFF}, s{sT}, v{t0}")
    a(f"s_lshl_b32 s{sT}, s{S_VR}, 10")
    a(f"s_lshl_b32 s{sT+1}, s{S_WAVE}, 16")
    a(f"s_add_u32 s{sT}, s{sT}, s{sT+1}")
    a(f"v_add_u32 v{vPST}, s{sT}, v{vL16}")
    a(f"s_lshr_b32 s{sT}, s{S_VR}, 2")
    a(f"s_lshl_b32 s{sT}, s{sT}, 15")
    a(f"s_and_b32 s{sT+1}, s{S_VR}, 3")
    a(f"s_lshl_b32 s{sT+2}, s{sT+1}, 8")
    a(f"s_add_u32 s{sT}, s{sT}, s{sT+2}")
    a(f"v_lshlrev_b32 v{t0}, 10, v{g}")
    a(f"v_lshl_add_u32 v{t0}, v{c}, 4, v{t0}")
    a(f"v_add_u32 v{vPRD}, s{sT}, v{t0}")
    a(f"v_lshrrev_b32 v{t0}, 1, v{c}")
    a(f"v_lshlrev_b32 v{t0}, 8, v{t0}")
    a(f"v_and_b32 v{t1}, 1, v{c}")
    a(f"v_lshl_add_u32 v{t0}, v{t1}, 5, v{t0}")
    a(f"v_lshl_add_u32 v{t0}, v{g}, 3, v{t0}")
    a(f"s_lshr_b32 s{sT}, s{S_VR}, 2")
    a(f"s_lshl_b32 s{sT}, s{sT}, 10")
    a(f"s_lshl_b32 s{sT+1}, s{sT+1}, 6")
    a(f"s_add_u32 s{sT}, s{sT}, s{sT+1}")
    a(f"v_add_u32 v{vPUB}, s{sT}, v{t0}")
    a(f"s_mov_b32 s{sPUBM}, 0x00FF00FF")
    a(f"s_mov_b32 s{sPUBM+1}, 0x00FF00FF")
    a(f"v_lshlrev_b32 v{t1}, 4, v{t1}")
    a(f"v_mov_b32 v{t0}, 0x3F80")
    a(f"v_lshlrev_b32 v{vSELX}, v{t1}, v{t0}")
    for d in range(4):
        m = 0x3 << (2*d); m = m | (m << 16)
        a(f"s_mov_b32 s{sSEL+2*d}, {m}")
        a(f"s_mov_b32 s{sSEL+2*d+1}, {m}")
    a(f"s_mov_b32 s{sKMM}, 0x33333333")
    a(f"s_mov_b32 s{sKMM+1}, 0x33333333")
    a(f"v_mul_u32_u24 v{t0}, {2*RS}, v{g}")
    a(f"v_lshl_add_u32 v{t0}, v{c}, 2, v{t0}")
    a(f"s_lshl_b32 s{sT}, s{S_WAVE}, 6")
    a(f"s_add_u32 s{sT}, s{sT}, {L_Q}")
    a(f"v_add_u32 v{vQKW}, s{sT}, v{t0}")
    a(f"v_lshrrev_b32 v{t0}, 1, v{c}")
    a(f"v_mul_u32_u24 v{t0}, {RS}, v{t0}")
    a(f"v_lshl_add_u32 v{t1}, v{g}, 4, v{t0}")
    a(f"v_add_u32 v{vQR}, {L_Q}, v{t1}")
    a(f"v_and_b32 v{t2}, 1, v{c}")
    a(f"v_lshl_add_u32 v{t1}, v{t2}, 5, v{t0}")
    a(f"v_lshl_add_u32 v{t1}, v{g}, 3, v{t1}")
    a(f"s_lshl_b32 s{sT}, s{S_WAVE}, 6")
    a(f"s_add_u32 s{sT}, s{sT}, {L_O}")
    a(f"v_add_u32 v{vOW}, s{sT}, v{t1}")
    a(f"v_mul_u32_u24 v{t1}, {RS}, v30")
    a(f"v_lshl_add_u32 v{t1}, v{g}, 5, v{t1}")
    a(f"v_lshl_add_u32 v{t1}, v31, 4, v{t1}")
    a(f"v_add_u32 v{vOR}, {L_O}, v{t1}")
    a(f"v_lshrrev_b32 v{t0}, 2, v{c}")
    a(f"v_lshl_add_u32 v{t0}, v{t0}, 1, v{t2}")
    a(f"v_mul_u32_u24 v{t0}, {RS}, v{t0}")
    a(f"v_lshl_add_u32 v{t0}, v{g}, 4, v{t0}")
    a(f"v_add_u32 v{vKR}, {L_K}, v{t0}")
    r=20; ph=21
    a(f"v_lshrrev_b32 v{r}, 2, v{c}")
    a(f"v_and_b32 v{t1}, 1, v{r}")
    a(f"v_lshrrev_b32 v{t2}, 1, v{r}")
    a(f"v_lshl_add_u32 v{r}, v{t2}, 3, v{t1}")
    a(f"v_lshl_add_u32 v{ph}, v{t2}, 2, v{t1}")
    a(f"v_and_b32 v{t2}, 1, v{g}")
    a(f"v_lshl_add_u32 v{ph}, v{t2}, 1, v{ph}")
    a(f"v_lshl_add_u32 v{r}, v{t2}, 2, v{r}")
    a(f"v_lshrrev_b32 v{t2}, 1, v{g}")
    a(f"v_lshl_add_u32 v{r}, v{t2}, 4, v{r}")
    a(f"v_lshlrev_b32 v{r}, 8, v{r}")
    a(f"v_and_b32 v{t2}, 3, v{c}")
    a(f"v_lshl_add_u32 v{r}, v{t2}, 3, v{r}")
    for t in range(2):
        a(f"s_lshl_b32 s{sT}, s{S_WAVE}, 1")
        a(f"s_add_u32 s{sT}, s{sT}, {t}")
        a(f"v_xor_b32 v{t2}, s{sT}, v{ph}")
        a(f"v_lshl_add_u32 v{22+3*t}, v{t2}, 5, v{r}")
        a(f"v_add_u32 v{23+3*t}, 0x10000, v{22+3*t}")
        a(f"v_add_u32 v{24+3*t}, 0x20000, v{22+3*t}")

def tr_off(slot, m):
    return (slot & 3)*16384 + (m >> 1)*8192 + (m & 1)*512

def setup_weights(a):
    l=T
    a(f"v_lshrrev_b32 v8, 4, v{l}")
    a(f"v_bfe_u32 v9, v{l}, 1, 3")
    a(f"v_and_b32 v10, 1, v8")
    a(f"v_xor_b32 v9, v9, v10")
    a(f"v_and_b32 v10, 1, v{l}")
    a(f"v_lshlrev_b32 v10, 4, v10")
    for aa in range(4):
        a(f"v_xor_b32 v11, {aa<<1}, v9")
        a(f"v_lshl_add_u32 v11, v11, 5, v10")
        a(f"v_add_u32 v12, {4*aa}, v8")
        a(f"v_lshl_add_u32 v{aa}, v12, 13, v11")
        a(f"v_lshl_add_u32 v{4+aa}, v12, 10, v11")
    a(f"s_lshl_b32 s{sT}, s{S_VR}, 8")
    a(f"s_lshl_b32 s{sT+1}, s{S_WAVE}, 20")
    a(f"s_add_u32 s{sT}, s{sT}, s{sT+1}")
    a(f"s_lshl_b32 s{sT+1}, s{S_VR}, 17")
    a(f"s_lshl_b32 s{sT+2}, s{S_WAVE}, 14")
    a(f"s_add_u32 s{sT+1}, s{sT+1}, s{sT+2}")
    a(f"s_lshl_b32 s{sT+2}, s{S_WAVE}, 12")
    def issue(grp):
        mat = grp >> 1; half = grp & 1
        for ch in range(4):
            slot = half*4 + ch
            if mat == 3: slot += 1
            if mat == 2:
                a(f"s_add_u32 s{sT+3}, s{sT+1}, {half*65536 + ch*256}")
                base = S_WO; vo = 4
            else:
                kb = half*4 + ch
                a(f"s_add_u32 s{sT+3}, s{sT}, {kb*131072}")
                base = (S_WQ, S_WK, None, S_WV)[mat]; vo = 0
            a(f"s_add_u32 s{sT+4}, s{base}, s{sT+3}")
            a(f"s_addc_u32 s{sT+5}, s{base+1}, 0")
            for aa in range(4):
                a(f"s_add_u32 m0, s{sT+2}, {slot*16384 + aa*1024}")
                a(f"global_load_lds_dwordx4 v{vo+aa}, s[{sT+4}:{sT+5}]")
    issue(0); issue(1)
    for grp in range(6):
        a(f"s_waitcnt vmcnt(16)")
        a("s_barrier")
        mat = grp >> 1; half = grp & 1
        if mat < 2:
            for ch in range(4):
                kb = half*4 + ch
                for t in range(2):
                    dst = (WQ if mat == 0 else WK)(t, kb)
                    for m in range(4):
                        a(f"ds_read_b64_tr_b16 a[{dst+2*m}:{dst+2*m+1}], v{22+3*t+half} offset:{tr_off(kb,m)}")
        else:
            a(f"s_lshl_b32 s{sT+3}, s{S_WAVE}, 14")
            a(f"s_add_u32 s{sT+3}, s{sT+3}, {half*65536}")
            for u in range(8):
                a(f"v_xor_b32 v8, {u}, v21")
                a(f"v_lshl_add_u32 v8, v8, 5, v20")
                a(f"v_add_u32 v8, s{sT+3}, v8")
                dst = WO(u, half)
                for m in range(4):
                    a(f"ds_read_b64_tr_b16 v[{dst+2*m}:{dst+2*m+1}], v8 offset:{tr_off(0,m)}")
        a("s_waitcnt lgkmcnt(0)")
        a("s_barrier")
        if grp < 4: issue(grp + 2)
        elif grp == 4:
            pass
        elif grp == 5:
            issue(6); issue(7)
        if grp == 4:
            a("s_waitcnt vmcnt(0)")
    for kb in range(8):
        a(f"s_waitcnt vmcnt({4*(7-kb)})")
        a("s_barrier")
        slot = kb + 1
        for t in range(2):
            for m in range(4):
                a(f"ds_read_b64_tr_b16 v[{32+8*t+2*m}:{33+8*t+2*m}], v{22+3*t+(slot>>2)} offset:{tr_off(slot,m)}")
        a("s_waitcnt lgkmcnt(0)")
        for t in range(2):
            for hf in range(2):
                a(f"ds_write_b128 v{vWV+(kb>>2)}, v[{32+8*t+4*hf}:{35+8*t+4*hf}] offset:{(kb&3)*16384+t*2048+hf*1024}")
        a("s_waitcnt lgkmcnt(0)")
    a("s_barrier")

TRACE=[False]
WI=set()
def trace(a, slot):
    if not TRACE[0]: return
    a(f"s_memrealtime s[{18+2*slot}:{19+2*slot}]")
def trace_flush(a):
    if not TRACE[0]: return
    a(f"s_lshl_b32 s3, s{sSTEP}, 12")
    a(f"s_lshl_b32 s2, s{S_VR}, 7")
    a("s_add_u32 s3, s3, s2")
    a(f"s_lshl_b32 s2, s{S_WAVE}, 5")
    a("s_add_u32 s3, s3, s2")
    a(f"s_add_u32 s3, s3, {WS_X1}")
    a(f"v_lshrrev_b32 v{T}, 2, v{vL16}")
    a(f"v_add_u32 v{T}, s3, v{T}")
    a("s_waitcnt lgkmcnt(0)")
    for sl in range(8):
        a(f"v_writelane_b32 v{T+1}, s{18+2*sl}, {sl}")
    a("s_mov_b64 exec, 0xff")
    a(f"global_store_dword v{T}, v{T+1}, s[{S_WS}:{S_WS+1}]")
    a("s_mov_b64 exec, -1")
class Prof:
    def __init__(self, a, enabled):
        self.a=a; self.en=enabled; self.names=[]
    def stamp(self, name):
        if not self.en: return
        a=self.a
        a("s_memtime s[96:97]")
        a("s_waitcnt lgkmcnt(0)")
        if name in self.names: idx=self.names.index(name)
        else: self.names.append(name); idx=len(self.names)-1
        acc = 18+idx
        assert acc <= 33
        a(f"s_sub_u32 s3, s96, s2")
        a(f"s_add_u32 s{acc}, s{acc}, s3")
        a("s_mov_b32 s2, s96")

def xl(a, x, t, op):
    a(f"v_mov_b32 v{t}, v{x}")
    a(f"v_permlane32_swap_b32 v{t}, v{x}")
    a(f"{op} v{x}, v{t}, v{x}")
    a(f"v_mov_b32 v{t}, v{x}")
    a(f"v_permlane16_swap_b32 v{t}, v{x}")
    a(f"{op} v{x}, v{t}, v{x}")

import os
SPEC_T=int(os.environ.get('SPEC_T','1'))
R0=56; R1=72; R2=88
sFLW=8; sFLR=10; sV0=12
def chain_main(a, sc, dump=False, prof=False, kvflags=True, guard=True):
    P = Prof(a, prof)
    KVSC = 'nt' if 'nont' in WI else ''
    C = Cnt(a)
    a(f"s_mov_b32 s{sC1}, {f2u(C1)}")
    a(f"s_mov_b32 s{sC1+1}, {f2u(C1)}")
    for i in range(2):
        sadd64(a, sPB+2*i, S_WS, WS_PB + i*262144)
        sadd64(a, sPBr+2*i, S_WS, WS_PB + i*262144 + 4096)
    a(f"s_lshl_b32 s{sT}, s{S_VR}, 13")
    a(f"s_mov_b32 s{sT+1}, {WS_KF}")
    a(f"s_mov_b32 s{sVF}, {L_KT}")
    a(f"s_cmp_eq_u32 s{S_WAVE}, 3")
    a(f"s_cselect_b32 s{sT+1}, {WS_VF}, s{sT+1}")
    a(f"s_cselect_b32 s{sVF}, {L_VT}, s{sVF}")
    a(f"s_add_u32 s{sT+1}, s{sT+1}, s{sT}")
    sadd64(a, sKF, S_WS, f"s{sT+1}")
    sadd64(a, sV0, sKF, WS_VF - WS_KF)
    a(f"s_lshl_b32 s{sT}, s{S_VR}, 12")
    a(f"s_add_u32 s{sT+1}, s{sT}, {WS_KM - 131072}")
    sadd64(a, sKM, S_WS, f"s{sT+1}")
    a(f"s_lshl_b32 s{sT}, s{S_VR}, 11")
    a(f"s_add_u32 s{sT+1}, s{sT}, {WS_VM - 65536}")
    sadd64(a, sVM, S_WS, f"s{sT+1}")
    a(f"s_lshl_b32 s{sPRG}, s{S_VR}, 7")
    a(f"s_add_u32 s{sPRG}, s{sPRG}, {F_PROG}")
    a(f"v_mov_b32 v{vWV}, v{vL16}")
    a(f"v_add_u32 v{vWV+1}, 0x10000, v{vL16}")
    a(f"v_lshrrev_b32 v{vVXW}, 2, v{vL16}")
    a(f"v_bfe_u32 v{T}, v{vL16}, 5, 3")
    a(f"v_mul_u32_u24 v{T}, {RS}, v{T}")
    a(f"v_lshrrev_b32 v{T+1}, 8, v{vL16}")
    a(f"v_lshl_add_u32 v{T}, v{T+1}, 3, v{T}")
    a(f"v_add_u32 v{vOW}, {L_O}, v{T}")
    lnp = a.newlabel("c_np")
    a(f"s_cmp_lg_u32 s{S_WAVE}, 1")
    a(f"s_cbranch_scc1 {lnp}")
    a(f"v_mul_u32_u24 v{T}, {RS}, v{T+1}")
    a(f"v_and_b32 v{T+1}, 0xff, v{vL16}")
    a(f"v_add3_u32 v{vFLG}, v{T}, v{T+1}, v{vFLG}" if False else f"v_add_u32 v{T}, v{T}, v{T+1}")
    a(f"v_add_u32 v{vFLG}, {L_K}, v{T}")
    a.label(lnp)
    if dump: sadd64(a, sDUMP, S_WS, WS_DUMP)
    a(f"s_lshl_b32 s{sT}, s{S_WAVE}, 8")
    a(f"s_lshl_b32 s{sT+1}, s{S_VR}, 2")
    a(f"s_add_u32 s{sT}, s{sT}, s{sT+1}")
    a(f"s_add_u32 s{sT}, s{sT}, {F_PFL}")
    sadd64(a, sFLW, S_WS, f"s{sT}")
    a(f"s_lshr_b32 s{sT}, s{S_VR}, 2")
    a(f"s_lshl_b32 s{sT}, s{sT}, 7")
    a(f"s_add_u32 s{sT}, s{sT}, {F_PFL}")
    sadd64(a, sFLR, S_WS, f"s{sT}")
    for i in range(4): sadd64(a, sMB+2*i, S_WS, WS_MB + 8192*i)
    a(f"s_mov_b32 s{sSPIN}, 0")
    a(f"s_mov_b32 s{sSTEP}, 0")
    if prof:
        for r in range(18, 34): a(f"s_mov_b32 s{r}, 0")
    lw = [a.newlabel(f"c_w{i}") for i in range(4)]; lend = a.newlabel("c_end")
    for i in range(1, 4):
        a(f"s_cmp_eq_u32 s{S_WAVE}, {i}")
        a(f"s_cbranch_scc1 {lw[i]}")
    tails = []; slow = []; fbk = []; redo = []; ptail = []
    def retry_stub(lback):
        l = a.newlabel("c_retry"); tails.append((l, lback)); return l
    I = lambda txt: (lambda: a(txt))
    for w in range(4):
        role = ("R", "PUB", "DMA", "DMA")[w]
        if w: a.label(lw[w]); a.hist=[]
        KB = [w, w+4] + [k for k in range(8) if k not in (w, w+4)]
        VB = KB
        TL = [[], [0,1,2], [3,4,5], [6,7]][w]
        vops = [(kb, ti) for kb in KB for ti in range(len(TL))]
        NS = 5; SLOT = [R0, R0+8, R1, R1+8, R2]
        VACC = [VA, VA+4, R2+12]; VFR = [QA, QA+4, R2+8]; VH = [vQR, vKR, vVOFF]
        def wvr(n):
            kb, ti = vops[n]; sl_ = SLOT[n % NS]
            for hf in range(2):
                C.lds(f"ds_read_b128 v[{sl_+4*hf}:{sl_+4*hf+3}], v{vWV+(kb>>2)} offset:{(kb&3)*16384+TL[ti]*2048+hf*1024}", ("wv", n))
        def wait_flag_spin(off_sgpr):
            l = a.newlabel("c_fl")
            a(f"v_mov_b32 v{T}, s{off_sgpr}")
            a.label(l)
            a(f"global_load_dword v{vFLG}, v{T}, s[{S_WS}:{S_WS+1}] sc1")
            a(f"s_add_u32 s{sSPIN}, s{sSPIN}, 1")
            a(f"s_cmp_gt_u32 s{sSPIN}, 0x80000")
            a("s_cbranch_scc1 L_fail")
            a("s_waitcnt vmcnt(0)")
            a(f"v_cmp_gt_u32 vcc, {KV_TARGET}, v{vFLG}")
            a(f"s_cbranch_vccnz {l}")
        def wv_read(kb, t, slot, hf):
            C.lds(f"ds_read_b128 v[{slot+4*hf}:{slot+4*hf+3}], v{vWV+(kb>>2)} offset:{(kb&3)*16384+t*2048+hf*1024}", ("wv",kb,t))
        def wv4(kb, R): return [(lambda t=t, hf=hf: wv_read(kb, t, R+8*t, hf)) for t in range(2) for hf in range(2)]
        def vmf(kb, t, R):
            C.wait_l(("wv",kb,t))
            a(f"v_smfmac_f32_16x16x64_bf16 v[{VA+4*t}:{VA+4*t+3}], v[{M(kb)}:{M(kb)+3}], v[{R+8*t}:{R+8*t+7}], v{vIDX}")
        def qmf(kb, t):
            C.wait_l(("m",kb))
            a(f"v_smfmac_f32_16x16x64_bf16 v[{QA+4*t}:{QA+4*t+3}], v[{M(kb)}:{M(kb)+3}], a[{WQ(t,kb)}:{WQ(t,kb)+7}], v{vIDX}")
        def kmf(kb, t): a(f"v_smfmac_f32_16x16x64_bf16 v[{KA+4*t}:{KA+4*t+3}], v[{M(kb)}:{M(kb)+3}], a[{WK(t,kb)}:{WK(t,kb)+7}], v{vIDX}")
        def weave(mf, fill, per=1, drain=True):
            for m in mf:
                m()
                for _ in range(per):
                    if fill: fill.pop(0)()
            if drain:
                while fill: fill.pop(0)()
        if role == "R":
            a(f"v_bfe_u32 v{T}, v{vPUB}, 5, 3")
            a(f"v_lshrrev_b32 v{T+1}, 8, v{vPUB}")
            a(f"v_lshlrev_b32 v{T}, 10, v{T}")
            a(f"v_lshl_add_u32 v{T}, v{T+1}, 5, v{T}")
            a(f"v_and_b32 v{T+1}, 31, v{vPUB}")
            a(f"v_add_u32 v{T}, v{T}, v{T+1}")
            a(f"s_mov_b64 exec, s[{sPUBM}:{sPUBM+1}]")
            a(f"global_load_dwordx2 v[{T+2}:{T+3}], v{T}, s[{S_MEM0}:{S_MEM0+1}]")
            a("s_waitcnt vmcnt(0)")
            a(f"v_min_u32 v{T+2}, -2, v{T+2}")
            a(f"v_min_u32 v{T+3}, -2, v{T+3}")
            a(f"global_store_dwordx2 v{vPUB}, v[{T+2}:{T+3}], s[{sMB}:{sMB+1}] {sc}")
            if dump: a(f"global_store_dwordx2 v{vPUB}, v[{T+2}:{T+3}], s[{sDUMP}:{sDUMP+1}]")
            a("s_mov_b64 exec, -1")
        elif role == "DMA":
            a(f"s_mov_b32 s{sFOFF}, {F_KVRDY}")
            if kvflags: wait_flag_spin(sFOFF)
            a(f"s_mov_b32 m0, {L_DUM}")
            a(f"v_lshlrev_b32 v{T}, 3, v{vL16}")
            a(f"global_load_lds_dword v{T}, s[{sKF}:{sKF+1}] sc1")
            a(f"v_add_u32 v{T}, 0x40000, v{T}")
            a(f"global_load_lds_dword v{T}, s[{sKF}:{sKF+1}] sc1")
            a(f"v_lshlrev_b32 v{T+5}, 3, v{vL16}")
            a(f"s_mov_b32 s{sFOFF}, {F_KVRDY+128}")
            if kvflags: wait_flag_spin(sFOFF)
            a(f"s_mov_b32 s{sFOFF}, {F_KVRDY+256}")
        for r in range(QA, QA+24, 2): a(f"v_mov_b64 v[{r}:{r+1}], 0")
        if w:
            for n in range(NS): wvr(n)
            a(f"v_mov_b64 v[{R2+12}:{R2+13}], 0"); a(f"v_mov_b64 v[{R2+14}:{R2+15}], 0")
        a(f"s_memtime s[{sT0}:{sT0+1}]")
        a("s_waitcnt lgkmcnt(0)")
        if prof: a(f"s_mov_b32 s2, s{sT0}")
        lloop = a.newlabel("c_loop"); lchk0 = a.newlabel("c_chk0")
        A_=M(KB[0]); B_=M(KB[1])
        def mloads(A_=A_, B_=B_):
            a(f"global_load_dwordx4 v[{A_}:{A_+3}], v{vMEMOFF}, s[{sMB}:{sMB+1}] sc1")
            a(f"global_load_dwordx4 v[{B_}:{B_+3}], v{vMEMOFF}, s[{sMB}:{sMB+1}] offset:1024 sc1")
        def dmal():
            lb = L_VT if w == 3 else L_KT
            l = [I(f"s_mov_b32 m0, {lb}")]
            l += [I(f"global_load_lds_dwordx4 v{vL16}, s[{sKF}:{sKF+1}] offset:{i*1024} {KVSC}") for i in range(4)]
            l += [I(f"v_add_u32 v{T}, 4096, v{vL16}"), I(f"s_mov_b32 m0, {lb+4096}")]
            l += [I(f"global_load_lds_dwordx4 v{T}, s[{sKF}:{sKF+1}] offset:{i*1024} {KVSC}") for i in range(4)]
            return l
        if role == "DMA":
            for f in dmal(): f()
            sadd64(a, sKF, sKF, 262144)
        def rotate():
            a(f"s_mov_b64 s[{sT}:{sT+1}], s[{sMB}:{sMB+1}]")
            a(f"s_mov_b64 s[{sMB}:{sMB+1}], s[{sMB+2}:{sMB+3}]")
            a(f"s_mov_b64 s[{sMB+2}:{sMB+3}], s[{sMB+4}:{sMB+5}]")
            a(f"s_mov_b64 s[{sMB+4}:{sMB+5}], s[{sMB+6}:{sMB+7}]")
            a(f"s_mov_b64 s[{sMB+6}:{sMB+7}], s[{sT}:{sT+1}]")
        mloads()
        a.flush_hazards()
        a.label(lloop)
        for par in range(2):
            C.l=[]; C.v=[]
            lp = a.newlabel("c_pollm")
            if par == 0:
                a(f"s_branch {lchk0}")
                a.label(lp)
                mloads()
                a.label(lchk0)
            else:
                lc1 = a.newlabel("c_chk1")
                ptail.append((lp, lc1, mloads))
                a.label(lc1)
            a("s_waitcnt vmcnt(1)")
            a(f"v_max3_u32 v{T}, v{A_}, v{A_+1}, v{A_+2}")
            a("s_waitcnt vmcnt(0)")
            a(f"v_max3_u32 v{T+1}, v{A_+3}, v{B_}, v{B_+1}")
            a(f"v_max3_u32 v{T}, v{T}, v{B_+2}, v{B_+3}")
            a(f"v_max_u32 v{T}, v{T}, v{T+1}")
            a(f"v_cmp_eq_u32 vcc, -1, v{T}")
            a(f"ds_write_b128 v{vMSW}, v[{A_}:{A_+3}]")
            a(f"ds_write_b128 v{vMSW}, v[{B_}:{B_+3}] offset:4096")
            a(f"s_cbranch_vccnz {retry_stub(lp)}")
            trace(a, 0); P.stamp("pollm")
            rf = []
            if role == "DMA":
                if 'nopf' not in WI: rf += [I(f"s_mov_b32 m0, {L_DUM}"), I(f"global_load_lds_dword v{T+5}, s[{sKF}:{sKF+1}]")]
                if par == 0 and kvflags:
                    rf += [I(f"v_mov_b32 v{T}, s{sFOFF}"), I(f"global_load_dword v{vFLG}, v{T}, s[{S_WS}:{S_WS+1}] sc1")]
            elif role == "PUB":
                slr = sPB + 2*(par^1); slr2 = sPBr + 2*(par^1)
                rf += [I(f"s_sub_u32 s{sT}, s{sSTEP}, 1"), I(f"s_max_i32 s{sT}, s{sT}, 0"), I(f"v_mov_b32 v{T}, s{sPRG}"), I(f"v_mov_b32 v{T+1}, s{sT}"),
                       I(f"global_store_dword v{T}, v{T+1}, s[{S_WS}:{S_WS+1}] sc1")]
            else:
                slr = sPB + 2*(par^1); slr2 = sPBr + 2*(par^1)
                rf += [I(f"v_mov_b32 v{T+2+i}, {SENT}") for i in range(4)]
                rf += [I(f"global_store_dwordx4 v{vPRD}, v[{T+2}:{T+5}], s[{slr}:{slr+1}] {sc}"),
                       I(f"global_store_dwordx4 v{vPRD}, v[{T+2}:{T+5}], s[{slr2}:{slr2+1}] {sc}")]
                for i in range(1, 4):
                    rf += [I(f"v_add_u32 v{T}, {8192*i}, v{vPRD}"),
                           I(f"global_store_dwordx4 v{T}, v[{T+2}:{T+5}], s[{slr}:{slr+1}] {sc}"),
                           I(f"global_store_dwordx4 v{T}, v[{T+2}:{T+5}], s[{slr2}:{slr2+1}] {sc}")]
            if w and 'novpub' not in WI:
                rf = [I(f"global_store_dword v{vVXW}, v{VH[ti]}, s[{sVM}:{sVM+1}] offset:{256*tau} sc1") for ti, tau in enumerate(TL)] + rf
            qmf(KB[0],0); qmf(KB[0],1); qmf(KB[1],0)
            a("s_waitcnt lgkmcnt(0)")
            a("s_barrier")
            P.stamp("barMS")
            if TS_ENABLED[0] and w == 0:
                a(f"s_add_u32 s76, s{sSTEP}, 16")
                TS(a, "s76", vt=T)
            mr = [(lambda kb=kb: C.lds(f"ds_read_b128 v[{M(kb)}:{M(kb)+3}], v{vKT} offset:{L_MS-L_KT+kb*1024}", ("m",kb))) for kb in KB[2:]]
            mr[0](); mr[1]()
            qmf(KB[1],1); mr[2]()
            kmf(KB[0],0); mr[3]()
            if role == "PUB" and 'nokpub' not in WI:
                a(f"global_store_dwordx4 v{vL16}, v[{M(KB[6])}:{M(KB[6])+3}], s[{sKM}:{sKM+1}] sc1")
                a(f"global_store_dwordx4 v{vL16}, v[{M(KB[7])}:{M(KB[7])+3}], s[{sKM}:{sKM+1}] offset:1024 sc1")
            kmf(KB[0],1); mr[4]()
            kmf(KB[1],0); mr[5]()
            mf = []
            for kb in KB[2:]: mf += [lambda kb=kb: qmf(kb,0), lambda kb=kb: qmf(kb,1)]
            weave(mf, rf, 1, True)
            P.stamp("q")
            late = []
            qpost = [I(f"v_add_f32 v{QA}, v{QA}, v{QA+2}"), I(f"v_add_f32 v{QA+1}, v{QA+1}, v{QA+3}"),
                     I(f"v_add_f32 v{QA+4}, v{QA+4}, v{QA+6}"), I(f"v_add_f32 v{QA+5}, v{QA+5}, v{QA+7}"),
                     I(f"v_cvt_pk_bf16_f32 v{QA}, v{QA}, v{QA+4}"), I(f"v_cvt_pk_bf16_f32 v{QA+1}, v{QA+1}, v{QA+5}"),
                     lambda: C.lds(f"ds_write2_b32 v{vQKW}, v{QA}, v{QA+1} offset0:0 offset1:{RS//4}")]
            kmf(KB[1],1); kmf(KB[2],0)
            weave([lambda: kmf(KB[2],1), lambda: kmf(KB[3],0), lambda: kmf(KB[3],1), lambda: kmf(KB[4],0)], qpost, 2, True)
            kmf(KB[4],1); kmf(KB[5],0)
            C.all_l()
            a("s_barrier")
            trace(a, 1); P.stamp("barQ")
            krest = [lambda: kmf(KB[5],1), lambda: kmf(KB[6],0), lambda: kmf(KB[6],1), lambda: kmf(KB[7],0), lambda: kmf(KB[7],1)]
            kpost = [I(f"v_add_f32 v{KA}, v{KA}, v{KA+2}"), I(f"v_add_f32 v{KA+1}, v{KA+1}, v{KA+3}"),
                     I(f"v_add_f32 v{KA+4}, v{KA+4}, v{KA+6}"), I(f"v_add_f32 v{KA+5}, v{KA+5}, v{KA+7}"),
                     I(f"v_cvt_pk_bf16_f32 v{KA}, v{KA}, v{KA+4}"), I(f"v_cvt_pk_bf16_f32 v{KA+1}, v{KA+1}, v{KA+5}"),
                     lambda: C.lds(f"ds_write_b32 v{vQKW}, v{KA} offset:{L_K-L_Q}"),
                     lambda: C.lds(f"ds_write_b32 v{vQKW}, v{KA+1} offset:{L_K-L_Q+RS}", "kw")]
            ZQ = R2
            if w == 0:
                QBr=R0
                S0=QA; S1=QA+4; SM=KA
                rd = []
                for ks in range(4):
                    rd += [lambda ks=ks: C.lds(f"ds_read_b128 v[{QBr+4*ks}:{QBr+4*ks+3}], v{vQR} offset:{64*ks}", ("q",ks)),
                           lambda ks=ks: C.lds(f"ds_read_b128 v[{R1+4*ks}:{R1+4*ks+3}], v{vKT} offset:{ks*1024}", ("kt",0,ks))]
                rd += [(lambda ks=ks: C.lds(f"ds_read_b128 v[{R2+4*ks}:{R2+4*ks+3}], v{vKT} offset:{4096+ks*1024}", ("kt",1,ks))) for ks in range(4)]
                rd[0](); rd[1](); rd = rd[2:]
                weave(krest, rd, 2, True)
                def smf(kt, ks):
                    Sx = (S0, S1)[kt]; R = (R1, R2)[kt]
                    if ks in (0, 2): C.wait_l(("kt",kt,ks+1))
                    c = "0" if ks == 0 else f"v[{Sx}:{Sx+3}]"
                    a(f"v_mfma_f32_16x16x32_bf16 v[{Sx}:{Sx+3}], v[{R+4*ks}:{R+4*ks+3}], v[{QBr+4*ks}:{QBr+4*ks+3}], {c}")
                smf(0,0); smf(0,1)
                weave([lambda: smf(0,2), lambda: smf(0,3), lambda: smf(1,0), lambda: smf(1,1)], kpost, 2, True)
                smf(1,2); smf(1,3)
                C.wait_l("kw")
                a("s_barrier")
                trace(a, 5); P.stamp("barK")
                for ks in range(4):
                    C.lds(f"ds_read_b128 v[{R1+4*ks}:{R1+4*ks+3}], v{vKR} offset:{64*ks}", ("km",ks))
                if par == 1:
                    a(f"s_cmp_eq_u32 s{sSTEP}, 63")
                    a(f"s_cbranch_scc1 {lend}")
                mx=T; tt=T+1; nm=T+2; ls=T+4
                Pr=KA+4; PX=VA
                a(f"v_max3_f32 v{mx}, v{S0}, v{S0+1}, v{S0+2}")
                a(f"v_max3_f32 v{mx}, v{mx}, v{S0+3}, v{S1}")
                a(f"v_max3_f32 v{mx}, v{mx}, v{S1+1}, v{S1+2}")
                a(f"v_max_f32 v{mx}, v{mx}, v{S1+3}")
                a(f"v_mov_b32 v{tt}, v{mx}")
                def mmf(ks):
                    if ks in (0, 2): C.wait_l(("km",ks+1))
                    c = "0" if ks == 0 else f"v[{SM}:{SM+3}]"
                    a(f"v_mfma_f32_16x16x32_bf16 v[{SM}:{SM+3}], v[{R1+4*ks}:{R1+4*ks+3}], v[{QBr+4*ks}:{QBr+4*ks+3}], {c}")
                mmf(0)
                a(f"v_permlane32_swap_b32 v{tt}, v{mx}")
                mmf(1)
                a(f"v_max_f32 v{mx}, v{tt}, v{mx}")
                a(f"v_mov_b32 v{tt}, v{mx}")
                mmf(2)
                a(f"v_permlane16_swap_b32 v{tt}, v{mx}")
                mmf(3)
                a(f"v_max_f32 v{mx}, v{tt}, v{mx}")
                a(f"v_mul_f32 v{nm}, s{sC1}, v{mx}")
                tok = [S0+i for i in range(8)]
                for x in (S0, S0+2, S1, S1+2, SM):
                    a(f"v_pk_fma_f32 v[{x}:{x+1}], v[{x}:{x+1}], s[{sC1}:{sC1+1}], v[{nm}:{nm+1}] op_sel_hi:[1,1,0] neg_lo:[0,0,1] neg_hi:[0,0,1]")
                a(f"v_max_f32 v{tt}, v{SM}, v{SM+1}")
                a(f"v_cmp_lt_f32 vcc, 0x42800000, v{tt}")
                for r in tok: a(f"v_exp_f32 v{r}, v{r}")
                lfb = a.newlabel("c_fb"); lfr = a.newlabel("c_fr")
                a(f"s_cbranch_vccnz {lfb}")
                a.label(lfr)
                fbk.append((lfb, lfr))
                a(f"v_exp_f32 v{SM}, v{SM}")
                a(f"v_exp_f32 v{SM+1}, v{SM+1}")
                a(f"v_pk_add_f32 v[{ls}:{ls+1}], v[{S0}:{S0+1}], v[{S0+2}:{S0+3}]")
                a(f"v_pk_add_f32 v[{nm}:{nm+1}], v[{S1}:{S1+1}], v[{S1+2}:{S1+3}]")
                a(f"v_pk_add_f32 v[{ls}:{ls+1}], v[{ls}:{ls+1}], v[{nm}:{nm+1}]")
                a(f"v_pk_add_f32 v[{ls}:{ls+1}], v[{ls}:{ls+1}], v[{SM}:{SM+1}]")
                a(f"v_add_f32 v{ls}, v{ls}, v{ls+1}")
                a(f"v_mov_b32 v{tt}, v{ls}")
                a(f"v_mov_b64 v[{ZQ}:{ZQ+1}], 0")
                a(f"v_permlane32_swap_b32 v{tt}, v{ls}")
                a(f"v_add_f32 v{ls}, v{tt}, v{ls}")
                a(f"v_mov_b32 v{tt}, v{ls}")
                a(f"v_mov_b64 v[{ZQ+2}:{ZQ+3}], 0")
                a(f"v_permlane16_swap_b32 v{tt}, v{ls}")
                a(f"v_add_f32 v{ls}, v{tt}, v{ls}")
                a(f"v_rcp_f32 v{ls}, v{ls}")
                for x in (S0, S0+2, S1, S1+2, SM):
                    a(f"v_pk_mul_f32 v[{x}:{x+1}], v[{x}:{x+1}], v[{ls}:{ls+1}] op_sel_hi:[1,0]")
                for i in range(4): a(f"v_cvt_pk_bf16_f32 v{Pr+i}, v{tok[2*i]}, v{tok[2*i+1]}")
                C.lds(f"ds_write_b128 v{vKT}, v[{Pr}:{Pr+3}] offset:{L_MS-L_KT}")
                a(f"v_cvt_pk_bf16_f32 v{PX}, v{SM}, v{SM+1}")
                C.lds(f"ds_write_b64 v{vKT}, v[{PX}:{PX+1}] offset:{L_MS-L_KT+1024}")
                trace(a, 7)
                C.all_l()
                a("s_barrier")
                a(f"v_mfma_f32_32x32x16_bf16 v[0:15], v[{ZQ}:{ZQ+3}], v[{ZQ}:{ZQ+3}], 0")
                a(f"v_mfma_f32_32x32x16_bf16 v[16:31], v[{ZQ}:{ZQ+3}], v[{ZQ}:{ZQ+3}], 0")
                a(f"v_add_u32 v{T}, 32768, v{vPST}"); a(f"s_add_u32 s{sT+6}, s{sSTEP}, 1"); a(f"v_mov_b32 v{T+1}, 0"); a(f"v_mov_b32 v{T+2}, s{sT+6}")
                trace(a, 6)
                a("s_barrier")
            else:
                vfr = [(lambda ti=ti, tau=tau: C.lds(f"ds_read_b128 v[{VFR[ti]}:{VFR[ti]+3}], v{vKT} offset:{L_VT-L_KT+tau*1024}", "vf")) for ti, tau in enumerate(TL)]
                weave(krest, vfr + late, 1, True)
                vq = list(vops)
                def vstep(n):
                    kb, ti = vops[n]
                    C.wait_l(("wv", n))
                    sl_ = SLOT[n % NS]
                    a(f"v_smfmac_f32_16x16x64_bf16 v[{VACC[ti]}:{VACC[ti]+3}], v[{M(kb)}:{M(kb)+3}], v[{sl_}:{sl_+7}], v{vIDX}")
                    if n + NS < len(vops): wvr(n + NS)
                vstep(0); vstep(1)
                for f in kpost: f()
                vstep(2)
                C.wait_l("kw")
                a("s_barrier")
                trace(a, 5); P.stamp("barK")
                dq = dmal() if (role == "DMA" and 'nodma' not in WI) else []
                for n in range(3, len(vops)):
                    vstep(n)
                    if dq: dq.pop(0)()
                a(f"v_mov_b64 v[{R1}:{R1+1}], 0"); a(f"v_mov_b64 v[{R1+2}:{R1+3}], 0")
                for ti, tau in enumerate(TL):
                    x = VACC[ti]
                    a(f"v_pk_add_f32 v[{x}:{x+1}], v[{x}:{x+1}], v[{x+2}:{x+3}]")
                    a(f"v_cvt_pk_bf16_f32 v{x}, v{x}, v{x+1}")
                    a(f"v_mov_b32 v{x+1}, 0")
                a(f"v_mfma_f32_32x32x16_bf16 v[0:15], v[{R1}:{R1+3}], v[{R1}:{R1+3}], 0")
                a(f"v_mfma_f32_32x32x16_bf16 v[16:31], v[{R1}:{R1+3}], v[{R1}:{R1+3}], 0")
                for ti, tau in enumerate(TL):
                    a(f"v_mov_b32 v{VH[ti]}, v{VACC[ti]}")
                if par == 1:
                    a(f"s_cmp_eq_u32 s{sSTEP}, 63")
                    a(f"s_cbranch_scc1 {lend}")
                trace(a, 7)
                C.all_l()
                a("s_barrier")
                Pr=KA+4; PX=T+4
                C.lds(f"ds_read_b128 v[{Pr}:{Pr+3}], v{vKT} offset:{L_MS-L_KT}", "p0")
                C.lds(f"ds_read_b64 v[{PX}:{PX+1}], v{vKT} offset:{L_MS-L_KT+1024}", "p1")
                OO = [R0, R0+4, R0+8]
                a(f"v_add_u32 v{T}, 32768, v{vPST}"); a(f"s_add_u32 s{sT+6}, s{sSTEP}, 1"); a(f"v_mov_b32 v{T+1}, 0"); a(f"v_mov_b32 v{T+2}, s{sT+6}")
                C.wait_l("p0")
                for ti in range(len(TL)):
                    a(f"v_mfma_f32_16x16x32_bf16 v[{OO[ti]}:{OO[ti]+3}], v[{VFR[ti]}:{VFR[ti]+3}], v[{Pr}:{Pr+3}], 0")
                C.wait_l("p1")
                for ti in range(len(TL)):
                    a(f"v_mfma_f32_16x16x16_bf16 v[{OO[ti]}:{OO[ti]+3}], v[{VACC[ti]}:{VACC[ti]+1}], v[{PX}:{PX+1}], v[{OO[ti]}:{OO[ti]+3}]")
                for ti, tau in enumerate(TL):
                    o = OO[ti]
                    a(f"v_cvt_pk_bf16_f32 v{o}, v{o}, v{o+1}")
                    a(f"v_cvt_pk_bf16_f32 v{o+1}, v{o+2}, v{o+3}")
                    C.lds(f"ds_write_b64 v{vOW}, v[{o}:{o+1}] offset:{32*tau}")
                trace(a, 6)
                C.all_l()
                a("s_barrier")
                ZQ = R1
            trace(a, 2); P.stamp("barO")
            OA=KA
            for kb2 in range(2):
                C.lds(f"ds_read_b128 v[{OA+4*kb2}:{OA+4*kb2+3}], v{vOR} offset:{128*kb2}", ("oa",kb2))
            pf = [(lambda n=n: wvr(n)) for n in range(NS)] if w else []
            C.wait_l(("oa",0))
            def omf(i, kb2):
                if kb2: C.wait_l(("oa",1))
                a(f"v_smfmac_f32_16x16x64_bf16 v[{4*i}:{4*i+3}], v[{OA+4*kb2}:{OA+4*kb2+3}], v[{WO(i,kb2)}:{WO(i,kb2)+7}], v{vIDX}")
            PK = QA
            def fin(i):
                return [I(f"v_add_f32 v{4*i}, v{4*i}, v{4*i+2}"), I(f"v_add_f32 v{4*i+1}, v{4*i+1}, v{4*i+3}"),
                        I(f"v_cvt_pk_bf16_f32 v{PK+i}, v{4*i}, v{4*i+1}")]
            sl = sPB + 2*par
            order = [(0,0),(1,0),(0,1),(1,1),(2,0),(3,0),(2,1),(3,1),(4,0),(5,0),(4,1),(5,1),(6,0),(7,0),(6,1),(7,1)]
            fq = []
            for n, (i, kb2) in enumerate(order):
                omf(i, kb2)
                if n in (5, 9, 13):
                    fq += fin((n-5)//2) + fin((n-5)//2+1)
                    if n == 9: fq += [I(f"global_store_dwordx4 v{vPST}, v[{PK}:{PK+3}], s[{sl}:{sl+1}] {sc}"),
                                      I(f"global_store_dword v{T+1}, v{T+2}, s[{sFLW}:{sFLW+1}] {sc}")]
                for _ in range(2 if n >= 5 else 1):
                    if fq: fq.pop(0)()
            for f in fq: f()
            a(f"v_pk_add_f32 v[24:25], v[24:25], v[26:27]")
            a(f"v_pk_add_f32 v[28:29], v[28:29], v[30:31]")
            a(f"v_cvt_pk_bf16_f32 v{PK+6}, v24, v25")
            a(f"v_cvt_pk_bf16_f32 v{PK+7}, v28, v29")
            a(f"global_store_dwordx4 v{T}, v[{PK+4}:{PK+7}], s[{sl}:{sl+1}] {sc}")
            a(f"global_store_dword v{T+1}, v{T+2}, s[{sFLW}:{sFLW+1}] offset:128 {sc}")
            trace(a, 3); P.stamp("outp")
            if role == "R":
                for f in pf: f()
            if role == "R":
                RB=0; BS=VA; D=KA
                a(f"v_lshrrev_b32 v{T+4}, 2, v{vL16}")
                a(f"v_and_b32 v{T+4}, 127, v{T+4}")
                a(f"global_load_dword v{T+5}, v{T+4}, s[{sFLR}:{sFLR+1}] sc1")
                for d in range(4):
                    a(f"v_cndmask_b32 v{BS+d}, 0, v{vSELX}, s[{sSEL+2*d}:{sSEL+2*d+1}]")
                for i in range(1, 4): a(f"v_add_u32 v{T+i}, {8192*i}, v{vPRD}")
                for r in range(QA, QA+8, 2): a(f"v_mov_b64 v[{r}:{r+1}], 0")
                a(f"v_mov_b64 v[{VA+4}:{VA+5}], 0"); a(f"v_mov_b64 v[{VA+6}:{VA+7}], 0")
                rotate()
                sadd64(a, sVM, sVM, 65536)
                lp = a.newlabel("c_pollp"); lslow = a.newlabel("c_slow"); lok = a.newlabel("c_ok")
                if 'nortt' in WI:
                    trace(a, 1)
                    a("s_waitcnt vmcnt(0)")
                    trace(a, 5)
                ll = a.newlabel("c_light"); lgo = a.newlabel("c_go")
                LT = T+5
                a.label(ll)
                a("s_waitcnt vmcnt(0)")
                a(f"v_cmp_eq_u32 vcc, s{sT+6}, v{LT}")
                a(f"global_load_dword v{LT}, v{T+4}, s[{sFLR}:{sFLR+1}] sc1")
                a(f"s_bcnt1_i32_b32 s{sT}, vcc_lo")
                a(f"s_cmp_lt_u32 s{sT}, {SPEC_T}")
                a(f"s_cbranch_scc1 {retry_stub(ll)}")
                a.label(lp)
                for i in range(8):
                    base = vPRD if i < 2 else T + (i >> 1)
                    sb = sl if (i & 1) == 0 else sPBr + 2*par
                    a(f"global_load_dwordx4 v[{RB+4*i}:{RB+4*i+3}], v{base}, s[{sb}:{sb+1}] sc1")
                a("s_waitcnt vmcnt(8)")
                a(f"v_cmp_ne_u32 vcc, s{sT+6}, v{LT}")
                lre = a.newlabel("c_re")
                a(f"s_cbranch_vccnz {lre}")
                redo.append((lre, lp, T+4, LT))
                for i in range(8):
                    a(f"s_waitcnt vmcnt({7-i})")
                    c = "0" if i == 0 else f"v[{D}:{D+3}]"
                    a(f"v_mfma_f32_16x16x32_bf16 v[{D}:{D+3}], v[{RB+4*i}:{RB+4*i+3}], v[{BS}:{BS+3}], {c}")
                a(f"s_mov_b64 exec, s[{sPUBM}:{sPUBM+1}]")
                a(f"v_pk_add_f32 v[{D+4}:{D+5}], v[{D}:{D+1}], v[{D+2}:{D+3}]")
                a(f"v_cmp_u_f32 vcc, v{D+4}, v{D+5}")
                a(f"v_cvt_pk_bf16_f32 v{D}, v{D}, v{D+1}")
                a(f"v_cvt_pk_bf16_f32 v{D+1}, v{D+2}, v{D+3}")
                a(f"v_min_u32 v{D}, -2, v{D}")
                a(f"v_min_u32 v{D+1}, -2, v{D+1}")
                a(f"s_cbranch_vccnz {lslow}")
                a.label(lok)
                a(f"global_store_dwordx2 v{vPUB}, v[{D}:{D+1}], s[{sMB}:{sMB+1}] {sc}")
                trace(a, 4)
                a("s_barrier")
                a(f"v_mov_b64 v[{D+2}:{D+3}], -1")
                a(f"global_store_dwordx2 v{vPUB}, v[{D+2}:{D+3}], s[{sMB+4}:{sMB+5}] {sc}")
                if dump:
                    sadd64(a, sDUMP, sDUMP, 8192)
                    a(f"global_store_dwordx2 v{vPUB}, v[{D}:{D+1}], s[{sDUMP}:{sDUMP+1}]")
                a("s_mov_b64 exec, -1")
                trace_flush(a)
                mloads()
                for r in range(KA, KA+12, 2): a(f"v_mov_b64 v[{r}:{r+1}], 0")
                a(f"s_add_u32 s{sSTEP}, s{sSTEP}, 1")
                slow.append((lslow, lp, lok))
            else:
                if role == "PUB": sadd64(a, sKM, sKM, 131072)
                if role == "DMA":
                    sadd64(a, sKF, sKF, 262144)
                    a(f"v_lshlrev_b32 v{T+5}, 3, v{vL16}")
                    if par == 1 and kvflags:
                        lok2 = a.newlabel("c_fok")
                        a(f"v_cmp_le_u32 vcc, {KV_TARGET}, v{vFLG}")
                        a(f"s_cbranch_vccnz {lok2}")
                        wait_flag_spin(sFOFF)
                        a.label(lok2)
                        a(f"s_add_u32 s{sFOFF}, s{sFOFF}, 128")
                        a(f"s_min_u32 s{sFOFF}, s{sFOFF}, {F_KVRDY+31*128}")
            if role != "R":
                sadd64(a, sVM, sVM, 65536)
                rotate()
                trace_flush(a)
                a(f"s_add_u32 s{sSTEP}, s{sSTEP}, 1")
                a(f"v_mfma_f32_32x32x16_bf16 v[{QA}:{QA+15}], v[{ZQ}:{ZQ+3}], v[{ZQ}:{ZQ+3}], 0")
                for x in VACC:
                    a(f"v_mfma_f32_16x16x32_bf16 v[{x}:{x+3}], v[{ZQ}:{ZQ+3}], v[{ZQ}:{ZQ+3}], 0")
                for f in pf: f()
                if role == "PUB":
                    a(f"ds_read_b128 v[{M(KB[6])}:{M(KB[6])+3}], v{vFLG}")
                    a(f"ds_read_b128 v[{M(KB[7])}:{M(KB[7])+3}], v{vFLG} offset:{4*RS}")
                    a("s_waitcnt lgkmcnt(0)")
                a("s_barrier")
                mloads()
            a.flush_hazards()
        a(f"s_branch {lchk0}")
    for (l, lc, ml) in ptail:
        a.label(l)
        ml()
        a(f"s_branch {lc}")
    for (l, lback) in tails:
        a.label(l)
        a(f"s_add_u32 s{sSPIN}, s{sSPIN}, 1")
        a(f"s_cmp_lt_u32 s{sSPIN}, 0x80000")
        a(f"s_cbranch_scc1 {lback}")
        a("s_branch L_fail")
    for (l, lp, va, lt) in redo:
        a.label(l); a.hist=[]
        a(f"global_load_dword v{lt}, v{va}, s[{sFLR}:{sFLR+1}] sc1")
        a(f"s_add_u32 s{sSPIN}, s{sSPIN}, 1")
        a(f"s_cmp_lt_u32 s{sSPIN}, 0x80000")
        a(f"s_cbranch_scc1 {lp}")
        a("s_branch L_fail")
    for (l, lp, lok) in slow:
        a.label(l); a.hist=[]
        a("s_mov_b64 exec, -1")
        a(f"s_add_u32 s{sSPIN}, s{sSPIN}, 1")
        a(f"s_cmp_gt_u32 s{sSPIN}, 0x80000")
        a("s_cbranch_scc1 L_fail")
        a(f"s_and_b32 s{sT}, s{sSPIN}, 31")
        a(f"s_cmp_lg_u32 s{sT}, 0")
        a(f"s_cbranch_scc1 {lp}")
        a(f"s_mov_b32 s{sT}, {SENT}")
        a(f"s_mov_b64 s[{sT+2}:{sT+3}], 0")
        for r in range(32):
            a(f"v_cmp_eq_u32 vcc, s{sT}, v{r}")
            a(f"s_or_b64 s[{sT+2}:{sT+3}], s[{sT+2}:{sT+3}], vcc")
        a(f"s_cmp_lg_u64 s[{sT+2}:{sT+3}], 0")
        a(f"s_cbranch_scc1 {lp}")
        a(f"s_mov_b64 exec, s[{sPUBM}:{sPUBM+1}]")
        a(f"s_branch {lok}")
    for (l, lr) in fbk:
        a.label(l); a.hist=[]
        a("s_nop 7")
        SM=KA; S0=QA; Pr=KA+4; tt=T+1; d=T
        a(f"v_max_f32 v{d}, v{SM}, v{SM+1}")
        xl(a, d, tt, "v_max_f32")
        a(f"v_max_f32 v{d}, 0, v{d}")
        a(f"v_sub_f32 v{SM}, v{SM}, v{d}")
        a(f"v_sub_f32 v{SM+1}, v{SM+1}, v{d}")
        a(f"v_sub_f32 v{d}, 0, v{d}")
        a(f"v_exp_f32 v{d}, v{d}")
        for r in range(8): a(f"v_mul_f32 v{S0+r}, v{S0+r}, v{d}")
        a(f"s_branch {lr}")
    a.label(lend)
    a.flush_hazards()
    a(f"s_memtime s[{sT0+2}:{sT0+3}]")
    l0 = a.newlabel("c_fin")
    sadd64(a, sVM, sVM, 65536)
    for w in range(1, 4):
        lx = a.newlabel("c_fv")
        a(f"s_cmp_lg_u32 s{S_WAVE}, {w}")
        a(f"s_cbranch_scc1 {lx}")
        if w == 1:
            sadd64(a, sKM, sKM, 131072)
            a(f"ds_read_b128 v[0:3], v{vFLG}")
            a(f"ds_read_b128 v[4:7], v{vFLG} offset:{4*RS}")
            a("s_waitcnt lgkmcnt(0)")
            a(f"global_store_dwordx4 v{vL16}, v[0:3], s[{sKM}:{sKM+1}] sc1")
            a(f"global_store_dwordx4 v{vL16}, v[4:7], s[{sKM}:{sKM+1}] offset:1024 sc1")
        for ti, tau in enumerate([[], [0,1,2], [3,4,5], [6,7]][w]):
            a(f"global_store_dword v{vVXW}, v{[vQR, vKR, vVOFF][ti]}, s[{sVM}:{sVM+1}] offset:{256*tau} sc1")
        a.label(lx)
    a("s_waitcnt vmcnt(0) lgkmcnt(0)")
    a("s_barrier")
    a(f"s_cmp_lg_u32 s{S_WAVE}, 1")
    a(f"s_cbranch_scc1 {l0}")
    a(f"v_mov_b32 v{T}, s{sPRG}")
    a(f"v_mov_b32 v{T+2}, 64")
    a(f"global_store_dword v{T}, v{T+2}, s[{S_WS}:{S_WS+1}] sc1")
    a.label(l0)
    a("s_waitcnt lgkmcnt(0) vmcnt(0)")
    return P
```

```python
import sys
from asmlib import *
from layout import *
import bulk, ef, final
import chain7 as chain
from bulk import S_XCC, sT
import os
WB = bool(os.environ.get('WB'))
KNAME = "adaLN_cond__memory_aug_recurrent_mem_tr__moe_arch_mod__prompt"
def gen(force_fallback=False, dump=False):
    a = Asm()
    a.label("L_code_start")
    a("s_getpc_b64 s[90:91]")
    bulk.startup(a)
    a(f"s_cmp_lg_u32 s{S_WAVE}, 3")
    a("s_cbranch_scc1 L_nowarm")
    a(f"s_cmp_lt_u32 s{S_TK}, 96")
    a("s_cbranch_scc1 L_nowarm")
    a(f"s_and_b32 s70, s{S_RANK}, 7")
    a("s_cmp_lg_u32 s70, 7")
    a("s_cbranch_scc1 L_nowarm")
    a("v_and_b32 v1, 63, v0")
    a("v_lshlrev_b32 v1, 7, v1")
    a.raw("    s_mov_b32 s70, L_code_end - L_code_start - 128")
    a.label("L_warm")
    a("v_min_u32 v3, s70, v1")
    a("global_load_dword v249, v3, s[90:91]")
    a("v_add_u32 v1, 0x2000, v1")
    a("v_readfirstlane_b32 s71, v1")
    a("s_cmp_lt_u32 s71, s70")
    a("s_cbranch_scc1 L_warm")
    a.label("L_nowarm")
    a.flush_hazards()
    TS(a, 0)
    a(f"s_cmp_lt_u32 s{S_TK}, 224")
    a("s_cbranch_scc1 L_bulk")
    a(f"s_cmp_eq_u32 s{S_TK}, 0xffff")
    a("s_cbranch_scc1 L_chain")
    bulk.decide(a, force_fallback)
    a(f"s_min_u32 s{sT+8}, s{sT+8}, {os.environ.get('TH','32')}")
    a(f"s_add_u32 s{S_VR}, s{sT+8}, s{S_TK}")
    a(f"s_sub_u32 s{S_VR}, s{S_VR}, 224")
    a(f"s_mov_b32 s{S_VX}, 0")
    a(f"s_cmp_ge_u32 s{S_VR}, 32")
    a("s_cbranch_scc1 L_fail")
    a.label("L_chain")
    a.flush_hazards()
    chain.lane_consts(a)
    chain.setup_weights(a)
    bulk.decide(a, force_fallback)
    TS(a, 1, vt=0)
    a(f"s_cmp_eq_u32 s{S_MODE}, 0")
    a("s_cbranch_scc1 L_chain0")
    chain.chain_main(a, "sc1", dump=dump)
    a("s_endpgm")
    a.label("L_chain0")
    a.flush_hazards()
    chain.chain_main(a, "", dump=dump)
    TS(a, 2, vt=0)
    if TS_ENABLED[0]:
        a(f"s_sub_u32 s70, s{chain.sT0+2}, s{chain.sT0}")
        a("v_mov_b32 v1, 0")
        a("v_mov_b32 v2, s70")
        a(f"global_store_dword v1, v2, s[{S_DBG}:{S_DBG+1}] offset:64")
    a("s_endpgm")
    a.label("L_bulk")
    a.flush_hazards()
    sB = 50
    a(f"s_sub_u32 s{sB}, s{S_TK}, 32")
    TS(a, 1)
    a(f"s_cmp_lt_u32 s{S_TK}, 32")
    a("s_cbranch_scc1 L_front")
    a(f"s_cmp_ge_u32 s{sB}, 64")
    a("s_cbranch_scc1 L_gonly")
    bulk.ln1_all(a, sB)
    bulk.gemm_pre(a, sB, True)
    a("s_branch L_gemm")
    a.label("L_gonly")
    a.flush_hazards()
    a(f"s_sub_u32 s{sB}, s{sB}, 64")
    bulk.gemm_pre(a, sB, False)
    a.label("L_gemm")
    a.flush_hazards()
    TS(a, 2)
    bulk.gemm_stage(a)
    TS(a, 4)
    a("s_branch L_ef")
    a.label("L_front")
    a.flush_hazards()
    bulk.mod_stage(a)
    TS(a, 8)
    a.label("L_ef")
    a.flush_hazards()
    bulk.decide(a, force_fallback)
    a(f"s_cmp_eq_u32 s{S_MODE}, 0")
    a("s_cbranch_scc1 L_efn")
    a(f"s_lshr_b32 s{S_VX}, s{S_TK}, 5")
    a(f"s_add_u32 s{S_VX}, s{S_VX}, 1")
    a(f"s_and_b32 s{S_VR}, s{S_TK}, 31")
    a.label("L_efn")
    a(f"s_cmp_ge_u32 s{S_VR}, 32")
    a("s_cbranch_scc1 L_fail")
    a(f"s_sub_u32 s{sT}, s{S_VX}, 1")
    a(f"s_cmp_ge_u32 s{sT}, 7")
    a("s_cbranch_scc1 L_fail")
    a(f"s_cmp_lg_u32 s{S_VX}, {FIN_UNIT}")
    a("s_cbranch_scc1 L_efs")
    final.ffn_preload(a)
    a.label("L_efs")
    a.flush_hazards()
    ef.ef_setup(a)
    TS(a, 5)
    a(f"s_cmp_lg_u32 s{S_MODE}, 0")
    a("s_cbranch_scc1 L_ef1")
    for sc, lab in (("", None), ("sc1", "L_ef1")):
        if lab: a.label(lab); a.flush_hazards()
        ef.ef_loop(a, sc)
        if WB:
            lwb = a.newlabel("wb")
            a(f"s_cmp_lg_u32 s{S_WAVE}, 0")
            a(f"s_cbranch_scc1 {lwb}")
            a(f"s_cmp_lg_u32 s{S_VR}, 0")
            a(f"s_cbranch_scc1 {lwb}")
            a("buffer_wbl2 sc1")
            a.label(lwb)
        a(f"s_cmp_lg_u32 s{S_VX}, {FIN_UNIT}")
        a("s_cbranch_scc1 L_exit")
        TS(a, 6)
        final.final_stage(a, sc)
        TS(a, 7)
        a("s_endpgm")
    a.label("L_fail")
    a("s_mov_b64 exec, -1")
    a("v_mov_b32 v1, 0")
    a("v_mov_b32 v2, 0xdead")
    a(f"global_store_dword v1, v2, s[{S_DBG}:{S_DBG+1}] offset:252")
    a.label("L_exit")
    a("s_endpgm")
    a.label("L_code_end")
    return a
def write(path, a):
    hdr = open(f"cdna_kernels/{KNAME}.s.ref").read().split("; Override launch geometry")[0]
    txt = hdr + f"""; @launch grid=(256,1,1) block=(256,1,1) lds=163840
.amdgcn_target "amdgcn-amd-amdhsa--gfx950"
.text
.globl {KNAME}_kernel
.p2align 8
.type {KNAME}_kernel,@function
{KNAME}_kernel:
{a.text()}
.section .rodata,"a"
.p2align 6
.amdhsa_kernel {KNAME}_kernel
  .amdhsa_next_free_vgpr 512
  .amdhsa_next_free_sgpr 102
  .amdhsa_accum_offset 256
  .amdhsa_group_segment_fixed_size 0
  .amdhsa_kernarg_size 136
  .amdhsa_user_sgpr_count 2
  .amdhsa_user_sgpr_kernarg_segment_ptr 1
  .amdhsa_system_sgpr_workgroup_id_x 1
.end_amdhsa_kernel
"""
    open(path, "w").write(txt)
if __name__ == "__main__":
    fb = "fb" in sys.argv; dump = "dump" in sys.argv
    TS_ENABLED[0] = "ts" in sys.argv
    chain.STAMP[0] = TS_ENABLED[0]
    a = gen(fb, dump)
    print("instrs", a.ninstr, "nops", a.nops_inserted)
    out = [x for x in sys.argv[1:] if x.endswith(".s")]
    write(out[0] if out else f"cdna_kernels/{KNAME}.s", a)
```

```python
from asmlib import *
from layout import *
S_XCC=39
sT=70
F_HALL = F_FFN

def load_args(a):
    for (reg, off) in ((S_WS,K_WS),(S_DBG,K_DBG),(S_WQ,K_WQ),(S_WK,K_WK),(S_WV,K_WV),(S_WO,K_WO),(S_MEM0,K_MEM0),(S_X,K_X),(S_OUT,K_OUT),
                       (S_WMOD,K_WMOD),(S_C,K_C),(S_WR,K_WR),(S_WG,K_WG),(S_WU,K_WU),(S_WD,K_WD)):
        a(f"s_load_dwordx2 s[{reg}:{reg+1}], s[0:1], {off}")

def startup(a, force_fallback=False):
    a("s_cmp_ge_u32 s2, 256")
    a("s_cbranch_scc1 L_exit")
    load_args(a)
    a(f"s_mov_b32 s{S_WGID}, s2")
    a(f"s_getreg_b32 s{S_XCC}, hwreg(HW_REG_XCC_ID, 0, 4)")
    a("v_lshrrev_b32 v1, 6, v0")
    a(f"v_readfirstlane_b32 s{S_WAVE}, v1")
    a(f"s_and_b32 s{S_XCC}, s{S_XCC}, 7")
    a(f"s_lshl_b32 s{sT}, s{S_XCC}, 3")
    a(f"s_lshl_b64 s[{sT+2}:{sT+3}], 1, s{sT}")
    a("v_mov_b32 v1, 0")
    a("v_mov_b32 v2, 1")
    a(f"v_mov_b32 v10, s{sT+2}")
    a(f"v_mov_b32 v11, s{sT+3}")
    a("v_mov_b32 v9, 0xffff")
    a("v_and_b32 v3, 63, v0")
    a(f"s_lshl_b32 s{sT+1}, s{S_WGID}, 8")
    a(f"v_lshl_add_u32 v4, v3, 2, s{sT+1}")
    a("s_waitcnt lgkmcnt(0)")
    a(f"s_cmp_lg_u32 s{S_WAVE}, 0")
    a("s_cbranch_scc1 L_st1")
    a("s_mov_b64 exec, 1")
    a(f"s_cmp_lg_u32 s{S_XCC}, 0")
    a("s_cbranch_scc1 L_st0")
    a(f"global_atomic_add v8, v1, v2, s[{S_DBG}:{S_DBG+1}] sc0")
    a("s_waitcnt vmcnt(0)")
    import os
    a(f"v_cmp_gt_u32 vcc, {os.environ.get('TH','32')}, v8")
    a("s_cbranch_vccnz L_st0b")
    a.label("L_st0")
    a(f"global_atomic_add_x2 v[12:13], v1, v[10:11], s[{S_DBG}:{S_DBG+1}] offset:{D_PACK} sc0")
    a("s_waitcnt vmcnt(0)")
    a(f"v_lshrrev_b64 v[14:15], s{sT}, v[12:13]")
    a("v_and_b32 v8, 0xff, v14")
    a("v_sad_u8 v9, v12, 0, 0")
    a("v_sad_u8 v9, v13, 0, v9")
    a.label("L_st0b")
    a("ds_write_b64 v1, v[8:9]")
    a("s_mov_b64 exec, -1")
    a("s_branch L_st3")
    a.label("L_st1")
    a(f"s_cmp_lg_u32 s{S_WAVE}, 1")
    a("s_cbranch_scc1 L_st2")
    a("v_mov_b32 v6, 0")
    a(f"global_store_dword v4, v6, s[{S_WS}:{S_WS+1}] sc1")
    a("v_mov_b32 v6, -1")
    a(f"v_add_u32 v4, {WS_MB}, v4")
    a(f"global_store_dword v4, v6, s[{S_WS}:{S_WS+1}] sc1")
    for r in range(12, 16): a(f"v_mov_b32 v{r}, {SENT}")
    a(f"s_lshl_b32 s{sT+1}, s{S_WGID}, 10")
    a(f"s_add_u32 s{sT+1}, s{sT+1}, {WS_KM + 62*131072}")
    a(f"v_lshl_add_u32 v5, v3, 4, s{sT+1}")
    a(f"global_store_dwordx4 v5, v[12:15], s[{S_WS}:{S_WS+1}] sc1")
    a(f"s_lshl_b32 s{sT+1}, s{S_WGID}, 9")
    a(f"s_add_u32 s{sT+1}, s{sT+1}, {WS_VM + 62*65536}")
    a(f"v_lshl_add_u32 v5, v3, 3, s{sT+1}")
    a(f"global_store_dwordx2 v5, v[12:13], s[{S_WS}:{S_WS+1}] sc1")
    a("s_branch L_st3")
    a.label("L_st2")
    a(f"s_lshl_b32 s{sT+1}, s{S_WGID}, 11")
    a(f"s_and_b32 s{sT}, s{S_WAVE}, 1")
    a(f"s_lshl_b32 s{sT}, s{sT}, 10")
    a(f"s_add_u32 s{sT+1}, s{sT+1}, s{sT}")
    a(f"s_add_u32 s{sT+1}, s{sT+1}, {WS_PB}")
    a(f"v_lshl_add_u32 v5, v3, 4, s{sT+1}")
    for r in range(12, 16): a(f"v_mov_b32 v{r}, {SENT}")
    a(f"global_store_dwordx4 v5, v[12:15], s[{S_WS}:{S_WS+1}] sc1")
    a.label("L_st3")
    a("s_waitcnt vmcnt(0) lgkmcnt(0)")
    a("s_barrier")
    a("v_mov_b32 v1, 0")
    a("ds_read_b64 v[8:9], v1")
    a(f"s_cmp_lg_u32 s{S_WAVE}, 1")
    a("s_cbranch_scc1 L_st4")
    a("s_mov_b64 exec, 1")
    a(f"v_mov_b32 v1, {D_TOTAL}")
    a(f"global_atomic_add v1, v2, s[{S_DBG}:{S_DBG+1}]")
    a("s_mov_b64 exec, -1")
    a.label("L_st4")
    a("s_waitcnt lgkmcnt(0)")
    a(f"v_readfirstlane_b32 s{S_RANK}, v8")
    a(f"v_readfirstlane_b32 s{S_TK}, v9")
    a(f"s_mov_b32 s{S_VX}, s{S_XCC}")
    a(f"s_mov_b32 s{S_VR}, s{S_RANK}")
    a("s_barrier")

def decide(a, force_fallback=False):
    poll_counter(a, D_TOTAL, 256, vt=2)
    a("v_mov_b32 v1, 0")
    a(f"global_load_dwordx2 v[4:5], v1, s[{S_DBG}:{S_DBG+1}] offset:{D_PACK} sc1")
    a(f"global_load_dword v6, v1, s[{S_DBG}:{S_DBG+1}] sc1")
    a("s_waitcnt vmcnt(0)")
    a(f"v_readfirstlane_b32 s{sT+8}, v6")
    a("v_xor_b32 v4, 0x20202000, v4")
    a("v_xor_b32 v5, 0x20202020, v5")
    a("v_xor_b32 v6, 32, v6")
    a("v_or3_b32 v4, v4, v5, v6")
    a(f"v_readfirstlane_b32 s{S_MODE}, v4")
    a(f"s_cmp_lg_u32 s{S_MODE}, 0")
    a(f"s_cselect_b32 s{S_MODE}, 1, 0")
    if force_fallback:
        a(f"s_mov_b32 s{S_MODE}, 1")

def poll_counter(a, off, val, vt=1, base=S_DBG, sleep=4):
    l = a.newlabel("poll"); ld = a.newlabel("polld")
    a(f"s_cmp_lg_u32 s{S_WAVE}, 0")
    a(f"s_cbranch_scc1 {ld}")
    a(f"v_mov_b32 v{vt}, {off}")
    a(f"s_mov_b32 s{sT+9}, 0")
    a("s_mov_b64 exec, 1")
    a.label(l)
    a(f"global_load_dword v{vt+1}, v{vt}, s[{base}:{base+1}] sc1")
    a(f"s_add_u32 s{sT+9}, s{sT+9}, 1")
    a(f"s_cmp_gt_u32 s{sT+9}, 0x80000")
    a("s_cbranch_scc1 L_fail")
    a("s_waitcnt vmcnt(0)")
    a(f"v_cmp_le_u32 vcc, {val}, v{vt+1}")
    a(f"s_cbranch_vccnz {ld}")
    if sleep: a(f"s_sleep {sleep}")
    a(f"s_branch {l}")
    a.label(ld)
    a("s_mov_b64 exec, -1")
    a("s_barrier")

def signal_add(a, off, vt=1, base=S_DBG):
    l = a.newlabel("sig")
    a(f"s_cmp_lg_u32 s{S_WAVE}, 0")
    a(f"s_cbranch_scc1 {l}")
    a(f"v_mov_b32 v{vt}, {off}")
    a(f"v_mov_b32 v{vt+1}, 1")
    a("s_mov_b64 exec, 1")
    a(f"global_atomic_add v{vt}, v{vt+1}, s[{base}:{base+1}]")
    a("s_mov_b64 exec, -1")
    a.label(l)

def lane_ids(a, l, g, c):
    a(f"v_mbcnt_lo_u32_b32 v{l}, -1, 0")
    a(f"v_mbcnt_hi_u32_b32 v{l}, -1, v{l}")
    a(f"v_lshrrev_b32 v{g}, 4, v{l}")
    a(f"v_and_b32 v{c}, 15, v{l}")

def stage_rows(a, sbase, row_shift_or_stride, nrows, lds_base, v0, clamp12=False):
    stride = row_shift_or_stride
    l=v0; g=v0+1; c=v0+2; t=v0+3; o0=v0+4; o1=v0+5
    lane_ids(a, l, g, c)
    a(f"v_lshrrev_b32 v{t}, 1, v{c}")
    a(f"v_xor_b32 v{t}, v{t}, v{g}")
    for (o, x) in ((o0, 0), (o1, 4)):
        a(f"v_xor_b32 v{o}, {x}, v{t}")
        if clamp12:
            a(f"v_subrev_u32 v{l}, 2, v{o}")
            a(f"v_cmp_lt_u32 vcc, 5, v{o}")
            a(f"v_cndmask_b32 v{o}, v{o}, v{l}, vcc")
        a(f"v_lshlrev_b32 v{o}, 5, v{o}")
        a(f"v_and_b32 v{l}, 1, v{c}")
        a(f"v_lshl_add_u32 v{o}, v{l}, 4, v{o}")
        a(f"s_mov_b32 s{sT}, {stride}")
        a(f"v_mad_u32_u24 v{o}, v{g}, s{sT}, v{o}")
    per = nrows // 4
    a(f"s_mul_i32 s{sT}, s{S_WAVE}, {per*stride}")
    a(f"s_add_u32 s{sT+2}, s{sbase}, s{sT}")
    a(f"s_addc_u32 s{sT+3}, s{sbase+1}, 0")
    a(f"s_mul_i32 s{sT+1}, s{S_WAVE}, {per*256}")
    a(f"s_add_u32 s{sT+1}, s{sT+1}, {lds_base}")
    n = per // 4
    for i in range(n):
        a(f"s_add_u32 m0, s{sT+1}, {i*1024}")
        a(f"global_load_lds_dwordx4 v{o1 if (i>>1)&1 else o0}, s[{sT+2}:{sT+3}]")
        if i < n-1:
            a(f"s_add_u32 s{sT+2}, s{sT+2}, {4*stride}")
            a(f"s_addc_u32 s{sT+3}, s{sT+3}, 0")
    return n

def tr_base(a, dst, v0, unit_expr=None):
    l=v0; g=v0+1; c=v0+2; t=v0+3
    lane_ids(a, l, g, c)
    a(f"v_lshrrev_b32 v{t}, 2, v{c}")
    a(f"v_lshl_add_u32 v{dst}, v{g}, 3, v{t}")
    a(f"v_lshlrev_b32 v{dst}, 8, v{dst}")
    a(f"v_and_b32 v{l}, 1, v{g}")
    a(f"v_lshl_add_u32 v{dst+1}, v{l}, 2, v{t}")
    a(f"v_and_b32 v{l}, 3, v{c}")
    return l

def rnd_pair(a, x, tmp=None):
    a(f"v_cvt_pk_bf16_f32 v{x+1}, v{x}, v{x+1}")
    a(f"v_lshlrev_b32 v{x}, 16, v{x+1}")
    a(f"v_and_b32 v{x+1}, 0xffff0000, v{x+1}")
def rnd1(a, x):
    a(f"v_cvt_pk_bf16_f32 v{x}, v{x}, v{x}")
    a(f"v_lshlrev_b32 v{x}, 16, v{x}")

LOG2E = 1.4426950408889634
def mod_stage(a):
    L_S = 131072; L_Z = L_S + 1024; L_R = L_Z + 1024
    a("v_lshlrev_b32 v20, 2, v0")
    a(f"global_load_dword v21, v20, s[{S_C}:{S_C+1}]")
    lane_ids(a, 2, 3, 4)
    parts = ((2, 0, 0), (4, 1024, 32768))
    def mdma(nt, col0, lb):
        RB = 32*nt; rpi = 1024 // RB; sh = {2: 2, 4: 3}[nt]
        a(f"v_lshrrev_b32 v5, {sh}, v2")
        a(f"s_mov_b32 s{sT}, 6144")
        a(f"v_mul_lo_u32 v5, v5, s{sT}")
        a(f"v_and_b32 v6, {2*nt-1}, v2")
        a(f"v_lshl_add_u32 v5, v6, 4, v5")
        a(f"s_mul_i32 s{sT}, s{S_TK}, {RB}")
        a(f"s_mul_i32 s{sT+1}, s{S_WAVE}, {128*6144}")
        a(f"s_add_u32 s{sT}, s{sT}, s{sT+1}")
        a(f"s_add_u32 s{sT}, s{sT}, {col0*2}")
        a(f"s_add_u32 s{sT+2}, s{S_WMOD}, s{sT}")
        a(f"s_addc_u32 s{sT+3}, s{S_WMOD+1}, 0")
        a(f"s_mul_i32 s{sT+1}, s{S_WAVE}, {128*RB}")
        n = 128 // rpi
        for i in range(n):
            a(f"s_add_u32 m0, s{sT+1}, {lb + i*1024}")
            a(f"global_load_lds_dwordx4 v5, s[{sT+2}:{sT+3}]")
            if i < n-1:
                a(f"s_add_u32 s{sT+2}, s{sT+2}, {rpi*6144}")
                a(f"s_addc_u32 s{sT+3}, s{sT+3}, 0")
        return n
    nd = mdma(*parts[0])
    a(f"s_waitcnt vmcnt({nd})")
    a("v_lshlrev_b32 v22, 16, v21")
    a("v_and_b32 v23, 0xffff0000, v21")
    a(f"s_mov_b32 s{sT}, {f2u(-LOG2E)}")
    for r in (22, 23):
        a(f"v_mul_f32 v{r+2}, s{sT}, v{r}")
        a(f"v_exp_f32 v{r+2}, v{r+2}")
        a(f"v_add_f32 v{r+2}, 1.0, v{r+2}")
        a(f"v_rcp_f32 v{r+2}, v{r+2}")
        a(f"v_mul_f32 v{r}, v{r}, v{r+2}")
    a("v_cvt_pk_bf16_f32 v22, v22, v23")
    a(f"v_add_u32 v20, {L_S}, v20")
    a("v_mov_b32 v23, 0")
    a("ds_write_b32 v20, v22")
    a("ds_write_b32 v20, v23 offset:1024")
    a(f"s_lshl_b32 s{sT}, s{S_WAVE}, 8")
    a(f"s_add_u32 s{sT+1}, s{sT}, {L_S}")
    a(f"v_lshl_add_u32 v12, v3, 4, s{sT+1}")
    a(f"s_add_u32 s{sT+1}, s{sT}, {L_Z}")
    a(f"v_mov_b32 v13, s{sT+1}")
    a("v_cmp_eq_u32 vcc, 0, v4")
    a("v_cndmask_b32 v12, v13, v12, vcc")
    a("s_waitcnt lgkmcnt(0)")
    for ks in range(4):
        a(f"ds_read_b128 v[{32+4*ks}:{35+4*ks}], v12 offset:{64*ks}")
    a("v_lshrrev_b32 v7, 2, v4")
    a("v_lshl_add_u32 v7, v3, 3, v7")
    a("v_and_b32 v8, 3, v4")
    for pi, (nt, col0, lb) in enumerate(parts):
        RB = 32*nt
        a(f"v_mul_u32_u24 v9, {RB}, v7")
        a("v_lshl_add_u32 v9, v8, 3, v9")
        a(f"s_mul_i32 s{sT+1}, s{S_WAVE}, {128*RB}")
        a(f"s_add_u32 s{sT+1}, s{sT+1}, {lb}")
        a(f"v_add_u32 v9, s{sT+1}, v9")
        if pi == 1: mdma(*parts[1])
        a("s_waitcnt vmcnt(0)")
        for u in range(nt):
            for ks in range(4):
                for m in range(2):
                    a(f"ds_read_b64_tr_b16 v[{64+16*u+4*ks+2*m}:{65+16*u+4*ks+2*m}], v9 offset:{(32*ks+4*m)*RB+32*u}")
        a("s_waitcnt lgkmcnt(0)")
        for u in range(nt):
            for ks in range(4):
                c = "0" if ks == 0 else f"v[{48+4*u}:{51+4*u}]"
                a(f"v_mfma_f32_16x16x32_bf16 v[{48+4*u}:{51+4*u}], v[{32+4*ks}:{35+4*ks}], v[{64+16*u+4*ks}:{67+16*u+4*ks}], {c}")
        a(f"s_lshl_b32 s{sT}, s{S_WAVE}, 8")
        a(f"s_add_u32 s{sT}, s{sT}, {L_R + pi*1024}")
        a(f"v_lshl_add_u32 v10, v4, 2, s{sT}")
        a("s_mov_b64 exec, 0xffff")
        for u in range(nt):
            a(f"ds_write_b32 v10, v{48+4*u} offset:{64*u}")
        a("s_mov_b64 exec, -1")
        a("s_waitcnt lgkmcnt(0)")
        a("s_barrier")
        lsk = a.newlabel("modw")
        a(f"s_cmp_lg_u32 s{S_WAVE}, 0")
        a(f"s_cbranch_scc1 {lsk}")
        a(f"v_lshlrev_b32 v10, 2, v2")
        a(f"v_add_u32 v11, {L_R + pi*1024}, v10")
        for w in range(4): a(f"ds_read_b32 v{14+w}, v11 offset:{256*w}")
        a("s_waitcnt lgkmcnt(0)")
        a("v_add_f32 v14, v14, v15")
        a("v_add_f32 v16, v16, v17")
        a("v_add_f32 v16, v14, v16")
        rnd1(a, 16)
        a(f"s_mul_i32 s{sT+1}, s{S_TK}, {16*nt}")
        a(f"s_add_u32 s{sT+1}, s{sT+1}, {col0}")
        a(f"s_lshr_b32 s{sT+2}, s{sT+1}, 9")
        a(f"s_cmp_eq_u32 s{sT+2}, 1")
        a(f"s_cselect_b32 s{sT+3}, 1.0, 0")
        a(f"s_cmp_eq_u32 s{sT+2}, 4")
        a(f"s_cselect_b32 s{sT+3}, 1.0, s{sT+3}")
        a(f"v_add_f32 v16, s{sT+3}, v16")
        rnd1(a, 16)
        a(f"s_lshl_b32 s{sT+1}, s{sT+1}, 2")
        a(f"s_add_u32 s{sT+1}, s{sT+1}, {WS_MOD}")
        a(f"v_add_u32 v10, s{sT+1}, v10")
        if nt == 2: a("s_mov_b32 exec_hi, 0")
        a(f"global_store_dword v10, v16, s[{S_WS}:{S_WS+1}] sc1")
        a("s_mov_b64 exec, 1")
        a(f"v_mov_b32 v10, {D_MODRDY + 4*pi}")
        a("v_mov_b32 v11, 1")
        a("s_waitcnt vmcnt(0)")
        a(f"global_atomic_add v10, v11, s[{S_DBG}:{S_DBG+1}]")
        a("s_mov_b64 exec, -1")
        a.label(lsk)
        a.flush_hazards()
        if pi == 0:
            TS(a, 9)
            a("s_barrier")
            a(f"s_lshl_b32 s{sT}, s{S_TK}, 17")
            a(f"s_lshl_b32 s{sT+1}, s{S_WAVE}, 15")
            a(f"s_add_u32 s{sT}, s{sT}, s{sT+1}")
            a(f"v_lshl_add_u32 v10, v2, 7, s{sT}")
            for i in range(4):
                a(f"global_load_dword v248, v10, s[{S_WO}:{S_WO+1}]")
                a("v_add_u32 v10, 0x2000, v10")

def row16_sum(a, x, t):
    for sh in (8, 4, 2, 1):
        a(f"v_add_f32_dpp v{x}, v{x}, v{x} row_ror:{sh} row_mask:0xf bank_mask:0xf")

def ln_rows(a, X, MV, T0):
    s=T0; q=T0+2
    a(f"v_pk_add_f32 v[{s}:{s+1}], v[{X}:{X+1}], v[{X+2}:{X+3}]")
    for i in range(4, 32, 2):
        a(f"v_pk_add_f32 v[{s}:{s+1}], v[{s}:{s+1}], v[{X+i}:{X+i+1}]")
    a(f"v_add_f32 v{s}, v{s}, v{s+1}")
    row16_sum(a, s, None)
    a(f"v_mul_f32 v{s}, {f2u(1/512)}, v{s}")
    a(f"v_mov_b32 v{s+1}, v{s}")
    a(f"v_mov_b64 v[{q}:{q+1}], 0")
    for i in range(0, 32, 2):
        a(f"v_pk_add_f32 v[{T0+4}:{T0+5}], v[{X+i}:{X+i+1}], v[{s}:{s+1}] neg_lo:[0,1] neg_hi:[0,1]")
        a(f"v_pk_fma_f32 v[{q}:{q+1}], v[{T0+4}:{T0+5}], v[{T0+4}:{T0+5}], v[{q}:{q+1}]")
    a(f"v_add_f32 v{q}, v{q}, v{q+1}")
    row16_sum(a, q, None)
    a(f"v_mul_f32 v{q}, {f2u(1/512)}, v{q}")
    rnd1(a, q)
    a(f"v_add_f32 v{q}, {f2u(1e-5)}, v{q}")
    rnd1(a, q)
    a(f"v_sqrt_f32 v{q}, v{q}")
    rnd1(a, q)
    a(f"v_rcp_f32 v{s+1}, v{q}")
    rnd1(a, s)

def ln_apply(a, X, s, CA, SA, OUT):
    a(f"v_mov_b32 v{s+2}, v{s}")
    a(f"v_mov_b32 v{s+3}, v{s}")
    a(f"v_mov_b32 v{s+4}, v{s+1}")
    a(f"v_mov_b32 v{s+5}, v{s+1}")
    for i in range(0, 32, 2):
        x = X+i
        a(f"v_pk_add_f32 v[{x}:{x+1}], v[{x}:{x+1}], v[{s+2}:{s+3}] neg_lo:[0,1] neg_hi:[0,1]")
        rnd_pair(a, x)
        a(f"v_pk_mul_f32 v[{x}:{x+1}], v[{x}:{x+1}], v[{s+4}:{s+5}]")
        rnd_pair(a, x)
        a(f"v_pk_mul_f32 v[{x}:{x+1}], v[{x}:{x+1}], v[{CA+i}:{CA+i+1}]")
        rnd_pair(a, x)
        a(f"v_pk_add_f32 v[{x}:{x+1}], v[{x}:{x+1}], v[{SA+i}:{SA+i+1}]")
        a(f"v_cvt_pk_bf16_f32 v{OUT+i//2}, v{x}, v{x+1}")

def ln1_all(a, sB):
    CA=176; SA=208
    sets = ((128, 144, 240, 0), (96, 64, 112, 64))
    lane_ids(a, 120, 121, 122)
    a(f"s_lshl_b32 s{sT}, s{sB}, 4")
    a(f"s_lshl_b32 s{sT+1}, s{S_WAVE}, 2")
    a(f"s_add_u32 s{sT}, s{sT}, s{sT+1}")
    a(f"v_add_u32 v123, s{sT}, v121")
    a("v_lshlrev_b32 v123, 10, v123")
    a("v_lshl_add_u32 v123, v122, 4, v123")
    for (RW, X, T0, add) in sets:
        if add: a(f"v_add_u32 v123, {add*16*1024}, v123")
        for j in range(4):
            a(f"global_load_dwordx4 v[{RW+4*j}:{RW+4*j+3}], v123, s[{S_X}:{S_X+1}] offset:{256*j}")
    for k, (RW, X, T0, add) in enumerate(sets):
        a(f"s_waitcnt vmcnt({4*(1-k)})")
        for i in range(16):
            a(f"v_lshlrev_b32 v{X+2*i}, 16, v{RW+i}")
            a(f"v_and_b32 v{X+2*i+1}, 0xffff0000, v{RW+i}")
        ln_rows(a, X, None, T0)
    poll_counter(a, D_TOTAL, 256, vt=124)
    poll_counter(a, D_MODRDY, 32, vt=124, sleep=2)
    a("v_lshlrev_b32 v124, 5, v122")
    a(f"v_add_u32 v124, {WS_MOD}, v124")
    for j in range(4):
        for h in range(2):
            a(f"global_load_dwordx4 v[{SA+8*j+4*h}:{SA+8*j+4*h+3}], v124, s[{S_WS}:{S_WS+1}] offset:{512*j+16*h} sc1")
            a(f"global_load_dwordx4 v[{CA+8*j+4*h}:{CA+8*j+4*h+3}], v124, s[{S_WS}:{S_WS+1}] offset:{2048+512*j+16*h} sc1")
    a("v_lshrrev_b32 v126, 2, v122")
    a("v_lshlrev_b32 v126, 10, v126")
    a("v_and_b32 v125, 3, v122")
    a("v_lshl_add_u32 v126, v125, 8, v126")
    a(f"s_lshl_b32 s{sT+1}, s{S_WAVE}, 2")
    a(f"v_add_u32 v125, s{sT+1}, v121")
    a("v_lshl_add_u32 v126, v125, 4, v126")
    a(f"s_lshl_b32 s{sT}, s{sB}, 14")
    a(f"s_add_u32 s{sT}, s{sT}, {WS_H}")
    a(f"v_add_u32 v126, s{sT}, v126")
    a("s_waitcnt vmcnt(0)")
    for (RW, X, T0, add) in sets:
        ln_apply(a, X, T0, CA, SA, RW)
        a(f"v_add_u32 v127, {add*16384}, v126")
        for j in range(4):
            if j: a("v_add_u32 v127, 4096, v127")
            a(f"global_store_dwordx4 v127, v[{RW+4*j}:{RW+4*j+3}], s[{S_WS}:{S_WS+1}] sc1")
        a("s_waitcnt vmcnt(0)")
        a("s_barrier")
        a(f"s_add_u32 s{sT+8}, s{sB}, {add}")
        a(f"s_lshr_b32 s{sT+8}, s{sT+8}, 2")
        a(f"s_lshl_b32 s{sT+8}, s{sT+8}, 7")
        a(f"s_add_u32 s{sT+8}, s{sT+8}, {F_HRDY}")
        signal_add(a, f"s{sT+8}", vt=124, base=S_WS)
        signal_add(a, F_HALL, vt=124, base=S_WS)

sNT=40; sMH=41; sMTX=42; sHEAD=43; sOUTB=44; sHB=46; sIT=48; sSIG=49
def gemm_pre(a, sB, isQ):
    if isQ:
        a(f"s_lshr_b32 s{sMH}, s{sB}, 5")
        a(f"s_mov_b32 s{sMTX}, 2")
    else:
        a(f"s_lshr_b32 s{sMH}, s{sB}, 6")
        a(f"s_bfe_u32 s{sMTX}, s{sB}, 0x10005")
    a(f"s_and_b32 s{sHEAD}, s{sB}, 31")
    a(f"s_mov_b64 s[{sT+6}:{sT+7}], s[{S_WK}:{S_WK+1}]")
    a(f"s_cmp_eq_u32 s{sMTX}, 1")
    a(f"s_cselect_b64 s[{sT+6}:{sT+7}], s[{S_WV}:{S_WV+1}], s[{sT+6}:{sT+7}]")
    a(f"s_cmp_eq_u32 s{sMTX}, 2")
    a(f"s_cselect_b64 s[{sT+6}:{sT+7}], s[{S_WQ}:{S_WQ+1}], s[{sT+6}:{sT+7}]")
    a(f"s_lshl_b32 s{sT}, s{sHEAD}, 8")
    a(f"s_add_u32 s{sT+6}, s{sT+6}, s{sT}")
    a(f"s_addc_u32 s{sT+7}, s{sT+7}, 0")
    return stage_rows(a, sT+6, 8192, 512, 0, 2)

def gemm_stage(a):
    C = Cnt(a)
    a("s_waitcnt vmcnt(0)")
    a("s_barrier")
    cp = tr_base(a, 10, 2)
    a(f"v_lshl_add_u32 v10, v{cp}, 3, v10")
    WF = lambda t, ks: (t*16+ks)*4
    for t in range(2):
        a(f"s_lshl_b32 s{sT}, s{S_WAVE}, 1")
        a(f"s_add_u32 s{sT}, s{sT}, {t}")
        a(f"v_xor_b32 v14, s{sT}, v11")
        a("v_lshl_add_u32 v14, v14, 5, v10")
        a("v_add_u32 v15, 0x10000, v14")
        for ks in range(16):
            for m in range(2):
                a(f"ds_read_b64_tr_b16 a[{WF(t,ks)+2*m}:{WF(t,ks)+2*m+1}], v{14+(ks>>3)} offset:{(ks&7)*8192+m*1024}")
    a("s_waitcnt lgkmcnt(0)")
    a(f"s_mov_b32 s{sT}, {WS_KF}")
    a(f"s_cmp_eq_u32 s{sMTX}, 1")
    a(f"s_cselect_b32 s{sT}, {WS_VF}, s{sT}")
    a(f"s_cmp_eq_u32 s{sMTX}, 2")
    a(f"s_cselect_b32 s{sT}, {WS_QF}, s{sT}")
    a(f"s_lshl_b32 s{sT+1}, s{sHEAD}, 13")
    a(f"s_add_u32 s{sT}, s{sT}, s{sT+1}")
    a(f"s_lshl_b32 s{sT+1}, s{sMH}, 19")
    a(f"s_add_u32 s{sT}, s{sT}, s{sT+1}")
    sadd64(a, sOUTB, S_WS, f"s{sT}")
    a(f"s_lshl_b32 s{sT}, s{sMH}, 16")
    a(f"s_lshl_b32 s{sT+1}, s{S_WAVE}, 14")
    a(f"s_add_u32 s{sT}, s{sT}, s{sT+1}")
    a(f"s_add_u32 s{sT}, s{sT}, {WS_H}")
    sadd64(a, sHB, S_WS, f"s{sT}")
    lane_ids(a, 2, 3, 4)
    a("v_lshlrev_b32 v5, 4, v2")
    a("v_add_u32 v6, 0x10000, v5")
    for i in range(1, 4): a(f"v_add_u32 v{6+i}, {4096*i}, v5")
    a(f"s_lshl_b32 s{sT}, s{S_WAVE}, 10")
    a(f"v_add_u32 v12, s{sT}, v5")
    a(f"s_lshl_b32 s{sT}, s{S_WAVE}, 11")
    a(f"v_add_u32 v13, s{sT}, v5")
    a(f"v_add_u32 v14, 0x40000, v12")
    a(f"v_add_u32 v15, 0x40000, v13")
    a(f"v_add_u32 v19, 4096, v12")
    a(f"v_add_u32 v20, 4096, v14")
    poll_counter(a, D_TOTAL, 256, vt=16)
    a(f"s_lshl_b32 s{sT+8}, s{sMH}, 7")
    a(f"s_add_u32 s{sT+8}, s{sT+8}, {F_HRDY}")
    poll_counter(a, f"s{sT+8}", 4, vt=16, base=S_WS, sleep=2)
    TS(a, 3)
    a("s_barrier")
    def dma(buf):
        a(f"s_lshl_b32 s{sT}, s{S_WAVE}, 14")
        for q in range(4):
            a(f"s_add_u32 m0, s{sT}, {buf*65536 + q*4096}")
            for i in range(4):
                a(f"global_load_lds_dwordx4 v{5 if q==0 else 6+q}, s[{sHB}:{sHB+1}] offset:{i*1024} sc1")
        sadd64(a, sHB, sHB, 131072)
    dma(0)
    a("s_waitcnt vmcnt(0)")
    a(f"s_mov_b32 s{sIT}, 0")
    a(f"s_lshl_b32 s{sSIG}, s{sMH}, 7")
    a(f"s_add_u32 s{sSIG}, s{sSIG}, {F_KVRDY - 256}")
    a(f"s_cmp_eq_u32 s{sMTX}, 2")
    a(f"s_cselect_b32 s{sT}, {F_QRDY - F_KVRDY}, 0")
    a(f"s_add_u32 s{sSIG}, s{sSIG}, s{sT}")
    lv = a.newlabel("gemmV"); ldone = a.newlabel("gemmdone")
    a(f"s_cmp_eq_u32 s{sMTX}, 1")
    a(f"s_cbranch_scc1 {lv}")
    ACC=32; HF=64
    for isV in (0, 1):
        if isV: a.label(lv)
        a.flush_hazards()
        lloop = a.newlabel("gloop")
        a.label(lloop)
        for buf in range(2):
            a("s_waitcnt vmcnt(4)")
            a("s_barrier")
            ls = a.newlabel("gs")
            a(f"s_cmp_lt_u32 s{sIT}, 3")
            a(f"s_cbranch_scc1 {ls}")
            a(f"s_sub_u32 s{sT+8}, s{sSIG}, 256")
            signal_add(a, f"s{sT+8}", vt=16, base=S_WS)
            a.label(ls)
            ln = a.newlabel("gn")
            a(f"s_cmp_ge_u32 s{sIT}, 15")
            a(f"s_cbranch_scc1 {ln}")
            if buf == 0:
                a(f"s_cmp_eq_u32 s{sIT}, 0")
                a(f"s_cbranch_scc1 {ln}")
            dma(1-buf)
            a.label(ln)
            C.l = []
            order = [(ks, mt) for ks in range(16) for mt in range(4)]
            PF = 6
            def rd(n):
                ks, mt = order[n]
                C.lds(f"ds_read_b128 v[{HF+4*(n%8)}:{HF+4*(n%8)+3}], v{5+buf} offset:{mt*16384+ks*1024}", n)
            for n in range(PF): rd(n)
            for n, (ks, mt) in enumerate(order):
                C.wait_l(n)
                for t in range(2):
                    d = ACC + (mt*2+t)*4
                    c = "0" if ks == 0 else f"v[{d}:{d+3}]"
                    w = f"a[{WF(t,ks)}:{WF(t,ks)+3}]"; h = f"v[{HF+4*(n%8)}:{HF+4*(n%8)+3}]"
                    if isV: a(f"v_mfma_f32_16x16x32_bf16 v[{d}:{d+3}], {h}, {w}, {c}")
                    else: a(f"v_mfma_f32_16x16x32_bf16 v[{d}:{d+3}], {w}, {h}, {c}")
                    if t == 0 and n + PF < 64: rd(n + PF)
            E=96
            if not isV:
                for mt in range(4):
                    for r in range(4):
                        a(f"v_cvt_pk_bf16_f32 v{E+4*mt+r}, v{ACC+mt*8+r}, v{ACC+mt*8+4+r}")
                    a(f"global_store_dwordx4 v{(12,19,14,20)[mt]}, v[{E+4*mt}:{E+4*mt+3}], s[{sOUTB}:{sOUTB+1}] sc1")
            else:
                for sg in range(2):
                    for t in range(2):
                        e = E + (sg*2+t)*4
                        for kt in range(2):
                            d = ACC + ((2*sg+kt)*2+t)*4
                            a(f"v_cvt_pk_bf16_f32 v{e+2*kt}, v{d}, v{d+1}")
                            a(f"v_cvt_pk_bf16_f32 v{e+2*kt+1}, v{d+2}, v{d+3}")
                        a(f"global_store_dwordx4 v{13 if sg==0 else 15}, v[{e}:{e+3}], s[{sOUTB}:{sOUTB+1}] offset:{t*1024} sc1")
            sadd64(a, sOUTB, sOUTB, 1048576)
            a(f"s_add_u32 s{sSIG}, s{sSIG}, 256")
            if buf == 0:
                lf = a.newlabel("gfirst")
                a(f"s_cmp_lg_u32 s{sIT}, 0")
                a(f"s_cbranch_scc1 {lf}")
                a("s_waitcnt vmcnt(0)")
                a("s_barrier")
                signal_add(a, f"s{sSIG}", vt=16, base=S_WS)
                poll_counter(a, F_HALL, 128, vt=16, base=S_WS, sleep=8)
                dma(1)
                a("s_waitcnt vmcnt(0)")
                a.label(lf)
            a(f"s_add_u32 s{sIT}, s{sIT}, 1")
            a.flush_hazards()
        a(f"s_cmp_lt_u32 s{sIT}, 16")
        a(f"s_cbranch_scc1 {lloop}")
        if not isV: a(f"s_branch {ldone}")
    a.label(ldone)
    a.flush_hazards()
    a("s_waitcnt vmcnt(0)")
    a("s_barrier")
    a(f"s_sub_u32 s{sT+8}, s{sSIG}, 256")
    signal_add(a, f"s{sT+8}", vt=16, base=S_WS)
    signal_add(a, f"s{sSIG}", vt=16, base=S_WS)
```

```python
from asmlib import *
from layout import *

L_WV   = 0
L_X    = 131072
L_KT   = L_X
L_VT   = L_X + 8192
L_MS   = L_X + 16384
L_Q    = L_X + 24576
RS = 288
L_K    = L_Q + 2304
L_O    = L_K + 2304
L_VX   = L_Q
L_DUM  = L_O + 2304
L_END  = L_DUM + 256
assert L_END <= 163840

M = lambda kb: 4*kb
QA=32; KA=40; VA=48; WVS=56; QB=72; AF=88
vIDX=104; vL16=105; vMEMOFF=106; vPST=107; vPUB=108; vQKW=109; vQR=110; vKR=111; vOW=112; vOR=113; vWV=114
vKT=116; vMSW=117; vPRD=118; vVOFF=119; vFLG=120; vVXW=121
vSELX=vFLG
T=122
vTR=254
WO = lambda i,kb2: 128 + (i*2+kb2)*8
WQ = lambda t,kb: (t*8+kb)*8
WK = lambda t,kb: 128 + (t*8+kb)*8
sHALF=40; sPUBM=42; sPB=44
sSEL=52
sHALF2=92
sMB=60
sSTEP=68; sSPIN=69
sT=70
sKF=80; sVF=82; sKM=84; sVM=86; sC1=88
sDUMP=90; sPBr=48; sT0=94; sKMM=98; sPRG=100; sFOFF=101
C1 = 0.08838834764831845 * 1.4426950408889634

def lane_consts(a):
    l=T; g=T+1; c=T+2; t0=T+3; t1=T+4; t2=T+5
    a(f"v_mbcnt_lo_u32_b32 v{l}, -1, 0")
    a(f"v_mbcnt_hi_u32_b32 v{l}, -1, v{l}")
    a(f"v_lshrrev_b32 v{g}, 4, v{l}")
    a(f"v_and_b32 v{c}, 15, v{l}")
    a(f"v_lshlrev_b32 v{vL16}, 4, v{l}")
    a(f"v_add_u32 v{vKT}, {L_KT}, v{vL16}")
    a(f"s_lshl_b32 s{sT}, s{S_WAVE}, 10")
    a(f"s_add_u32 s{sT}, s{sT}, {L_MS}")
    a(f"v_add_u32 v{vMSW}, s{sT}, v{vL16}")
    a(f"s_lshl_b32 s{sT}, s{S_WAVE}, 11")
    a(f"s_add_u32 s{sT}, s{sT}, {L_VT}")
    a(f"v_add_u32 v{vVOFF}, s{sT}, v{vL16}")
    a(f"s_lshl_b32 s{sT}, s{S_WAVE}, 12")
    a(f"v_add_u32 v{vWV}, s{sT}, v{vL16}")
    a(f"v_add_u32 v{vWV+1}, 0x10000, v{vWV}")
    a(f"s_lshl_b32 s{sT}, s{S_WAVE}, 9")
    a(f"v_lshl_add_u32 v{vVXW}, v{l}, 2, s{sT}")
    a(f"s_mov_b32 s{sHALF}, 0xAAAAAAAA")
    a(f"s_mov_b32 s{sHALF+1}, 0xAAAAAAAA")
    a(f"v_mov_b32 v{t0}, 0x4444")
    a(f"v_mov_b32 v{t1}, 0xEEEE")
    a(f"s_mov_b32 s{sHALF2}, 0xCCCCCCCC")
    a(f"s_mov_b32 s{sHALF2+1}, 0xCCCCCCCC")
    a(f"v_cndmask_b32 v{vIDX}, v{t0}, v{t1}, s[{sHALF2}:{sHALF2+1}]")
    a(f"v_lshrrev_b32 v30, 2, v{c}")
    a(f"v_and_b32 v31, 1, v{c}")
    a(f"v_lshl_add_u32 v30, v30, 1, v31")
    a(f"v_bfe_u32 v31, v{c}, 1, 1")
    a(f"v_lshlrev_b32 v{t0}, 11, v{g}")
    a(f"v_lshl_add_u32 v{t0}, v30, 5, v{t0}")
    a(f"v_lshl_add_u32 v{t0}, v31, 4, v{t0}")
    a(f"s_lshl_b32 s{sT}, s{S_WAVE}, 8")
    a(f"v_add_u32 v{vMEMOFF}, s{sT}, v{t0}")
    a(f"s_lshl_b32 s{sT}, s{S_VR}, 10")
    a(f"s_lshl_b32 s{sT+1}, s{S_WAVE}, 16")
    a(f"s_add_u32 s{sT}, s{sT}, s{sT+1}")
    a(f"v_add_u32 v{vPST}, s{sT}, v{vL16}")
    a(f"s_lshr_b32 s{sT}, s{S_VR}, 2")
    a(f"s_lshl_b32 s{sT}, s{sT}, 15")
    a(f"s_and_b32 s{sT+1}, s{S_VR}, 3")
    a(f"s_lshl_b32 s{sT+2}, s{sT+1}, 8")
    a(f"s_add_u32 s{sT}, s{sT}, s{sT+2}")
    a(f"v_lshlrev_b32 v{t0}, 10, v{g}")
    a(f"v_lshl_add_u32 v{t0}, v{c}, 4, v{t0}")
    a(f"v_add_u32 v{vPRD}, s{sT}, v{t0}")
    a(f"v_lshrrev_b32 v{t0}, 1, v{c}")
    a(f"v_lshlrev_b32 v{t0}, 8, v{t0}")
    a(f"v_and_b32 v{t1}, 1, v{c}")
    a(f"v_lshl_add_u32 v{t0}, v{t1}, 5, v{t0}")
    a(f"v_lshl_add_u32 v{t0}, v{g}, 3, v{t0}")
    a(f"s_lshr_b32 s{sT}, s{S_VR}, 2")
    a(f"s_lshl_b32 s{sT}, s{sT}, 10")
    a(f"s_lshl_b32 s{sT+1}, s{sT+1}, 6")
    a(f"s_add_u32 s{sT}, s{sT}, s{sT+1}")
    a(f"v_add_u32 v{vPUB}, s{sT}, v{t0}")
    a(f"s_mov_b32 s{sPUBM}, 0x00FF00FF")
    a(f"s_mov_b32 s{sPUBM+1}, 0x00FF00FF")
    a(f"v_lshlrev_b32 v{t1}, 4, v{t1}")
    a(f"v_mov_b32 v{t0}, 0x3F80")
    a(f"v_lshlrev_b32 v{vSELX}, v{t1}, v{t0}")
    for d in range(4):
        m = 0x3 << (2*d); m = m | (m << 16)
        a(f"s_mov_b32 s{sSEL+2*d}, {m}")
        a(f"s_mov_b32 s{sSEL+2*d+1}, {m}")
    a(f"s_mov_b32 s{sKMM}, 0x33333333")
    a(f"s_mov_b32 s{sKMM+1}, 0x33333333")
    a(f"v_mul_u32_u24 v{t0}, {2*RS}, v{g}")
    a(f"v_lshl_add_u32 v{t0}, v{c}, 2, v{t0}")
    a(f"s_lshl_b32 s{sT}, s{S_WAVE}, 6")
    a(f"s_add_u32 s{sT}, s{sT}, {L_Q}")
    a(f"v_add_u32 v{vQKW}, s{sT}, v{t0}")
    a(f"v_lshrrev_b32 v{t0}, 1, v{c}")
    a(f"v_mul_u32_u24 v{t0}, {RS}, v{t0}")
    a(f"v_lshl_add_u32 v{t1}, v{g}, 4, v{t0}")
    a(f"v_add_u32 v{vQR}, {L_Q}, v{t1}")
    a(f"v_and_b32 v{t2}, 1, v{c}")
    a(f"v_lshl_add_u32 v{t1}, v{t2}, 5, v{t0}")
    a(f"v_lshl_add_u32 v{t1}, v{g}, 3, v{t1}")
    a(f"s_lshl_b32 s{sT}, s{S_WAVE}, 6")
    a(f"s_add_u32 s{sT}, s{sT}, {L_O}")
    a(f"v_add_u32 v{vOW}, s{sT}, v{t1}")
    a(f"v_mul_u32_u24 v{t1}, {RS}, v30")
    a(f"v_lshl_add_u32 v{t1}, v{g}, 5, v{t1}")
    a(f"v_lshl_add_u32 v{t1}, v31, 4, v{t1}")
    a(f"v_add_u32 v{vOR}, {L_O}, v{t1}")
    a(f"v_lshrrev_b32 v{t0}, 2, v{c}")
    a(f"v_lshl_add_u32 v{t0}, v{t0}, 1, v{t2}")
    a(f"v_mul_u32_u24 v{t0}, {RS}, v{t0}")
    a(f"v_lshl_add_u32 v{t0}, v{g}, 4, v{t0}")
    a(f"v_add_u32 v{vKR}, {L_K}, v{t0}")
    r=20; ph=21
    a(f"v_lshrrev_b32 v{r}, 2, v{c}")
    a(f"v_and_b32 v{t1}, 1, v{r}")
    a(f"v_lshrrev_b32 v{t2}, 1, v{r}")
    a(f"v_lshl_add_u32 v{r}, v{t2}, 3, v{t1}")
    a(f"v_lshl_add_u32 v{ph}, v{t2}, 2, v{t1}")
    a(f"v_and_b32 v{t2}, 1, v{g}")
    a(f"v_lshl_add_u32 v{ph}, v{t2}, 1, v{ph}")
    a(f"v_lshl_add_u32 v{r}, v{t2}, 2, v{r}")
    a(f"v_lshrrev_b32 v{t2}, 1, v{g}")
    a(f"v_lshl_add_u32 v{r}, v{t2}, 4, v{r}")
    a(f"v_lshlrev_b32 v{r}, 8, v{r}")
    a(f"v_and_b32 v{t2}, 3, v{c}")
    a(f"v_lshl_add_u32 v{r}, v{t2}, 3, v{r}")
    for t in range(2):
        a(f"s_lshl_b32 s{sT}, s{S_WAVE}, 1")
        a(f"s_add_u32 s{sT}, s{sT}, {t}")
        a(f"v_xor_b32 v{t2}, s{sT}, v{ph}")
        a(f"v_lshl_add_u32 v{22+3*t}, v{t2}, 5, v{r}")
        a(f"v_add_u32 v{23+3*t}, 0x10000, v{22+3*t}")
        a(f"v_add_u32 v{24+3*t}, 0x20000, v{22+3*t}")

def tr_off(slot, m):
    return (slot & 3)*16384 + (m >> 1)*8192 + (m & 1)*512

def setup_weights(a):
    l=T
    a(f"v_lshrrev_b32 v8, 4, v{l}")
    a(f"v_bfe_u32 v9, v{l}, 1, 3")
    a(f"v_and_b32 v10, 1, v8")
    a(f"v_xor_b32 v9, v9, v10")
    a(f"v_and_b32 v10, 1, v{l}")
    a(f"v_lshlrev_b32 v10, 4, v10")
    for aa in range(4):
        a(f"v_xor_b32 v11, {aa<<1}, v9")
        a(f"v_lshl_add_u32 v11, v11, 5, v10")
        a(f"v_add_u32 v12, {4*aa}, v8")
        a(f"v_lshl_add_u32 v{aa}, v12, 13, v11")
        a(f"v_lshl_add_u32 v{4+aa}, v12, 10, v11")
    a(f"s_lshl_b32 s{sT}, s{S_VR}, 8")
    a(f"s_lshl_b32 s{sT+1}, s{S_WAVE}, 20")
    a(f"s_add_u32 s{sT}, s{sT}, s{sT+1}")
    a(f"s_lshl_b32 s{sT+1}, s{S_VR}, 17")
    a(f"s_lshl_b32 s{sT+2}, s{S_WAVE}, 14")
    a(f"s_add_u32 s{sT+1}, s{sT+1}, s{sT+2}")
    a(f"s_lshl_b32 s{sT+2}, s{S_WAVE}, 12")
    def issue(grp):
        mat = grp >> 1; half = grp & 1
        for ch in range(4):
            slot = half*4 + ch
            if mat == 3: slot += 1
            if mat == 2:
                a(f"s_add_u32 s{sT+3}, s{sT+1}, {half*65536 + ch*256}")
                base = S_WO; vo = 4
            else:
                kb = half*4 + ch
                a(f"s_add_u32 s{sT+3}, s{sT}, {kb*131072}")
                base = (S_WQ, S_WK, None, S_WV)[mat]; vo = 0
            a(f"s_add_u32 s{sT+4}, s{base}, s{sT+3}")
            a(f"s_addc_u32 s{sT+5}, s{base+1}, 0")
            for aa in range(4):
                a(f"s_add_u32 m0, s{sT+2}, {slot*16384 + aa*1024}")
                a(f"global_load_lds_dwordx4 v{vo+aa}, s[{sT+4}:{sT+5}]")
    issue(0); issue(1)
    for grp in range(6):
        a(f"s_waitcnt vmcnt(16)")
        a("s_barrier")
        mat = grp >> 1; half = grp & 1
        if mat < 2:
            for ch in range(4):
                kb = half*4 + ch
                for t in range(2):
                    dst = (WQ if mat == 0 else WK)(t, kb)
                    for m in range(4):
                        a(f"ds_read_b64_tr_b16 a[{dst+2*m}:{dst+2*m+1}], v{22+3*t+half} offset:{tr_off(kb,m)}")
        else:
            a(f"s_lshl_b32 s{sT+3}, s{S_WAVE}, 14")
            a(f"s_add_u32 s{sT+3}, s{sT+3}, {half*65536}")
            for u in range(8):
                a(f"v_xor_b32 v8, {u}, v21")
                a(f"v_lshl_add_u32 v8, v8, 5, v20")
                a(f"v_add_u32 v8, s{sT+3}, v8")
                dst = WO(u, half)
                for m in range(4):
                    a(f"ds_read_b64_tr_b16 v[{dst+2*m}:{dst+2*m+1}], v8 offset:{tr_off(0,m)}")
        a("s_waitcnt lgkmcnt(0)")
        a("s_barrier")
        if grp < 4: issue(grp + 2)
        elif grp == 4:
            pass
        elif grp == 5:
            issue(6); issue(7)
        if grp == 4:
            a("s_waitcnt vmcnt(0)")
    for kb in range(8):
        a(f"s_waitcnt vmcnt({4*(7-kb)})")
        a("s_barrier")
        slot = kb + 1
        for t in range(2):
            for m in range(4):
                a(f"ds_read_b64_tr_b16 v[{32+8*t+2*m}:{33+8*t+2*m}], v{22+3*t+(slot>>2)} offset:{tr_off(slot,m)}")
        a("s_waitcnt lgkmcnt(0)")
        for t in range(2):
            for hf in range(2):
                a(f"ds_write_b128 v{vWV+(kb>>2)}, v[{32+8*t+4*hf}:{35+8*t+4*hf}] offset:{(kb&3)*16384+t*2048+hf*1024}")
        a("s_waitcnt lgkmcnt(0)")
    a("s_barrier")

TRACE=[False]
WI=set()
def trace(a, slot):
    if not TRACE[0]: return
    a(f"s_memrealtime s[{18+2*slot}:{19+2*slot}]")
def trace_flush(a):
    if not TRACE[0]: return
    a(f"s_lshl_b32 s3, s{sSTEP}, 12")
    a(f"s_lshl_b32 s2, s{S_VR}, 7")
    a("s_add_u32 s3, s3, s2")
    a(f"s_lshl_b32 s2, s{S_WAVE}, 5")
    a("s_add_u32 s3, s3, s2")
    a(f"s_add_u32 s3, s3, {WS_X1}")
    a(f"v_lshrrev_b32 v{T}, 2, v{vL16}")
    a(f"v_add_u32 v{T}, s3, v{T}")
    a("s_waitcnt lgkmcnt(0)")
    for sl in range(8):
        a(f"v_writelane_b32 v{T+1}, s{18+2*sl}, {sl}")
    a("s_mov_b64 exec, 0xff")
    a(f"global_store_dword v{T}, v{T+1}, s[{S_WS}:{S_WS+1}]")
    a("s_mov_b64 exec, -1")
class Prof:
    def __init__(self, a, enabled):
        self.a=a; self.en=enabled; self.names=[]
    def stamp(self, name):
        if not self.en: return
        a=self.a
        a("s_memtime s[96:97]")
        a("s_waitcnt lgkmcnt(0)")
        if name in self.names: idx=self.names.index(name)
        else: self.names.append(name); idx=len(self.names)-1
        acc = 18+idx
        assert acc <= 33
        a(f"s_sub_u32 s3, s96, s2")
        a(f"s_add_u32 s{acc}, s{acc}, s3")
        a("s_mov_b32 s2, s96")

def xl(a, x, t, op):
    a(f"v_mov_b32 v{t}, v{x}")
    a(f"v_permlane32_swap_b32 v{t}, v{x}")
    a(f"{op} v{x}, v{t}, v{x}")
    a(f"v_mov_b32 v{t}, v{x}")
    a(f"v_permlane16_swap_b32 v{t}, v{x}")
    a(f"{op} v{x}, v{t}, v{x}")

import os
SPEC_T=int(os.environ.get('SPEC_T','1'))
PSL=int(os.environ.get('PSL','0'))
R0=56; R1=72; R2=88
sFLW=8; sFLR=10; sV0=12
def chain_main(a, sc, dump=False, prof=False, kvflags=True, guard=True):
    P = Prof(a, prof)
    KVSC = 'nt' if 'nont' in WI else ''
    C = Cnt(a)
    a(f"s_mov_b32 s{sC1}, {f2u(C1)}")
    a(f"s_mov_b32 s{sC1+1}, {f2u(C1)}")
    for i in range(2):
        sadd64(a, sPB+2*i, S_WS, WS_PB + i*262144)
        sadd64(a, sPBr+2*i, S_WS, WS_PB + i*262144 + 4096)
    a(f"s_lshl_b32 s{sT}, s{S_VR}, 13")
    a(f"s_mov_b32 s{sT+1}, {WS_KF}")
    a(f"s_mov_b32 s{sVF}, {L_KT}")
    a(f"s_cmp_eq_u32 s{S_WAVE}, 3")
    a(f"s_cselect_b32 s{sT+1}, {WS_VF}, s{sT+1}")
    a(f"s_cselect_b32 s{sVF}, {L_VT}, s{sVF}")
    a(f"s_add_u32 s{sT+1}, s{sT+1}, s{sT}")
    sadd64(a, sKF, S_WS, f"s{sT+1}")
    sadd64(a, sV0, sKF, WS_VF - WS_KF)
    a(f"s_lshl_b32 s{sT}, s{S_VR}, 12")
    a(f"s_add_u32 s{sT+1}, s{sT}, {WS_KM - 131072}")
    sadd64(a, sKM, S_WS, f"s{sT+1}")
    a(f"s_lshl_b32 s{sT}, s{S_VR}, 11")
    a(f"s_add_u32 s{sT+1}, s{sT}, {WS_VM - 65536}")
    sadd64(a, sVM, S_WS, f"s{sT+1}")
    a(f"s_lshl_b32 s{sPRG}, s{S_VR}, 7")
    a(f"s_add_u32 s{sPRG}, s{sPRG}, {F_PROG}")
    a(f"v_mov_b32 v{vWV}, v{vL16}")
    a(f"v_add_u32 v{vWV+1}, 0x10000, v{vL16}")
    a(f"v_lshrrev_b32 v{vVXW}, 2, v{vL16}")
    a(f"v_bfe_u32 v{T}, v{vL16}, 5, 3")
    a(f"v_mul_u32_u24 v{T}, {RS}, v{T}")
    a(f"v_lshrrev_b32 v{T+1}, 8, v{vL16}")
    a(f"v_lshl_add_u32 v{T}, v{T+1}, 3, v{T}")
    a(f"v_add_u32 v{vOW}, {L_O}, v{T}")
    lnp = a.newlabel("c_np")
    a(f"s_cmp_lg_u32 s{S_WAVE}, 1")
    a(f"s_cbranch_scc1 {lnp}")
    a(f"v_mul_u32_u24 v{T}, {RS}, v{T+1}")
    a(f"v_and_b32 v{T+1}, 0xff, v{vL16}")
    a(f"v_add3_u32 v{vFLG}, v{T}, v{T+1}, v{vFLG}" if False else f"v_add_u32 v{T}, v{T}, v{T+1}")
    a(f"v_add_u32 v{vFLG}, {L_K}, v{T}")
    a.label(lnp)
    if dump: sadd64(a, sDUMP, S_WS, WS_DUMP)
    a(f"s_lshl_b32 s{sT}, s{S_WAVE}, 8")
    a(f"s_lshl_b32 s{sT+1}, s{S_VR}, 2")
    a(f"s_add_u32 s{sT}, s{sT}, s{sT+1}")
    a(f"s_add_u32 s{sT}, s{sT}, {F_PFL}")
    sadd64(a, sFLW, S_WS, f"s{sT}")
    a(f"s_lshr_b32 s{sT}, s{S_VR}, 2")
    a(f"s_lshl_b32 s{sT}, s{sT}, 7")
    a(f"s_add_u32 s{sT}, s{sT}, {F_PFL}")
    sadd64(a, sFLR, S_WS, f"s{sT}")
    for i in range(4): sadd64(a, sMB+2*i, S_WS, WS_MB + 8192*i)
    a(f"s_mov_b32 s{sSPIN}, 0")
    a(f"s_mov_b32 s{sSTEP}, 0")
    if prof:
        for r in range(18, 34): a(f"s_mov_b32 s{r}, 0")
    lw = [a.newlabel(f"c_w{i}") for i in range(4)]; lend = a.newlabel("c_end")
    for i in range(1, 4):
        a(f"s_cmp_eq_u32 s{S_WAVE}, {i}")
        a(f"s_cbranch_scc1 {lw[i]}")
    tails = []; slow = []; fbk = []; redo = []; ptail = []
    def retry_stub(lback):
        l = a.newlabel("c_retry"); tails.append((l, lback)); return l
    I = lambda txt: (lambda: a(txt))
    for w in range(4):
        role = ("R", "PUB", "DMA", "DMA")[w]
        if w: a.label(lw[w]); a.hist=[]
        KB = [w, w+4] + [k for k in range(8) if k not in (w, w+4)]
        VB = KB
        TL = [[], [0,1,2], [3,4,5], [6,7]][w]
        vops = [(kb, ti) for kb in KB for ti in range(len(TL))]
        NS = 5; SLOT = [R0, R0+8, R1, R1+8, R2]
        VACC = [VA, VA+4, R2+12]; VFR = [QA, QA+4, R2+8]; VH = [vQR, vKR, vVOFF]
        def wvr(n):
            kb, ti = vops[n]; sl_ = SLOT[n % NS]
            for hf in range(2):
                C.lds(f"ds_read_b128 v[{sl_+4*hf}:{sl_+4*hf+3}], v{vWV+(kb>>2)} offset:{(kb&3)*16384+TL[ti]*2048+hf*1024}", ("wv", n))
        def wait_flag_spin(off_sgpr):
            l = a.newlabel("c_fl")
            a(f"v_mov_b32 v{T}, s{off_sgpr}")
            a.label(l)
            a(f"global_load_dword v{vFLG}, v{T}, s[{S_WS}:{S_WS+1}] sc1")
            a(f"s_add_u32 s{sSPIN}, s{sSPIN}, 1")
            a(f"s_cmp_gt_u32 s{sSPIN}, 0x80000")
            a("s_cbranch_scc1 L_fail")
            a("s_waitcnt vmcnt(0)")
            a(f"v_cmp_gt_u32 vcc, {KV_TARGET}, v{vFLG}")
            a(f"s_cbranch_vccnz {l}")
        def wv_read(kb, t, slot, hf):
            C.lds(f"ds_read_b128 v[{slot+4*hf}:{slot+4*hf+3}], v{vWV+(kb>>2)} offset:{(kb&3)*16384+t*2048+hf*1024}", ("wv",kb,t))
        def wv4(kb, R): return [(lambda t=t, hf=hf: wv_read(kb, t, R+8*t, hf)) for t in range(2) for hf in range(2)]
        def vmf(kb, t, R):
            C.wait_l(("wv",kb,t))
            a(f"v_smfmac_f32_16x16x64_bf16 v[{VA+4*t}:{VA+4*t+3}], v[{M(kb)}:{M(kb)+3}], v[{R+8*t}:{R+8*t+7}], v{vIDX}")
        def qmf(kb, t):
            C.wait_l(("m",kb))
            a(f"v_smfmac_f32_16x16x64_bf16 v[{QA+4*t}:{QA+4*t+3}], v[{M(kb)}:{M(kb)+3}], a[{WQ(t,kb)}:{WQ(t,kb)+7}], v{vIDX}")
        def kmf(kb, t): a(f"v_smfmac_f32_16x16x64_bf16 v[{KA+4*t}:{KA+4*t+3}], v[{M(kb)}:{M(kb)+3}], a[{WK(t,kb)}:{WK(t,kb)+7}], v{vIDX}")
        def weave(mf, fill, per=1, drain=True):
            for m in mf:
                m()
                for _ in range(per):
                    if fill: fill.pop(0)()
            if drain:
                while fill: fill.pop(0)()
        if role == "R":
            a(f"v_bfe_u32 v{T}, v{vPUB}, 5, 3")
            a(f"v_lshrrev_b32 v{T+1}, 8, v{vPUB}")
            a(f"v_lshlrev_b32 v{T}, 10, v{T}")
            a(f"v_lshl_add_u32 v{T}, v{T+1}, 5, v{T}")
            a(f"v_and_b32 v{T+1}, 31, v{vPUB}")
            a(f"v_add_u32 v{T}, v{T}, v{T+1}")
            a(f"s_mov_b64 exec, s[{sPUBM}:{sPUBM+1}]")
            a(f"global_load_dwordx2 v[{T+2}:{T+3}], v{T}, s[{S_MEM0}:{S_MEM0+1}]")
            a("s_waitcnt vmcnt(0)")
            a(f"v_min_u32 v{T+2}, -2, v{T+2}")
            a(f"v_min_u32 v{T+3}, -2, v{T+3}")
            a(f"global_store_dwordx2 v{vPUB}, v[{T+2}:{T+3}], s[{sMB}:{sMB+1}] {sc}")
            if dump: a(f"global_store_dwordx2 v{vPUB}, v[{T+2}:{T+3}], s[{sDUMP}:{sDUMP+1}]")
            a("s_mov_b64 exec, -1")
        elif role == "DMA":
            a(f"s_mov_b32 s{sFOFF}, {F_KVRDY}")
            if kvflags: wait_flag_spin(sFOFF)
            a(f"s_mov_b32 m0, {L_DUM}")
            a(f"v_lshlrev_b32 v{T}, 3, v{vL16}")
            a(f"global_load_lds_dword v{T}, s[{sKF}:{sKF+1}] sc1")
            a(f"v_add_u32 v{T}, 0x40000, v{T}")
            a(f"global_load_lds_dword v{T}, s[{sKF}:{sKF+1}] sc1")
            a(f"v_lshlrev_b32 v{T+5}, 3, v{vL16}")
            a(f"s_mov_b32 s{sFOFF}, {F_KVRDY+128}")
            if kvflags: wait_flag_spin(sFOFF)
            a(f"s_mov_b32 s{sFOFF}, {F_KVRDY+256}")
        for r in range(QA, QA+24, 2): a(f"v_mov_b64 v[{r}:{r+1}], 0")
        if w:
            for n in range(NS): wvr(n)
            a(f"v_mov_b64 v[{R2+12}:{R2+13}], 0"); a(f"v_mov_b64 v[{R2+14}:{R2+15}], 0")
        a(f"s_memtime s[{sT0}:{sT0+1}]")
        a("s_waitcnt lgkmcnt(0)")
        if prof: a(f"s_mov_b32 s2, s{sT0}")
        lloop = a.newlabel("c_loop"); lchk0 = a.newlabel("c_chk0")
        A_=M(KB[0]); B_=M(KB[1])
        def mloads(A_=A_, B_=B_):
            a(f"global_load_dwordx4 v[{A_}:{A_+3}], v{vMEMOFF}, s[{sMB}:{sMB+1}] sc1")
            a(f"global_load_dwordx4 v[{B_}:{B_+3}], v{vMEMOFF}, s[{sMB}:{sMB+1}] offset:1024 sc1")
        def dmal():
            lb = L_VT if w == 3 else L_KT
            l = [I(f"s_mov_b32 m0, {lb}")]
            l += [I(f"global_load_lds_dwordx4 v{vL16}, s[{sKF}:{sKF+1}] offset:{i*1024} {KVSC}") for i in range(4)]
            l += [I(f"v_add_u32 v{T}, 4096, v{vL16}"), I(f"s_mov_b32 m0, {lb+4096}")]
            l += [I(f"global_load_lds_dwordx4 v{T}, s[{sKF}:{sKF+1}] offset:{i*1024} {KVSC}") for i in range(4)]
            return l
        if role == "DMA":
            for f in dmal(): f()
            sadd64(a, sKF, sKF, 262144)
        def rotate():
            a(f"s_mov_b64 s[{sT}:{sT+1}], s[{sMB}:{sMB+1}]")
            a(f"s_mov_b64 s[{sMB}:{sMB+1}], s[{sMB+2}:{sMB+3}]")
            a(f"s_mov_b64 s[{sMB+2}:{sMB+3}], s[{sMB+4}:{sMB+5}]")
            a(f"s_mov_b64 s[{sMB+4}:{sMB+5}], s[{sMB+6}:{sMB+7}]")
            a(f"s_mov_b64 s[{sMB+6}:{sMB+7}], s[{sT}:{sT+1}]")
        mloads()
        a.flush_hazards()
        a.label(lloop)
        for par in range(2):
            C.l=[]; C.v=[]
            lp = a.newlabel("c_pollm")
            if par == 0:
                a(f"s_branch {lchk0}")
                a.label(lp)
                mloads()
                a.label(lchk0)
            else:
                lc1 = a.newlabel("c_chk1")
                ptail.append((lp, lc1, mloads))
                a.label(lc1)
            a("s_waitcnt vmcnt(1)")
            a(f"v_max3_u32 v{T}, v{A_}, v{A_+1}, v{A_+2}")
            a("s_waitcnt vmcnt(0)")
            a(f"v_max3_u32 v{T+1}, v{A_+3}, v{B_}, v{B_+1}")
            a(f"v_max3_u32 v{T}, v{T}, v{B_+2}, v{B_+3}")
            a(f"v_max_u32 v{T}, v{T}, v{T+1}")
            a(f"v_cmp_eq_u32 vcc, -1, v{T}")
            a(f"ds_write_b128 v{vMSW}, v[{A_}:{A_+3}]")
            a(f"ds_write_b128 v{vMSW}, v[{B_}:{B_+3}] offset:4096")
            a(f"s_cbranch_vccnz {retry_stub(lp)}")
            trace(a, 0); P.stamp("pollm")
            rf = []
            if role == "DMA":
                if 'nopf' not in WI: rf += [I(f"s_mov_b32 m0, {L_DUM}"), I(f"global_load_lds_dword v{T+5}, s[{sKF}:{sKF+1}]")]
                if par == 0 and kvflags:
                    rf += [I(f"v_mov_b32 v{T}, s{sFOFF}"), I(f"global_load_dword v{vFLG}, v{T}, s[{S_WS}:{S_WS+1}] sc1")]
            elif role == "PUB":
                slr = sPB + 2*(par^1); slr2 = sPBr + 2*(par^1)
                rf += [I(f"s_sub_u32 s{sT}, s{sSTEP}, 1"), I(f"s_max_i32 s{sT}, s{sT}, 0"), I(f"v_mov_b32 v{T}, s{sPRG}"), I(f"v_mov_b32 v{T+1}, s{sT}"),
                       I(f"global_store_dword v{T}, v{T+1}, s[{S_WS}:{S_WS+1}] sc1")]
            else:
                slr = sPB + 2*(par^1); slr2 = sPBr + 2*(par^1)
                rf += [I(f"v_mov_b32 v{T+2+i}, {SENT}") for i in range(4)]
                rf += [I(f"global_store_dwordx4 v{vPRD}, v[{T+2}:{T+5}], s[{slr}:{slr+1}] {sc}"),
                       I(f"global_store_dwordx4 v{vPRD}, v[{T+2}:{T+5}], s[{slr2}:{slr2+1}] {sc}")]
                for i in range(1, 4):
                    rf += [I(f"v_add_u32 v{T}, {8192*i}, v{vPRD}"),
                           I(f"global_store_dwordx4 v{T}, v[{T+2}:{T+5}], s[{slr}:{slr+1}] {sc}"),
                           I(f"global_store_dwordx4 v{T}, v[{T+2}:{T+5}], s[{slr2}:{slr2+1}] {sc}")]
            if w and 'novpub' not in WI:
                rf = [I(f"global_store_dword v{vVXW}, v{VH[ti]}, s[{sVM}:{sVM+1}] offset:{256*tau} sc1") for ti, tau in enumerate(TL)] + rf
            qmf(KB[0],0); qmf(KB[0],1); qmf(KB[1],0)
            a("s_waitcnt lgkmcnt(0)")
            a("s_barrier")
            P.stamp("barMS")
            if TS_ENABLED[0] and w == 0:
                a(f"s_add_u32 s76, s{sSTEP}, 16")
                TS(a, "s76", vt=T)
            mr = [(lambda kb=kb: C.lds(f"ds_read_b128 v[{M(kb)}:{M(kb)+3}], v{vKT} offset:{L_MS-L_KT+kb*1024}", ("m",kb))) for kb in KB[2:]]
            mr[0](); mr[1]()
            qmf(KB[1],1); mr[2]()
            kmf(KB[0],0); mr[3]()
            if role == "PUB" and 'nokpub' not in WI:
                a(f"global_store_dwordx4 v{vL16}, v[{M(KB[6])}:{M(KB[6])+3}], s[{sKM}:{sKM+1}] sc1")
                a(f"global_store_dwordx4 v{vL16}, v[{M(KB[7])}:{M(KB[7])+3}], s[{sKM}:{sKM+1}] offset:1024 sc1")
            kmf(KB[0],1); mr[4]()
            kmf(KB[1],0); mr[5]()
            mf = []
            for kb in KB[2:]: mf += [lambda kb=kb: qmf(kb,0), lambda kb=kb: qmf(kb,1)]
            weave(mf, rf, 1, True)
            P.stamp("q")
            late = []
            qpost = [I(f"v_add_f32 v{QA}, v{QA}, v{QA+2}"), I(f"v_add_f32 v{QA+1}, v{QA+1}, v{QA+3}"),
                     I(f"v_add_f32 v{QA+4}, v{QA+4}, v{QA+6}"), I(f"v_add_f32 v{QA+5}, v{QA+5}, v{QA+7}"),
                     I(f"v_cvt_pk_bf16_f32 v{QA}, v{QA}, v{QA+4}"), I(f"v_cvt_pk_bf16_f32 v{QA+1}, v{QA+1}, v{QA+5}"),
                     lambda: C.lds(f"ds_write2_b32 v{vQKW}, v{QA}, v{QA+1} offset0:0 offset1:{RS//4}")]
            kmf(KB[1],1); kmf(KB[2],0)
            weave([lambda: kmf(KB[2],1), lambda: kmf(KB[3],0), lambda: kmf(KB[3],1), lambda: kmf(KB[4],0)], qpost, 2, True)
            kmf(KB[4],1); kmf(KB[5],0)
            C.all_l()
            a("s_barrier")
            trace(a, 1); P.stamp("barQ")
            krest = [lambda: kmf(KB[5],1), lambda: kmf(KB[6],0), lambda: kmf(KB[6],1), lambda: kmf(KB[7],0), lambda: kmf(KB[7],1)]
            kpost = [I(f"v_add_f32 v{KA}, v{KA}, v{KA+2}"), I(f"v_add_f32 v{KA+1}, v{KA+1}, v{KA+3}"),
                     I(f"v_add_f32 v{KA+4}, v{KA+4}, v{KA+6}"), I(f"v_add_f32 v{KA+5}, v{KA+5}, v{KA+7}"),
                     I(f"v_cvt_pk_bf16_f32 v{KA}, v{KA}, v{KA+4}"), I(f"v_cvt_pk_bf16_f32 v{KA+1}, v{KA+1}, v{KA+5}"),
                     lambda: C.lds(f"ds_write_b32 v{vQKW}, v{KA} offset:{L_K-L_Q}"),
                     lambda: C.lds(f"ds_write_b32 v{vQKW}, v{KA+1} offset:{L_K-L_Q+RS}", "kw")]
            ZQ = R2
            if w == 0:
                QBr=R0
                S0=QA; S1=QA+4; SM=KA
                rd = []
                for ks in range(4):
                    rd += [lambda ks=ks: C.lds(f"ds_read_b128 v[{QBr+4*ks}:{QBr+4*ks+3}], v{vQR} offset:{64*ks}", ("q",ks)),
                           lambda ks=ks: C.lds(f"ds_read_b128 v[{R1+4*ks}:{R1+4*ks+3}], v{vKT} offset:{ks*1024}", ("kt",0,ks))]
                rd += [(lambda ks=ks: C.lds(f"ds_read_b128 v[{R2+4*ks}:{R2+4*ks+3}], v{vKT} offset:{4096+ks*1024}", ("kt",1,ks))) for ks in range(4)]
                rd[0](); rd[1](); rd = rd[2:]
                weave(krest, rd, 2, True)
                def smf(kt, ks):
                    Sx = (S0, S1)[kt]; R = (R1, R2)[kt]
                    if ks in (0, 2): C.wait_l(("kt",kt,ks+1))
                    c = "0" if ks == 0 else f"v[{Sx}:{Sx+3}]"
                    a(f"v_mfma_f32_16x16x32_bf16 v[{Sx}:{Sx+3}], v[{R+4*ks}:{R+4*ks+3}], v[{QBr+4*ks}:{QBr+4*ks+3}], {c}")
                smf(0,0); smf(0,1)
                weave([lambda: smf(0,2), lambda: smf(0,3), lambda: smf(1,0), lambda: smf(1,1)], kpost, 2, True)
                smf(1,2); smf(1,3)
                C.wait_l("kw")
                a("s_barrier")
                trace(a, 5); P.stamp("barK")
                for ks in range(4):
                    C.lds(f"ds_read_b128 v[{R1+4*ks}:{R1+4*ks+3}], v{vKR} offset:{64*ks}", ("km",ks))
                if par == 1:
                    a(f"s_cmp_eq_u32 s{sSTEP}, 63")
                    a(f"s_cbranch_scc1 {lend}")
                mx=T; tt=T+1; nm=T+2; ls=T+4
                Pr=KA+4; PX=VA
                a(f"v_max3_f32 v{mx}, v{S0}, v{S0+1}, v{S0+2}")
                a(f"v_max3_f32 v{mx}, v{mx}, v{S0+3}, v{S1}")
                a(f"v_max3_f32 v{mx}, v{mx}, v{S1+1}, v{S1+2}")
                a(f"v_max_f32 v{mx}, v{mx}, v{S1+3}")
                a(f"v_mov_b32 v{tt}, v{mx}")
                def mmf(ks):
                    if ks in (0, 2): C.wait_l(("km",ks+1))
                    c = "0" if ks == 0 else f"v[{SM}:{SM+3}]"
                    a(f"v_mfma_f32_16x16x32_bf16 v[{SM}:{SM+3}], v[{R1+4*ks}:{R1+4*ks+3}], v[{QBr+4*ks}:{QBr+4*ks+3}], {c}")
                mmf(0)
                a(f"v_permlane32_swap_b32 v{tt}, v{mx}")
                mmf(1)
                a(f"v_max_f32 v{mx}, v{tt}, v{mx}")
                a(f"v_mov_b32 v{tt}, v{mx}")
                mmf(2)
                a(f"v_permlane16_swap_b32 v{tt}, v{mx}")
                mmf(3)
                a(f"v_max_f32 v{mx}, v{tt}, v{mx}")
                a(f"v_mul_f32 v{nm}, s{sC1}, v{mx}")
                tok = [S0+i for i in range(8)]
                for x in (S0, S0+2, S1, S1+2, SM):
                    a(f"v_pk_fma_f32 v[{x}:{x+1}], v[{x}:{x+1}], s[{sC1}:{sC1+1}], v[{nm}:{nm+1}] op_sel_hi:[1,1,0] neg_lo:[0,0,1] neg_hi:[0,0,1]")
                a(f"v_max_f32 v{tt}, v{SM}, v{SM+1}")
                a(f"v_cmp_lt_f32 vcc, 0x42800000, v{tt}")
                for r in tok: a(f"v_exp_f32 v{r}, v{r}")
                lfb = a.newlabel("c_fb"); lfr = a.newlabel("c_fr")
                a(f"s_cbranch_vccnz {lfb}")
                a.label(lfr)
                fbk.append((lfb, lfr))
                a(f"v_exp_f32 v{SM}, v{SM}")
                a(f"v_exp_f32 v{SM+1}, v{SM+1}")
                a(f"v_pk_add_f32 v[{ls}:{ls+1}], v[{S0}:{S0+1}], v[{S0+2}:{S0+3}]")
                a(f"v_pk_add_f32 v[{nm}:{nm+1}], v[{S1}:{S1+1}], v[{S1+2}:{S1+3}]")
                a(f"v_pk_add_f32 v[{ls}:{ls+1}], v[{ls}:{ls+1}], v[{nm}:{nm+1}]")
                a(f"v_pk_add_f32 v[{ls}:{ls+1}], v[{ls}:{ls+1}], v[{SM}:{SM+1}]")
                a(f"v_add_f32 v{ls}, v{ls}, v{ls+1}")
                a(f"v_mov_b32 v{tt}, v{ls}")
                a(f"v_mov_b64 v[{ZQ}:{ZQ+1}], 0")
                a(f"v_permlane32_swap_b32 v{tt}, v{ls}")
                a(f"v_add_f32 v{ls}, v{tt}, v{ls}")
                a(f"v_mov_b32 v{tt}, v{ls}")
                a(f"v_mov_b64 v[{ZQ+2}:{ZQ+3}], 0")
                a(f"v_permlane16_swap_b32 v{tt}, v{ls}")
                a(f"v_add_f32 v{ls}, v{tt}, v{ls}")
                a(f"v_rcp_f32 v{ls}, v{ls}")
                for x in (S0, S0+2, S1, S1+2, SM):
                    a(f"v_pk_mul_f32 v[{x}:{x+1}], v[{x}:{x+1}], v[{ls}:{ls+1}] op_sel_hi:[1,0]")
                for i in range(4): a(f"v_cvt_pk_bf16_f32 v{Pr+i}, v{tok[2*i]}, v{tok[2*i+1]}")
                C.lds(f"ds_write_b128 v{vKT}, v[{Pr}:{Pr+3}] offset:{L_MS-L_KT}")
                a(f"v_cvt_pk_bf16_f32 v{PX}, v{SM}, v{SM+1}")
                C.lds(f"ds_write_b64 v{vKT}, v[{PX}:{PX+1}] offset:{L_MS-L_KT+1024}")
                trace(a, 7)
                C.all_l()
                a("s_barrier")
                a(f"v_mfma_f32_32x32x16_bf16 v[0:15], v[{ZQ}:{ZQ+3}], v[{ZQ}:{ZQ+3}], 0")
                a(f"v_mfma_f32_32x32x16_bf16 v[16:31], v[{ZQ}:{ZQ+3}], v[{ZQ}:{ZQ+3}], 0")
                a(f"v_add_u32 v{T}, 32768, v{vPST}"); a(f"s_add_u32 s{sT+6}, s{sSTEP}, 1"); a(f"v_mov_b32 v{T+1}, 0"); a(f"v_mov_b32 v{T+2}, s{sT+6}")
                trace(a, 6)
                a("s_barrier")
            else:
                vfr = [(lambda ti=ti, tau=tau: C.lds(f"ds_read_b128 v[{VFR[ti]}:{VFR[ti]+3}], v{vKT} offset:{L_VT-L_KT+tau*1024}", "vf")) for ti, tau in enumerate(TL)]
                weave(krest, vfr + late, 1, True)
                vq = list(vops)
                def vstep(n):
                    kb, ti = vops[n]
                    C.wait_l(("wv", n))
                    sl_ = SLOT[n % NS]
                    a(f"v_smfmac_f32_16x16x64_bf16 v[{VACC[ti]}:{VACC[ti]+3}], v[{M(kb)}:{M(kb)+3}], v[{sl_}:{sl_+7}], v{vIDX}")
                    if n + NS < len(vops): wvr(n + NS)
                vstep(0); vstep(1)
                for f in kpost: f()
                vstep(2)
                C.wait_l("kw")
                a("s_barrier")
                trace(a, 5); P.stamp("barK")
                dq = dmal() if (role == "DMA" and 'nodma' not in WI) else []
                for n in range(3, len(vops)):
                    vstep(n)
                    if dq: dq.pop(0)()
                a(f"v_mov_b64 v[{R1}:{R1+1}], 0"); a(f"v_mov_b64 v[{R1+2}:{R1+3}], 0")
                for ti, tau in enumerate(TL):
                    x = VACC[ti]
                    a(f"v_pk_add_f32 v[{x}:{x+1}], v[{x}:{x+1}], v[{x+2}:{x+3}]")
                    a(f"v_cvt_pk_bf16_f32 v{x}, v{x}, v{x+1}")
                    a(f"v_mov_b32 v{x+1}, 0")
                a(f"v_mfma_f32_32x32x16_bf16 v[0:15], v[{R1}:{R1+3}], v[{R1}:{R1+3}], 0")
                a(f"v_mfma_f32_32x32x16_bf16 v[16:31], v[{R1}:{R1+3}], v[{R1}:{R1+3}], 0")
                for ti, tau in enumerate(TL):
                    a(f"v_mov_b32 v{VH[ti]}, v{VACC[ti]}")
                if par == 1:
                    a(f"s_cmp_eq_u32 s{sSTEP}, 63")
                    a(f"s_cbranch_scc1 {lend}")
                trace(a, 7)
                C.all_l()
                a("s_barrier")
                Pr=KA+4; PX=T+4
                C.lds(f"ds_read_b128 v[{Pr}:{Pr+3}], v{vKT} offset:{L_MS-L_KT}", "p0")
                C.lds(f"ds_read_b64 v[{PX}:{PX+1}], v{vKT} offset:{L_MS-L_KT+1024}", "p1")
                OO = [R0, R0+4, R0+8]
                a(f"v_add_u32 v{T}, 32768, v{vPST}"); a(f"s_add_u32 s{sT+6}, s{sSTEP}, 1"); a(f"v_mov_b32 v{T+1}, 0"); a(f"v_mov_b32 v{T+2}, s{sT+6}")
                C.wait_l("p0")
                for ti in range(len(TL)):
                    a(f"v_mfma_f32_16x16x32_bf16 v[{OO[ti]}:{OO[ti]+3}], v[{VFR[ti]}:{VFR[ti]+3}], v[{Pr}:{Pr+3}], 0")
                C.wait_l("p1")
                for ti in range(len(TL)):
                    a(f"v_mfma_f32_16x16x16_bf16 v[{OO[ti]}:{OO[ti]+3}], v[{VACC[ti]}:{VACC[ti]+1}], v[{PX}:{PX+1}], v[{OO[ti]}:{OO[ti]+3}]")
                for ti, tau in enumerate(TL):
                    o = OO[ti]
                    a(f"v_cvt_pk_bf16_f32 v{o}, v{o}, v{o+1}")
                    a(f"v_cvt_pk_bf16_f32 v{o+1}, v{o+2}, v{o+3}")
                    C.lds(f"ds_write_b64 v{vOW}, v[{o}:{o+1}] offset:{32*tau}")
                trace(a, 6)
                C.all_l()
                a("s_barrier")
                ZQ = R1
            trace(a, 2); P.stamp("barO")
            OA=KA
            for kb2 in range(2):
                C.lds(f"ds_read_b128 v[{OA+4*kb2}:{OA+4*kb2+3}], v{vOR} offset:{128*kb2}", ("oa",kb2))
            pf = [(lambda n=n: wvr(n)) for n in range(NS)] if w else []
            C.wait_l(("oa",0))
            def omf(i, kb2):
                if kb2: C.wait_l(("oa",1))
                a(f"v_smfmac_f32_16x16x64_bf16 v[{4*i}:{4*i+3}], v[{OA+4*kb2}:{OA+4*kb2+3}], v[{WO(i,kb2)}:{WO(i,kb2)+7}], v{vIDX}")
            PK = QA
            def fin(i):
                return [I(f"v_add_f32 v{4*i}, v{4*i}, v{4*i+2}"), I(f"v_add_f32 v{4*i+1}, v{4*i+1}, v{4*i+3}"),
                        I(f"v_cvt_pk_bf16_f32 v{PK+i}, v{4*i}, v{4*i+1}")]
            sl = sPB + 2*par
            order = [(0,0),(1,0),(0,1),(1,1),(2,0),(3,0),(2,1),(3,1),(4,0),(5,0),(4,1),(5,1),(6,0),(7,0),(6,1),(7,1)]
            fq = []
            for n, (i, kb2) in enumerate(order):
                omf(i, kb2)
                if n in (5, 9, 13):
                    fq += fin((n-5)//2) + fin((n-5)//2+1)
                    if n == 9: fq += [I(f"global_store_dwordx4 v{vPST}, v[{PK}:{PK+3}], s[{sl}:{sl+1}] {sc}"),
                                      I(f"global_store_dword v{T+1}, v{T+2}, s[{sFLW}:{sFLW+1}] {sc}")]
                for _ in range(2 if n >= 5 else 1):
                    if fq: fq.pop(0)()
            for f in fq: f()
            a(f"v_pk_add_f32 v[24:25], v[24:25], v[26:27]")
            a(f"v_pk_add_f32 v[28:29], v[28:29], v[30:31]")
            a(f"v_cvt_pk_bf16_f32 v{PK+6}, v24, v25")
            a(f"v_cvt_pk_bf16_f32 v{PK+7}, v28, v29")
            a(f"global_store_dwordx4 v{T}, v[{PK+4}:{PK+7}], s[{sl}:{sl+1}] {sc}")
            a(f"global_store_dword v{T+1}, v{T+2}, s[{sFLW}:{sFLW+1}] offset:128 {sc}")
            trace(a, 3); P.stamp("outp")
            if role == "R":
                for f in pf: f()
            if role == "R":
                RB=0; BS=VA; D=KA
                a(f"v_lshrrev_b32 v{T+4}, 2, v{vL16}")
                a(f"v_and_b32 v{T+4}, 127, v{T+4}")
                a(f"global_load_dword v{T+5}, v{T+4}, s[{sFLR}:{sFLR+1}] sc1")
                for d in range(4):
                    a(f"v_cndmask_b32 v{BS+d}, 0, v{vSELX}, s[{sSEL+2*d}:{sSEL+2*d+1}]")
                for i in range(1, 4): a(f"v_add_u32 v{T+i}, {8192*i}, v{vPRD}")
                for r in range(QA, QA+8, 2): a(f"v_mov_b64 v[{r}:{r+1}], 0")
                a(f"v_mov_b64 v[{VA+4}:{VA+5}], 0"); a(f"v_mov_b64 v[{VA+6}:{VA+7}], 0")
                rotate()
                sadd64(a, sVM, sVM, 65536)
                lp = a.newlabel("c_pollp"); lslow = a.newlabel("c_slow"); lok = a.newlabel("c_ok")
                if 'nortt' in WI:
                    trace(a, 1)
                    a("s_waitcnt vmcnt(0)")
                    trace(a, 5)
                if 'nohop' in WI: trace(a, 5)
                ll = a.newlabel("c_light"); lgo = a.newlabel("c_go")
                LT = T+5
                a.label(ll)
                a("s_waitcnt vmcnt(0)")
                a(f"v_cmp_eq_u32 vcc, s{sT+6}, v{LT}")
                a(f"global_load_dword v{LT}, v{T+4}, s[{sFLR}:{sFLR+1}] sc1")
                a(f"s_bcnt1_i32_b32 s{sT}, vcc_lo")
                a(f"s_cmp_lt_u32 s{sT}, {SPEC_T}")
                a(f"s_cbranch_scc1 {retry_stub(ll)}")
                if 'nohop' in WI: trace(a, 6)
                a.label(lp)
                for i in range(8):
                    base = vPRD if i < 2 else T + (i >> 1)
                    sb = sl if (i & 1) == 0 else sPBr + 2*par
                    a(f"global_load_dwordx4 v[{RB+4*i}:{RB+4*i+3}], v{base}, s[{sb}:{sb+1}] sc1")
                a("s_waitcnt vmcnt(8)")
                a(f"v_cmp_ne_u32 vcc, s{sT+6}, v{LT}")
                lre = a.newlabel("c_re")
                a(f"s_cbranch_vccnz {lre}")
                redo.append((lre, lp, T+4, LT))
                if 'nohop' in WI: trace(a, 7)
                for i in range(8):
                    a(f"s_waitcnt vmcnt({7-i})")
                    c = "0" if i == 0 else f"v[{D}:{D+3}]"
                    a(f"v_mfma_f32_16x16x32_bf16 v[{D}:{D+3}], v[{RB+4*i}:{RB+4*i+3}], v[{BS}:{BS+3}], {c}")
                a(f"s_mov_b64 exec, s[{sPUBM}:{sPUBM+1}]")
                a(f"v_pk_add_f32 v[{D+4}:{D+5}], v[{D}:{D+1}], v[{D+2}:{D+3}]")
                a(f"v_cmp_u_f32 vcc, v{D+4}, v{D+5}")
                a(f"v_cvt_pk_bf16_f32 v{D}, v{D}, v{D+1}")
                a(f"v_cvt_pk_bf16_f32 v{D+1}, v{D+2}, v{D+3}")
                a(f"v_min_u32 v{D}, -2, v{D}")
                a(f"v_min_u32 v{D+1}, -2, v{D+1}")
                a(f"s_cbranch_vccnz {lslow}")
                a.label(lok)
                a(f"global_store_dwordx2 v{vPUB}, v[{D}:{D+1}], s[{sMB}:{sMB+1}] {sc}")
                trace(a, 4)
                a("s_barrier")
                a(f"v_mov_b64 v[{D+2}:{D+3}], -1")
                a(f"global_store_dwordx2 v{vPUB}, v[{D+2}:{D+3}], s[{sMB+4}:{sMB+5}] {sc}")
                if dump:
                    sadd64(a, sDUMP, sDUMP, 8192)
                    a(f"global_store_dwordx2 v{vPUB}, v[{D}:{D+1}], s[{sDUMP}:{sDUMP+1}]")
                a("s_mov_b64 exec, -1")
                trace_flush(a)
                if PSL: a(f"s_sleep {PSL}")
                mloads()
                for r in range(KA, KA+12, 2): a(f"v_mov_b64 v[{r}:{r+1}], 0")
                a(f"s_add_u32 s{sSTEP}, s{sSTEP}, 1")
                slow.append((lslow, lp, lok))
            else:
                if role == "PUB": sadd64(a, sKM, sKM, 131072)
                if role == "DMA":
                    sadd64(a, sKF, sKF, 262144)
                    a(f"v_lshlrev_b32 v{T+5}, 3, v{vL16}")
                    if par == 1 and kvflags:
                        lok2 = a.newlabel("c_fok")
                        a(f"v_cmp_le_u32 vcc, {KV_TARGET}, v{vFLG}")
                        a(f"s_cbranch_vccnz {lok2}")
                        wait_flag_spin(sFOFF)
                        a.label(lok2)
                        a(f"s_add_u32 s{sFOFF}, s{sFOFF}, 128")
                        a(f"s_min_u32 s{sFOFF}, s{sFOFF}, {F_KVRDY+31*128}")
            if role != "R":
                sadd64(a, sVM, sVM, 65536)
                rotate()
                trace_flush(a)
                a(f"s_add_u32 s{sSTEP}, s{sSTEP}, 1")
                a(f"v_mfma_f32_32x32x16_bf16 v[{QA}:{QA+15}], v[{ZQ}:{ZQ+3}], v[{ZQ}:{ZQ+3}], 0")
                for x in VACC:
                    a(f"v_mfma_f32_16x16x32_bf16 v[{x}:{x+3}], v[{ZQ}:{ZQ+3}], v[{ZQ}:{ZQ+3}], 0")
                for f in pf: f()
                if role == "PUB":
                    a(f"ds_read_b128 v[{M(KB[6])}:{M(KB[6])+3}], v{vFLG}")
                    a(f"ds_read_b128 v[{M(KB[7])}:{M(KB[7])+3}], v{vFLG} offset:{4*RS}")
                    a("s_waitcnt lgkmcnt(0)")
                a("s_barrier")
                if PSL: a(f"s_sleep {PSL}")
                mloads()
            a.flush_hazards()
        a(f"s_branch {lchk0}")
    for (l, lc, ml) in ptail:
        a.label(l)
        ml()
        a(f"s_branch {lc}")
    for (l, lback) in tails:
        a.label(l)
        a(f"s_add_u32 s{sSPIN}, s{sSPIN}, 1")
        a(f"s_cmp_lt_u32 s{sSPIN}, 0x80000")
        a(f"s_cbranch_scc1 {lback}")
        a("s_branch L_fail")
    for (l, lp, va, lt) in redo:
        a.label(l); a.hist=[]
        a(f"global_load_dword v{lt}, v{va}, s[{sFLR}:{sFLR+1}] sc1")
        a(f"s_add_u32 s{sSPIN}, s{sSPIN}, 1")
        a(f"s_cmp_lt_u32 s{sSPIN}, 0x80000")
        a(f"s_cbranch_scc1 {lp}")
        a("s_branch L_fail")
    for (l, lp, lok) in slow:
        a.label(l); a.hist=[]
        a("s_mov_b64 exec, -1")
        a(f"s_add_u32 s{sSPIN}, s{sSPIN}, 1")
        a(f"s_cmp_gt_u32 s{sSPIN}, 0x80000")
        a("s_cbranch_scc1 L_fail")
        a(f"s_and_b32 s{sT}, s{sSPIN}, 31")
        a(f"s_cmp_lg_u32 s{sT}, 0")
        a(f"s_cbranch_scc1 {lp}")
        a(f"s_mov_b32 s{sT}, {SENT}")
        a(f"s_mov_b64 s[{sT+2}:{sT+3}], 0")
        for r in range(32):
            a(f"v_cmp_eq_u32 vcc, s{sT}, v{r}")
            a(f"s_or_b64 s[{sT+2}:{sT+3}], s[{sT+2}:{sT+3}], vcc")
        a(f"s_cmp_lg_u64 s[{sT+2}:{sT+3}], 0")
        a(f"s_cbranch_scc1 {lp}")
        a(f"s_mov_b64 exec, s[{sPUBM}:{sPUBM+1}]")
        a(f"s_branch {lok}")
    for (l, lr) in fbk:
        a.label(l); a.hist=[]
        a("s_nop 7")
        SM=KA; S0=QA; Pr=KA+4; tt=T+1; d=T
        a(f"v_max_f32 v{d}, v{SM}, v{SM+1}")
        xl(a, d, tt, "v_max_f32")
        a(f"v_max_f32 v{d}, 0, v{d}")
        a(f"v_sub_f32 v{SM}, v{SM}, v{d}")
        a(f"v_sub_f32 v{SM+1}, v{SM+1}, v{d}")
        a(f"v_sub_f32 v{d}, 0, v{d}")
        a(f"v_exp_f32 v{d}, v{d}")
        for r in range(8): a(f"v_mul_f32 v{S0+r}, v{S0+r}, v{d}")
        a(f"s_branch {lr}")
    a.label(lend)
    a.flush_hazards()
    a(f"s_memtime s[{sT0+2}:{sT0+3}]")
    l0 = a.newlabel("c_fin")
    sadd64(a, sVM, sVM, 65536)
    for w in range(1, 4):
        lx = a.newlabel("c_fv")
        a(f"s_cmp_lg_u32 s{S_WAVE}, {w}")
        a(f"s_cbranch_scc1 {lx}")
        if w == 1:
            sadd64(a, sKM, sKM, 131072)
            a(f"ds_read_b128 v[0:3], v{vFLG}")
            a(f"ds_read_b128 v[4:7], v{vFLG} offset:{4*RS}")
            a("s_waitcnt lgkmcnt(0)")
            a(f"global_store_dwordx4 v{vL16}, v[0:3], s[{sKM}:{sKM+1}] sc1")
            a(f"global_store_dwordx4 v{vL16}, v[4:7], s[{sKM}:{sKM+1}] offset:1024 sc1")
        for ti, tau in enumerate([[], [0,1,2], [3,4,5], [6,7]][w]):
            a(f"global_store_dword v{vVXW}, v{[vQR, vKR, vVOFF][ti]}, s[{sVM}:{sVM+1}] offset:{256*tau} sc1")
        a.label(lx)
    a("s_waitcnt vmcnt(0) lgkmcnt(0)")
    a("s_barrier")
    a(f"s_cmp_lg_u32 s{S_WAVE}, 1")
    a(f"s_cbranch_scc1 {l0}")
    a(f"v_mov_b32 v{T}, s{sPRG}")
    a(f"v_mov_b32 v{T+2}, 64")
    a(f"global_store_dword v{T}, v{T+2}, s[{S_WS}:{S_WS+1}] sc1")
    a.label(l0)
    a("s_waitcnt lgkmcnt(0) vmcnt(0)")
    return P
```

```python
from asmlib import *
from layout import *
from bulk import *
import os
PROG_SLEEP=int(os.environ.get('PROG_SLEEP','2'))
SCALE = 128 ** -0.5
sSEG=40; sSEQ=41; sEP=42; sEPr=44; sQ=46; sK=48; sV=50; sKMb=52; sVMb=54; sMASK=56
sMASK=80; sFLG=96; sFRE=97; sL2E=98; sSC=99
L_OX = 0
L_RED = 9216
L_WD = 16384
L_EX = 16384; XRS = 2064
ORS = 272
vL=1; vG=2; vC=3; vL16=4; vT=5
vCON=16
vOW=26; vOR=27; vEPW=28; vEPR=29; vCOL=30; vVMO=31; vKMO=198; SEL=192; vXR=196; vXG=197
QB=32; KFR=48; KMR=80; VFR=96; VMR=112
SS=120
PP=132
OO=140
OB=160
DD=32
WDF=200
WOF = lambda ti, ks: (ti*4+ks)*4

def xl(a, x, t, op):
    a(f"v_mov_b32 v{t}, v{x}")
    a(f"v_permlane32_swap_b32 v{t}, v{x}")
    a(f"{op} v{x}, v{t}, v{x}")
    a(f"v_mov_b32 v{t}, v{x}")
    a(f"v_permlane16_swap_b32 v{t}, v{x}")
    a(f"{op} v{x}, v{t}, v{x}")

def wg_sum(a, x, t, slot):
    row16_sum(a, x, None)
    xl(a, x, t, "v_add_f32")
    a(f"s_lshl_b32 s{sT}, s{S_WAVE}, 2")
    a(f"s_add_u32 s{sT}, s{sT}, {L_RED+slot*16}")
    a(f"v_mov_b32 v{t}, s{sT}")
    a(f"ds_write_b32 v{t}, v{x}")
    a(f"v_mov_b32 v{t}, {L_RED+slot*16}")
    a("s_waitcnt lgkmcnt(0)")
    a("s_barrier")
    a(f"ds_read_b128 v[{t+2}:{t+5}], v{t}")
    a("s_waitcnt lgkmcnt(0)")
    a(f"v_add_f32 v{t+2}, v{t+2}, v{t+3}")
    a(f"v_add_f32 v{t+4}, v{t+4}, v{t+5}")
    a(f"v_add_f32 v{x}, v{t+2}, v{t+4}")

def ef_setup(a):
    a("s_barrier")
    for cq in range(4):
        a(f"s_lshl_b32 s{sT+6}, s{S_VR}, 17")
        a(f"s_add_u32 s{sT+6}, s{sT+6}, {cq*256}")
        a(f"s_add_u32 s{sT+6}, s{S_WO}, s{sT+6}")
        a(f"s_addc_u32 s{sT+7}, s{S_WO+1}, 0")
        stage_rows(a, sT+6, 1024, 128, cq*32768, 2)
    cp = tr_base(a, 10, 2)
    a("v_lshrrev_b32 v12, 1, v2")
    a("v_xor_b32 v11, v11, v12")
    a("v_and_b32 v12, 1, v2")
    a("v_lshl_add_u32 v10, v12, 4, v10")
    a(f"s_lshl_b32 s{sT}, s{S_WAVE}, 15")
    a(f"v_add_u32 v10, s{sT}, v10")
    a("s_waitcnt vmcnt(0)")
    a("s_barrier")
    for p in range(4):
        a(f"v_xor_b32 v12, {2*p}, v11")
        a("v_lshl_add_u32 v12, v12, 5, v10")
        for tau in range(2):
            ti = 2*p+tau
            for ks in range(4):
                for m in range(2):
                    a(f"ds_read_b64_tr_b16 a[{WOF(ti,ks)+2*m}:{WOF(ti,ks)+2*m+1}], v12 offset:{ks*8192+m*1024+8*tau}")
    a("s_waitcnt lgkmcnt(0)")
    a("s_barrier")
    lane_ids(a, vL, vG, vC)
    a(f"v_lshlrev_b32 v{vL16}, 4, v{vL}")
    a(f"v_and_b32 v{vT}, 1, v{vG}")
    a(f"v_lshlrev_b32 v{vT}, 2, v{vT}")
    a(f"v_lshl_add_u32 v{vT}, v{vC}, 3, v{vT}")
    a(f"v_lshrrev_b32 v{vT+1}, 1, v{vG}")
    a(f"v_lshl_add_u32 v{vT}, v{vT+1}, 1, v{vT}")
    a(f"s_lshl_b32 s{sT}, s{S_WAVE}, 7")
    a(f"v_add_u32 v{vCOL}, s{sT}, v{vT}")
    a(f"v_and_b32 v{vT}, 1, v{vC}")
    a(f"v_lshlrev_b32 v{vT}, 4, v{vT}")
    a(f"v_mov_b32 v{vT+1}, 0x3F80")
    a(f"v_lshlrev_b32 v{vT}, v{vT}, v{vT+1}")
    a(f"v_lshrrev_b32 v{vT+1}, 1, v{vC}")
    for d in range(4):
        a(f"v_cmp_eq_u32 vcc, {d}, v{vT+1}")
        a(f"v_cndmask_b32 v{SEL+d}, 0, v{vT}, vcc")
    poll_counter(a, D_MODRDY+4, 32, vt=vT)
    a(f"v_lshlrev_b32 v{vT}, 2, v{vCOL}")
    a(f"v_add_u32 v{vT}, {WS_MOD+4096}, v{vT}")
    a(f"v_add_u32 v{vT+1}, 4096, v{vT}")
    a(f"global_load_dwordx2 v[{vCON}:{vCON+1}], v{vT}, s[{S_WS}:{S_WS+1}] sc1")
    a(f"global_load_dwordx2 v[{vCON+2}:{vCON+3}], v{vT}, s[{S_WS}:{S_WS+1}] offset:2048 sc1")
    a(f"global_load_dwordx2 v[{vCON+4}:{vCON+5}], v{vT+1}, s[{S_WS}:{S_WS+1}] sc1")
    a(f"global_load_dwordx2 v[{vCON+6}:{vCON+7}], v{vT+1}, s[{S_WS}:{S_WS+1}] offset:2048 sc1")
    a(f"v_lshlrev_b32 v{vCOL}, 1, v{vCOL}")
    a(f"global_load_dword v{vCON+9}, v{vCOL}, s[{S_WR}:{S_WR+1}]")
    a(f"s_and_b32 s{sT}, s{S_WAVE}, 1")
    a(f"s_lshr_b32 s{sT+1}, s{S_WAVE}, 1")
    a(f"s_mul_i32 s{sT+2}, s{sT}, {16*ORS}")
    a(f"s_lshl_b32 s{sT+3}, s{sT+1}, 7")
    a(f"s_add_u32 s{sT+2}, s{sT+2}, s{sT+3}")
    a(f"v_mul_u32_u24 v{vT}, {ORS}, v{vC}")
    a(f"v_lshl_add_u32 v{vOW}, v{vG}, 3, v{vT}")
    a(f"v_add_u32 v{vOW}, s{sT+2}, v{vOW}")
    a(f"v_lshl_add_u32 v{vOR}, v{vG}, 4, v{vT}")
    a(f"v_mul_u32_u24 v{vEPW}, {XRS}, v{vC}")
    a(f"v_lshl_add_u32 v{vEPW}, v{vG}, 4, v{vEPW}")
    a(f"s_lshl_b32 s{sT+3}, s{S_WAVE}, 8")
    a(f"s_add_u32 s{sT+2}, s{sT+3}, {L_EX}")
    a(f"v_add_u32 v{vEPW}, s{sT+2}, v{vEPW}")
    a(f"s_mul_i32 s{sT+2}, s{S_WAVE}, {8*XRS}")
    a(f"s_add_u32 s{sT+2}, s{sT+2}, {L_EX}")
    a(f"v_add_u32 v{vXR}, s{sT+2}, v{vL16}")
    a(f"s_lshl_b32 s{sT+2}, s{S_WAVE}, 19")
    a(f"s_lshl_b32 s{sT+4}, s{S_VR}, 11")
    a(f"s_add_u32 s{sT+2}, s{sT+2}, s{sT+4}")
    a(f"v_add_u32 v{vXG}, s{sT+2}, v{vL16}")
    a(f"v_lshlrev_b32 v{vT}, 10, v{vG}")
    a(f"v_lshl_add_u32 v{vT}, v{vC}, 4, v{vT}")
    a(f"s_lshl_b32 s{sT+2}, s{S_VR}, 16")
    a(f"s_add_u32 s{sT+2}, s{sT+2}, s{sT+3}")
    a(f"v_add_u32 v{vEPR}, s{sT+2}, v{vT}")
    a(f"s_lshl_b32 s{sT+2}, s{sT+1}, 10")
    a(f"v_lshl_add_u32 v{vVMO}, v{vL}, 2, s{sT+2}")
    a(f"v_lshrrev_b32 v{vT}, 2, v{vC}")
    a(f"v_and_b32 v{vT+1}, 1, v{vC}")
    a(f"v_lshl_add_u32 v{vT}, v{vT}, 1, v{vT+1}")
    a(f"v_lshlrev_b32 v{vT}, 8, v{vT}")
    a(f"v_lshl_add_u32 v{vKMO}, v{vG}, 4, v{vT}")
    a(f"s_lshl_b32 s{sT+2}, s{sT}, 4")
    a(f"v_add_u32 v{vT}, s{sT+2}, v{vC}")
    a(f"v_lshlrev_b32 v{vT+1}, 2, v{vG}")
    a(f"v_sub_u32 v{vT}, v{vT}, v{vT+1}")
    for kt in range(2):
        for r in range(4):
            a(f"v_cmp_gt_i32 s[{sMASK+2*(4*kt+r)}:{sMASK+2*(4*kt+r)+1}], {16*kt+r}, v{vT}")
    a(f"s_lshl_b32 s{sT+2}, s{S_VX}, 21")
    a(f"s_add_u32 s{sT+2}, s{sT+2}, {WS_EP}")
    sadd64(a, sEP, S_WS, f"s{sT+2}")
    a(f"s_lshl_b32 s{sT+2}, s{S_VX}, 7")
    a(f"s_add_u32 s{sFLG}, s{sT+2}, {F_EPF}")
    a(f"s_add_u32 s{sFRE}, s{sT+2}, {F_EPFREE}")
    a(f"s_mov_b32 s{sL2E}, {f2u(LOG2E)}")
    a(f"s_mov_b32 s{sSC}, {f2u(SCALE)}")
    for i in range(4): a(f"v_mov_b32 v{VMR+2*i+1}, 0")
    a(f"v_mov_b32 v{PP+5}, 0")
    a("s_waitcnt vmcnt(0)")
    a(f"v_lshlrev_b32 v{vCON+8}, 16, v{vCON+9}")
    a(f"v_and_b32 v{vCON+9}, 0xffff0000, v{vCON+9}")

def poll_flags32(a, soff, sval):
    l = a.newlabel("pf")
    a(f"v_and_b32 v{vT}, 31, v{vL}")
    a(f"v_lshl_add_u32 v{vT}, v{vT}, 2, s{soff}")
    a(f"s_mov_b32 s{sT+9}, 0")
    a.label(l)
    a(f"global_load_dword v{vT+1}, v{vT}, s[{S_WS}:{S_WS+1}] sc1")
    a(f"s_add_u32 s{sT+9}, s{sT+9}, 1")
    a(f"s_cmp_gt_u32 s{sT+9}, 0x80000")
    a("s_cbranch_scc1 L_fail")
    a("s_waitcnt vmcnt(0)")
    a(f"v_cmp_gt_u32 vcc, s{sval}, v{vT+1}")
    a(f"s_cbranch_vccnz {l}")

def set_flag(a, soff, sval, sc):
    l = a.newlabel("sf")
    a(f"s_cmp_lg_u32 s{S_WAVE}, 0")
    a(f"s_cbranch_scc1 {l}")
    a(f"s_lshl_b32 s{sT}, s{S_VR}, 2")
    a(f"s_add_u32 s{sT}, s{sT}, s{soff}")
    a(f"v_mov_b32 v{vT}, s{sT}")
    a(f"v_mov_b32 v{vT+1}, s{sval}")
    a("s_mov_b64 exec, 1")
    a(f"global_store_dword v{vT}, v{vT+1}, s[{S_WS}:{S_WS+1}] {sc}")
    a("s_mov_b64 exec, -1")
    a.label(l)

def ef_loop(a, sc):
    a(f"s_sub_u32 s{sSEG}, s{S_VX}, 1")
    a(f"s_mov_b32 s{sSEQ}, 0")
    lloop = a.newlabel("efloop")
    a.flush_hazards()
    a.label(lloop)
    a(f"s_lshl_b32 s{sT+4}, s{sSEG}, 5")
    a(f"s_add_u32 s{sT+4}, s{sT+4}, s{S_VR}")
    a(f"s_lshl_b32 s{sT+5}, s{sT+4}, 10")
    a(f"v_add_u32 v{vT+9}, s{sT+5}, v{vCOL}")
    a(f"global_load_dword v{vT+10}, v{vT+9}, s[{S_X}:{S_X+1}]")
    a(f"s_lshl_b32 s{sT}, s{sSEG}, 18")
    a(f"s_lshl_b32 s{sT+1}, s{S_VR}, 13")
    a(f"s_add_u32 s{sT}, s{sT}, s{sT+1}")
    a(f"s_and_b32 s{sT+2}, s{S_WAVE}, 1")
    a(f"s_lshl_b32 s{sT+2}, s{sT+2}, 12")
    a(f"s_add_u32 s{sT+2}, s{sT+2}, s{sT}")
    a(f"s_add_u32 s{sT+2}, s{sT+2}, {WS_QF}")
    sadd64(a, sQ, S_WS, f"s{sT+2}")
    a(f"s_add_u32 s{sT+2}, s{sT}, {WS_KF}")
    sadd64(a, sK, S_WS, f"s{sT+2}")
    a(f"s_lshr_b32 s{sT+2}, s{S_WAVE}, 1")
    a(f"s_lshl_b32 s{sT+2}, s{sT+2}, 12")
    a(f"s_add_u32 s{sT+2}, s{sT+2}, s{sT}")
    a(f"s_add_u32 s{sT+2}, s{sT+2}, {WS_VF}")
    sadd64(a, sV, S_WS, f"s{sT+2}")
    a(f"s_lshr_b32 s{sT+2}, s{sT}, 1")
    a(f"s_add_u32 s{sT+2}, s{sT+2}, {WS_KM}")
    sadd64(a, sKMb, S_WS, f"s{sT+2}")
    a(f"s_lshr_b32 s{sT+2}, s{sT}, 2")
    a(f"s_add_u32 s{sT+2}, s{sT+2}, {WS_VM}")
    sadd64(a, sVMb, S_WS, f"s{sT+2}")
    a(f"s_lshr_b32 s{sT+2}, s{sSEG}, 1")
    a(f"s_lshl_b32 s{sT+2}, s{sT+2}, 7")
    a(f"s_add_u32 s{sT+2}, s{sT+2}, {F_KVRDY}")
    poll_counter(a, f"s{sT+2}", KV_TARGET, vt=vT, base=S_WS)
    a(f"s_add_u32 s{sT+2}, s{sT+2}, {F_QRDY - F_KVRDY}")
    poll_counter(a, f"s{sT+2}", 32, vt=vT, base=S_WS)
    a(f"v_add_u32 v{vT+2}, 4096, v{vL16}")
    for ks in range(4):
        a(f"global_load_dwordx4 v[{QB+4*ks}:{QB+4*ks+3}], v{vL16}, s[{sQ}:{sQ+1}] offset:{1024*ks} sc1")
    for kt in range(2):
        for ks in range(4):
            a(f"global_load_dwordx4 v[{KFR+16*kt+4*ks}:{KFR+16*kt+4*ks+3}], v{vL16 if kt==0 else vT+2}, s[{sK}:{sK+1}] offset:{1024*ks} sc1")
    for i in range(4):
        a(f"global_load_dwordx4 v[{VFR+4*i}:{VFR+4*i+3}], v{vL16}, s[{sV}:{sV+1}] offset:{1024*i} sc1")
    SM=SS; S0=SS+4; S1=SS+8
    regs = [S0+i for i in range(4)] + [S1+i for i in range(4)] + [SM, SM+1]
    def scl(x):
        rnd_pair(a, x)
        a(f"v_mul_f32 v{x}, s{sSC}, v{x}")
        a(f"v_mul_f32 v{x+1}, s{sSC}, v{x+1}")
        rnd_pair(a, x)
    poll_flags32(a, sFRE, sSEQ)
    for kt, Sx in ((0,S0),(1,S1)):
        for ks in range(4):
            c = "0" if ks==0 else f"v[{Sx}:{Sx+3}]"
            a(f"v_mfma_f32_16x16x32_bf16 v[{Sx}:{Sx+3}], v[{KFR+16*kt+4*ks}:{KFR+16*kt+4*ks+3}], v[{QB+4*ks}:{QB+4*ks+3}], {c}")
    for x in (S0, S0+2, S1, S1+2): scl(x)
    a(f"v_mov_b32 v{vT}, {f2u(-1e9)}")
    for i in range(8):
        a(f"v_cndmask_b32 v{regs[i]}, v{regs[i]}, v{vT}, s[{sMASK+2*i}:{sMASK+2*i+1}]")
    a(f"s_lshl_b32 s{sT+2}, s{S_VR}, 7")
    a(f"s_add_u32 s{sT+2}, s{sT+2}, {F_PROG}")
    a(f"s_add_u32 s{sT+3}, s{sSEG}, 1")
    a(f"s_cmp_ge_u32 s{sSEG}, 62")
    a(f"s_cselect_b32 s{sT+3}, 61, s{sT+3}")
    poll_counter(a, f"s{sT+2}", f"s{sT+3}", vt=vT, base=S_WS, sleep=PROG_SLEEP)
    lkm = a.newlabel("kmp")
    a(f"s_mov_b32 s{sT+9}, 0")
    a(f"s_mov_b32 s{sT+3}, {SENT}")
    a.label(lkm)
    for ks in range(4):
        a(f"global_load_dwordx4 v[{KMR+4*ks}:{KMR+4*ks+3}], v{vKMO}, s[{sKMb}:{sKMb+1}] offset:{64*ks} sc1")
    for i in range(4):
        a(f"global_load_dword v{VMR+2*i}, v{vVMO}, s[{sVMb}:{sVMb+1}] offset:{256*i} sc1")
    lok = a.newlabel("kmok")
    a(f"s_cmp_lt_u32 s{sSEG}, 62")
    a(f"s_cbranch_scc1 {lok}")
    a(f"s_add_u32 s{sT+9}, s{sT+9}, 1")
    a(f"s_cmp_gt_u32 s{sT+9}, 0x80000")
    a("s_cbranch_scc1 L_fail")
    a("s_waitcnt vmcnt(0)")
    chk = [KMR+i for i in range(16)] + [VMR+2*i for i in range(4)]
    for r in chk: a(f"v_xor_b32 v{OB+chk.index(r)}, s{sT+3}, v{r}")
    a(f"v_min3_u32 v{vT}, v{OB}, v{OB+1}, v{OB+2}")
    for i in range(3, 19, 2): a(f"v_min3_u32 v{vT}, v{vT}, v{OB+i}, v{OB+i+1}")
    a(f"v_min_u32 v{vT}, v{vT}, v{OB+19}")
    a(f"v_cmp_eq_u32 vcc, 0, v{vT}")
    a(f"s_cbranch_vccnz {lkm}")
    a.label(lok)
    if TS_ENABLED[0]:
        a(f"s_mul_i32 s76, s{sSEQ}, 3")
        a(f"s_add_u32 s76, s76, 16")
        a("s_waitcnt vmcnt(0)")
        TS(a, "s76")
        a("s_waitcnt vmcnt(0)")
    for ks in range(4):
        a(f"s_waitcnt vmcnt({7-ks})")
        c = "0" if ks==0 else f"v[{SM}:{SM+3}]"
        a(f"v_mfma_f32_16x16x32_bf16 v[{SM}:{SM+3}], v[{KMR+4*ks}:{KMR+4*ks+3}], v[{QB+4*ks}:{QB+4*ks+3}], {c}")
    scl(SM)
    mx=vT; tt=vT+1; ls=vT+2
    a(f"v_max3_f32 v{mx}, v{regs[0]}, v{regs[1]}, v{regs[2]}")
    for i in (3,5,7): a(f"v_max3_f32 v{mx}, v{mx}, v{regs[i]}, v{regs[i+1]}")
    a(f"v_max_f32 v{mx}, v{mx}, v{regs[9]}")
    xl(a, mx, tt, "v_max_f32")
    for r in regs:
        a(f"v_sub_f32 v{r}, v{r}, v{mx}")
        a(f"v_mul_f32 v{r}, s{sL2E}, v{r}")
        a(f"v_exp_f32 v{r}, v{r}")
    a(f"v_add_f32 v{ls}, v{regs[0]}, v{regs[1]}")
    for r in regs[2:]: a(f"v_add_f32 v{ls}, v{ls}, v{r}")
    xl(a, ls, tt, "v_add_f32")
    a(f"v_rcp_f32 v{ls}, v{ls}")
    for r in regs: a(f"v_mul_f32 v{r}, v{r}, v{ls}")
    for i in range(5):
        a(f"v_cvt_pk_bf16_f32 v{PP+i}, v{regs[2*i]}, v{regs[2*i+1]}")
    for i in range(4):
        a(f"v_mfma_f32_16x16x32_bf16 v[{OO+4*i}:{OO+4*i+3}], v[{VFR+4*i}:{VFR+4*i+3}], v[{PP}:{PP+3}], 0")
    a("s_waitcnt vmcnt(0)")
    for i in range(4):
        a(f"v_mfma_f32_16x16x16_bf16 v[{OO+4*i}:{OO+4*i+3}], v[{VMR+2*i}:{VMR+2*i+1}], v[{PP+4}:{PP+5}], v[{OO+4*i}:{OO+4*i+3}]")
    for i in range(4):
        a(f"v_cvt_pk_bf16_f32 v{OO+4*i}, v{OO+4*i}, v{OO+4*i+1}")
        a(f"v_cvt_pk_bf16_f32 v{OO+4*i+1}, v{OO+4*i+2}, v{OO+4*i+3}")
        a(f"ds_write_b64 v{vOW}, v[{OO+4*i}:{OO+4*i+1}] offset:{32*i}")
    a("s_waitcnt lgkmcnt(0)")
    a("s_barrier")
    for qt in range(2):
        for ks in range(4):
            a(f"ds_read_b128 v[{OB+16*qt+4*ks}:{OB+16*qt+4*ks+3}], v{vOR} offset:{qt*16*ORS+64*ks}")
    a("s_waitcnt lgkmcnt(0)")
    def epst(qt, p):
        d = DD + (qt*8+2*p)*4
        H_ = OO + 8*((qt*4+p) & 1)
        for i in range(4):
            a(f"v_cvt_pk_bf16_f32 v{H_+i}, v{d+2*i}, v{d+2*i+1}")
            a(f"v_lshlrev_b32 v{SS}, 16, v{H_+i}")
            a(f"v_and_b32 v{SS+1}, 0xffff0000, v{H_+i}")
            a(f"v_sub_f32 v{d+2*i}, v{d+2*i}, v{SS}")
            a(f"v_sub_f32 v{d+2*i+1}, v{d+2*i+1}, v{SS+1}")
            a(f"v_cvt_pk_bf16_f32 v{H_+4+i}, v{d+2*i}, v{d+2*i+1}")
        a(f"ds_write_b128 v{vEPW}, v[{H_}:{H_+3}] offset:{qt*16*XRS+64*p}")
        a(f"ds_write_b128 v{vEPW}, v[{H_+4}:{H_+7}] offset:{qt*16*XRS+1024+64*p}")
    for qt in range(2):
        for p in range(4):
            for tau in range(2):
                d = DD + (qt*8+2*p+tau)*4
                for ks in range(4):
                    c = "0" if ks==0 else f"v[{d}:{d+3}]"
                    a(f"v_mfma_f32_16x16x32_bf16 v[{d}:{d+3}], a[{WOF(2*p+tau,ks)}:{WOF(2*p+tau,ks)+3}], v[{OB+16*qt+4*ks}:{OB+16*qt+4*ks+3}], {c}")
            if p > 0 or qt > 0:
                pq, pp = (qt, p-1) if p > 0 else (qt-1, 3)
                epst(pq, pp)
    epst(1, 3)
    a("s_waitcnt lgkmcnt(0)")
    a("s_barrier")
    for r in range(8):
        for hl in range(2):
            a(f"ds_read_b128 v[{DD+8*r+4*hl}:{DD+8*r+4*hl+3}], v{vXR} offset:{r*XRS+1024*hl}")
    a(f"v_mov_b32 v{vT+2}, v{vXG}")
    for r in range(8):
        a(f"s_waitcnt lgkmcnt({min(15, 14-2*r)})")
        for hl in range(2):
            a(f"global_store_dwordx4 v{vT+2}, v[{DD+8*r+4*hl}:{DD+8*r+4*hl+3}], s[{sEP}:{sEP+1}] offset:{1024*hl} {sc}")
        if r < 7: a(f"v_add_u32 v{vT+2}, 0x10000, v{vT+2}")
    a(f"s_add_u32 s{sSEQ}, s{sSEQ}, 1")
    a("s_waitcnt vmcnt(0)")
    a("s_barrier")
    set_flag(a, sFLG, sSEQ, sc)
    if TS_ENABLED[0]:
        a(f"s_add_u32 s76, s76, 1")
        TS(a, "s76")
    poll_flags32(a, sFLG, sSEQ)
    RB = 96
    a(f"v_mov_b32 v{vT+2}, v{vEPR}")
    RR = [40+4*i for i in range(14)] + [OB, OB+4]
    for i in range(16):
        a(f"global_load_dwordx4 v[{RR[i]}:{RR[i]+3}], v{vT+2}, s[{sEP}:{sEP+1}] sc1")
        if i < 15: a(f"v_add_u32 v{vT+2}, 4096, v{vT+2}")
    for i in range(16):
        a(f"s_waitcnt vmcnt({15-i})")
        c = "0" if i == 0 else f"v[{DD}:{DD+3}]"
        a(f"v_mfma_f32_16x16x32_bf16 v[{DD}:{DD+3}], v[{SEL}:{SEL+3}], v[{RR[i]}:{RR[i]+3}], {c}")
    X=DD+8
    a(f"v_permlane32_swap_b32 v{DD}, v{DD+2}")
    a(f"v_permlane32_swap_b32 v{DD+1}, v{DD+3}")
    rnd_pair(a, DD)
    a(f"v_pk_mul_f32 v[{DD}:{DD+1}], v[{DD}:{DD+1}], v[{vCON}:{vCON+1}]")
    rnd_pair(a, DD)
    a(f"v_lshlrev_b32 v{X}, 16, v{vT+10}")
    a(f"v_and_b32 v{X+1}, 0xffff0000, v{vT+10}")
    a(f"v_pk_add_f32 v[{X}:{X+1}], v[{X}:{X+1}], v[{DD}:{DD+1}]")
    a(f"v_cvt_pk_bf16_f32 v{DD+4}, v{X}, v{X+1}")
    a(f"v_add_u32 v{DD+5}, {WS_X1}, v{vT+9}")
    a(f"global_store_dword v{DD+5}, v{DD+4}, s[{S_WS}:{S_WS+1}] sc1")
    a(f"v_lshlrev_b32 v{X}, 16, v{DD+4}")
    a(f"v_and_b32 v{X+1}, 0xffff0000, v{DD+4}")
    m=DD+10; q=DD+12; t=DD+16
    a(f"v_add_f32 v{m}, v{X}, v{X+1}")
    wg_sum(a, m, t, 0)
    set_flag(a, sFRE, sSEQ, sc)
    a(f"v_mul_f32 v{m}, {f2u(1/512)}, v{m}")
    a(f"v_sub_f32 v{q}, v{X}, v{m}")
    a(f"v_sub_f32 v{q+1}, v{X+1}, v{m}")
    a(f"v_mul_f32 v{q}, v{q}, v{q}")
    a(f"v_fmac_f32 v{q}, v{q+1}, v{q+1}")
    wg_sum(a, q, t, 1)
    a(f"v_mul_f32 v{q}, {f2u(1/512)}, v{q}")
    rnd1(a, q)
    a(f"v_add_f32 v{q}, {f2u(1e-5)}, v{q}")
    rnd1(a, q)
    a(f"v_sqrt_f32 v{q}, v{q}")
    rnd1(a, q)
    a(f"v_rcp_f32 v{q}, v{q}")
    rnd1(a, m)
    H=DD
    a(f"v_sub_f32 v{H}, v{X}, v{m}")
    a(f"v_sub_f32 v{H+1}, v{X+1}, v{m}")
    rnd_pair(a, H)
    a(f"v_mul_f32 v{H}, v{H}, v{q}")
    a(f"v_mul_f32 v{H+1}, v{H+1}, v{q}")
    rnd_pair(a, H)
    a(f"v_pk_mul_f32 v[{H}:{H+1}], v[{H}:{H+1}], v[{vCON+4}:{vCON+5}]")
    rnd_pair(a, H)
    a(f"v_pk_add_f32 v[{H}:{H+1}], v[{H}:{H+1}], v[{vCON+2}:{vCON+3}]")
    a(f"v_cvt_pk_bf16_f32 v{DD+4}, v{H}, v{H+1}")
    a(f"v_add_u32 v{DD+5}, {WS_H2}, v{vT+9}")
    a(f"global_store_dword v{DD+5}, v{DD+4}, s[{S_WS}:{S_WS+1}] sc1")
    a(f"v_lshlrev_b32 v{H}, 16, v{DD+4}")
    a(f"v_and_b32 v{H+1}, 0xffff0000, v{DD+4}")
    a(f"v_mul_f32 v{m}, v{H}, v{vCON+8}")
    a(f"v_fmac_f32 v{m}, v{H+1}, v{vCON+9}")
    a(f"v_pk_mul_f32 v[{H}:{H+1}], v[{H}:{H+1}], v[{vCON+6}:{vCON+7}]")
    rnd_pair(a, H)
    a(f"v_pk_add_f32 v[{H}:{H+1}], v[{H}:{H+1}], v[{X}:{X+1}]")
    a(f"v_cvt_pk_bf16_f32 v{DD+4}, v{H}, v{H+1}")
    a(f"global_store_dword v{vT+9}, v{DD+4}, s[{S_OUT}:{S_OUT+1}] sc1")
    a("s_waitcnt vmcnt(0)")
    wg_sum(a, m, t, 2)
    rnd1(a, m)
    a(f"v_ashrrev_i32 v{t}, 31, v{m}")
    a(f"v_or_b32 v{t}, 0x80000000, v{t}")
    a(f"v_xor_b32 v{m}, v{m}, v{t}")
    a(f"v_and_b32 v{m}, 0xffff0000, v{m}")
    a(f"s_sub_u32 s{sT+5}, {2047+4096}, s{sT+4}")
    a(f"v_or_b32 v{m}, s{sT+5}, v{m}")
    a(f"s_lshl_b32 s{sT+4}, s{sT+4}, 2")
    a(f"s_add_u32 s{sT+4}, s{sT+4}, {WS_R}")
    a(f"v_mov_b32 v{t}, s{sT+4}")
    a("s_mov_b64 exec, 1")
    a(f"global_store_dword v{t}, v{m}, s[{S_WS}:{S_WS+1}] sc1")
    a("s_mov_b64 exec, -1")
    if TS_ENABLED[0]:
        a(f"s_add_u32 s76, s76, 1")
        TS(a, "s76")
    a(f"s_add_u32 s{sSEG}, s{sSEG}, 7")
    a(f"s_cmp_lt_u32 s{sSEG}, 64")
    a.flush_hazards()
    a(f"s_cbranch_scc1 {lloop}")
```

```python
from asmlib import *
from layout import *

L_WV   = 0
L_X    = 131072
L_KT   = L_X
L_VT   = L_X + 8192
L_MS   = L_X + 16384
L_Q    = L_X + 24576
RS = 288
L_K    = L_Q + 2304
L_O    = L_K + 2304
L_VX   = L_Q
L_DUM  = L_O + 2304
L_END  = L_DUM + 256
assert L_END <= 163840

M = lambda kb: 4*kb
QA=32; KA=40; VA=48; WVS=56; QB=72; AF=88
vIDX=104; vL16=105; vMEMOFF=106; vPST=107; vPUB=108; vQKW=109; vQR=110; vKR=111; vOW=112; vOR=113; vWV=114
vKT=116; vMSW=117; vPRD=118; vVOFF=119; vFLG=120; vVXW=121
vSELX=vFLG
T=122
vTR=254
WO = lambda i,kb2: 128 + (i*2+kb2)*8
WQ = lambda t,kb: (t*8+kb)*8
WK = lambda t,kb: 128 + (t*8+kb)*8
sHALF=40; sPUBM=42; sPB=44
sSEL=52
sHALF2=92
sMB=60
sSTEP=68; sSPIN=69
sT=70
sKF=80; sVF=82; sKM=84; sVM=86; sC1=88
sDUMP=90; sPBr=48; sT0=94; sKMM=98; sPRG=100; sFOFF=101
C1 = 0.08838834764831845 * 1.4426950408889634

def lane_consts(a):
    l=T; g=T+1; c=T+2; t0=T+3; t1=T+4; t2=T+5
    a(f"v_mbcnt_lo_u32_b32 v{l}, -1, 0")
    a(f"v_mbcnt_hi_u32_b32 v{l}, -1, v{l}")
    a(f"v_lshrrev_b32 v{g}, 4, v{l}")
    a(f"v_and_b32 v{c}, 15, v{l}")
    a(f"v_lshlrev_b32 v{vL16}, 4, v{l}")
    a(f"v_add_u32 v{vKT}, {L_KT}, v{vL16}")
    a(f"s_lshl_b32 s{sT}, s{S_WAVE}, 10")
    a(f"s_add_u32 s{sT}, s{sT}, {L_MS}")
    a(f"v_add_u32 v{vMSW}, s{sT}, v{vL16}")
    a(f"s_lshl_b32 s{sT}, s{S_WAVE}, 11")
    a(f"s_add_u32 s{sT}, s{sT}, {L_VT}")
    a(f"v_add_u32 v{vVOFF}, s{sT}, v{vL16}")
    a(f"s_lshl_b32 s{sT}, s{S_WAVE}, 12")
    a(f"v_add_u32 v{vWV}, s{sT}, v{vL16}")
    a(f"v_add_u32 v{vWV+1}, 0x10000, v{vWV}")
    a(f"s_lshl_b32 s{sT}, s{S_WAVE}, 9")
    a(f"v_lshl_add_u32 v{vVXW}, v{l}, 2, s{sT}")
    a(f"s_mov_b32 s{sHALF}, 0xAAAAAAAA")
    a(f"s_mov_b32 s{sHALF+1}, 0xAAAAAAAA")
    a(f"v_mov_b32 v{t0}, 0x4444")
    a(f"v_mov_b32 v{t1}, 0xEEEE")
    a(f"s_mov_b32 s{sHALF2}, 0xCCCCCCCC")
    a(f"s_mov_b32 s{sHALF2+1}, 0xCCCCCCCC")
    a(f"v_cndmask_b32 v{vIDX}, v{t0}, v{t1}, s[{sHALF2}:{sHALF2+1}]")
    a(f"v_lshrrev_b32 v30, 2, v{c}")
    a(f"v_and_b32 v31, 1, v{c}")
    a(f"v_lshl_add_u32 v30, v30, 1, v31")
    a(f"v_bfe_u32 v31, v{c}, 1, 1")
    a(f"v_lshlrev_b32 v{t0}, 11, v{g}")
    a(f"v_lshl_add_u32 v{t0}, v30, 5, v{t0}")
    a(f"v_lshl_add_u32 v{t0}, v31, 4, v{t0}")
    a(f"s_lshl_b32 s{sT}, s{S_WAVE}, 8")
    a(f"v_add_u32 v{vMEMOFF}, s{sT}, v{t0}")
    a(f"s_lshl_b32 s{sT}, s{S_VR}, 10")
    a(f"s_lshl_b32 s{sT+1}, s{S_WAVE}, 16")
    a(f"s_add_u32 s{sT}, s{sT}, s{sT+1}")
    a(f"v_add_u32 v{vPST}, s{sT}, v{vL16}")
    a(f"s_lshr_b32 s{sT}, s{S_VR}, 2")
    a(f"s_lshl_b32 s{sT}, s{sT}, 15")
    a(f"s_and_b32 s{sT+1}, s{S_VR}, 3")
    a(f"s_lshl_b32 s{sT+2}, s{sT+1}, 8")
    a(f"s_add_u32 s{sT}, s{sT}, s{sT+2}")
    a(f"v_lshlrev_b32 v{t0}, 10, v{g}")
    a(f"v_lshl_add_u32 v{t0}, v{c}, 4, v{t0}")
    a(f"v_add_u32 v{vPRD}, s{sT}, v{t0}")
    a(f"v_lshrrev_b32 v{t0}, 1, v{c}")
    a(f"v_lshlrev_b32 v{t0}, 8, v{t0}")
    a(f"v_and_b32 v{t1}, 1, v{c}")
    a(f"v_lshl_add_u32 v{t0}, v{t1}, 5, v{t0}")
    a(f"v_lshl_add_u32 v{t0}, v{g}, 3, v{t0}")
    a(f"s_lshr_b32 s{sT}, s{S_VR}, 2")
    a(f"s_lshl_b32 s{sT}, s{sT}, 10")
    a(f"s_lshl_b32 s{sT+1}, s{sT+1}, 6")
    a(f"s_add_u32 s{sT}, s{sT}, s{sT+1}")
    a(f"v_add_u32 v{vPUB}, s{sT}, v{t0}")
    a(f"s_mov_b32 s{sPUBM}, 0x00FF00FF")
    a(f"s_mov_b32 s{sPUBM+1}, 0x00FF00FF")
    a(f"v_lshlrev_b32 v{t1}, 4, v{t1}")
    a(f"v_mov_b32 v{t0}, 0x3F80")
    a(f"v_lshlrev_b32 v{vSELX}, v{t1}, v{t0}")
    for d in range(4):
        m = 0x3 << (2*d); m = m | (m << 16)
        a(f"s_mov_b32 s{sSEL+2*d}, {m}")
        a(f"s_mov_b32 s{sSEL+2*d+1}, {m}")
    a(f"s_mov_b32 s{sKMM}, 0x33333333")
    a(f"s_mov_b32 s{sKMM+1}, 0x33333333")
    a(f"v_mul_u32_u24 v{t0}, {2*RS}, v{g}")
    a(f"v_lshl_add_u32 v{t0}, v{c}, 2, v{t0}")
    a(f"s_lshl_b32 s{sT}, s{S_WAVE}, 6")
    a(f"s_add_u32 s{sT}, s{sT}, {L_Q}")
    a(f"v_add_u32 v{vQKW}, s{sT}, v{t0}")
    a(f"v_lshrrev_b32 v{t0}, 1, v{c}")
    a(f"v_mul_u32_u24 v{t0}, {RS}, v{t0}")
    a(f"v_lshl_add_u32 v{t1}, v{g}, 4, v{t0}")
    a(f"v_add_u32 v{vQR}, {L_Q}, v{t1}")
    a(f"v_and_b32 v{t2}, 1, v{c}")
    a(f"v_lshl_add_u32 v{t1}, v{t2}, 5, v{t0}")
    a(f"v_lshl_add_u32 v{t1}, v{g}, 3, v{t1}")
    a(f"s_lshl_b32 s{sT}, s{S_WAVE}, 6")
    a(f"s_add_u32 s{sT}, s{sT}, {L_O}")
    a(f"v_add_u32 v{vOW}, s{sT}, v{t1}")
    a(f"v_mul_u32_u24 v{t1}, {RS}, v30")
    a(f"v_lshl_add_u32 v{t1}, v{g}, 5, v{t1}")
    a(f"v_lshl_add_u32 v{t1}, v31, 4, v{t1}")
    a(f"v_add_u32 v{vOR}, {L_O}, v{t1}")
    a(f"v_lshrrev_b32 v{t0}, 2, v{c}")
    a(f"v_lshl_add_u32 v{t0}, v{t0}, 1, v{t2}")
    a(f"v_mul_u32_u24 v{t0}, {RS}, v{t0}")
    a(f"v_lshl_add_u32 v{t0}, v{g}, 4, v{t0}")
    a(f"v_add_u32 v{vKR}, {L_K}, v{t0}")
    r=20; ph=21
    a(f"v_lshrrev_b32 v{r}, 2, v{c}")
    a(f"v_and_b32 v{t1}, 1, v{r}")
    a(f"v_lshrrev_b32 v{t2}, 1, v{r}")
    a(f"v_lshl_add_u32 v{r}, v{t2}, 3, v{t1}")
    a(f"v_lshl_add_u32 v{ph}, v{t2}, 2, v{t1}")
    a(f"v_and_b32 v{t2}, 1, v{g}")
    a(f"v_lshl_add_u32 v{ph}, v{t2}, 1, v{ph}")
    a(f"v_lshl_add_u32 v{r}, v{t2}, 2, v{r}")
    a(f"v_lshrrev_b32 v{t2}, 1, v{g}")
    a(f"v_lshl_add_u32 v{r}, v{t2}, 4, v{r}")
    a(f"v_lshlrev_b32 v{r}, 8, v{r}")
    a(f"v_and_b32 v{t2}, 3, v{c}")
    a(f"v_lshl_add_u32 v{r}, v{t2}, 3, v{r}")
    for t in range(2):
        a(f"s_lshl_b32 s{sT}, s{S_WAVE}, 1")
        a(f"s_add_u32 s{sT}, s{sT}, {t}")
        a(f"v_xor_b32 v{t2}, s{sT}, v{ph}")
        a(f"v_lshl_add_u32 v{22+3*t}, v{t2}, 5, v{r}")
        a(f"v_add_u32 v{23+3*t}, 0x10000, v{22+3*t}")
        a(f"v_add_u32 v{24+3*t}, 0x20000, v{22+3*t}")

def tr_off(slot, m):
    return (slot & 3)*16384 + (m >> 1)*8192 + (m & 1)*512

def setup_weights(a):
    l=T
    a(f"v_lshrrev_b32 v8, 4, v{l}")
    a(f"v_bfe_u32 v9, v{l}, 1, 3")
    a(f"v_and_b32 v10, 1, v8")
    a(f"v_xor_b32 v9, v9, v10")
    a(f"v_and_b32 v10, 1, v{l}")
    a(f"v_lshlrev_b32 v10, 4, v10")
    for aa in range(4):
        a(f"v_xor_b32 v11, {aa<<1}, v9")
        a(f"v_lshl_add_u32 v11, v11, 5, v10")
        a(f"v_add_u32 v12, {4*aa}, v8")
        a(f"v_lshl_add_u32 v{aa}, v12, 13, v11")
        a(f"v_lshl_add_u32 v{4+aa}, v12, 10, v11")
    a(f"s_lshl_b32 s{sT}, s{S_VR}, 8")
    a(f"s_lshl_b32 s{sT+1}, s{S_WAVE}, 20")
    a(f"s_add_u32 s{sT}, s{sT}, s{sT+1}")
    a(f"s_lshl_b32 s{sT+1}, s{S_VR}, 17")
    a(f"s_lshl_b32 s{sT+2}, s{S_WAVE}, 14")
    a(f"s_add_u32 s{sT+1}, s{sT+1}, s{sT+2}")
    a(f"s_lshl_b32 s{sT+2}, s{S_WAVE}, 12")
    def issue(grp):
        mat = grp >> 1; half = grp & 1
        for ch in range(4):
            slot = half*4 + ch
            if mat == 3: slot += 1
            if mat == 2:
                a(f"s_add_u32 s{sT+3}, s{sT+1}, {half*65536 + ch*256}")
                base = S_WO; vo = 4
            else:
                kb = half*4 + ch
                a(f"s_add_u32 s{sT+3}, s{sT}, {kb*131072}")
                base = (S_WQ, S_WK, None, S_WV)[mat]; vo = 0
            a(f"s_add_u32 s{sT+4}, s{base}, s{sT+3}")
            a(f"s_addc_u32 s{sT+5}, s{base+1}, 0")
            for aa in range(4):
                a(f"s_add_u32 m0, s{sT+2}, {slot*16384 + aa*1024}")
                a(f"global_load_lds_dwordx4 v{vo+aa}, s[{sT+4}:{sT+5}]")
    issue(0); issue(1)
    for grp in range(6):
        a(f"s_waitcnt vmcnt(16)")
        a("s_barrier")
        mat = grp >> 1; half = grp & 1
        if mat < 2:
            for ch in range(4):
                kb = half*4 + ch
                for t in range(2):
                    dst = (WQ if mat == 0 else WK)(t, kb)
                    for m in range(4):
                        a(f"ds_read_b64_tr_b16 a[{dst+2*m}:{dst+2*m+1}], v{22+3*t+half} offset:{tr_off(kb,m)}")
        else:
            a(f"s_lshl_b32 s{sT+3}, s{S_WAVE}, 14")
            a(f"s_add_u32 s{sT+3}, s{sT+3}, {half*65536}")
            for u in range(8):
                a(f"v_xor_b32 v8, {u}, v21")
                a(f"v_lshl_add_u32 v8, v8, 5, v20")
                a(f"v_add_u32 v8, s{sT+3}, v8")
                dst = WO(u, half)
                for m in range(4):
                    a(f"ds_read_b64_tr_b16 v[{dst+2*m}:{dst+2*m+1}], v8 offset:{tr_off(0,m)}")
        a("s_waitcnt lgkmcnt(0)")
        a("s_barrier")
        if grp < 4: issue(grp + 2)
        elif grp == 4:
            pass
        elif grp == 5:
            issue(6); issue(7)
        if grp == 4:
            a("s_waitcnt vmcnt(0)")
    for kb in range(8):
        a(f"s_waitcnt vmcnt({4*(7-kb)})")
        a("s_barrier")
        slot = kb + 1
        for t in range(2):
            for m in range(4):
                a(f"ds_read_b64_tr_b16 v[{32+8*t+2*m}:{33+8*t+2*m}], v{22+3*t+(slot>>2)} offset:{tr_off(slot,m)}")
        a("s_waitcnt lgkmcnt(0)")
        for t in range(2):
            for hf in range(2):
                a(f"ds_write_b128 v{vWV+(kb>>2)}, v[{32+8*t+4*hf}:{35+8*t+4*hf}] offset:{(kb&3)*16384+t*2048+hf*1024}")
        a("s_waitcnt lgkmcnt(0)")
    a("s_barrier")

TRACE=[False]
STAMP=[True]
WI=set()
def trace(a, slot):
    if not TRACE[0]: return
    a(f"s_memrealtime s[{18+2*slot}:{19+2*slot}]")
def trace_flush(a):
    if not TRACE[0]: return
    a(f"s_lshl_b32 s3, s{sSTEP}, 12")
    a(f"s_lshl_b32 s2, s{S_VR}, 7")
    a("s_add_u32 s3, s3, s2")
    a(f"s_lshl_b32 s2, s{S_WAVE}, 5")
    a("s_add_u32 s3, s3, s2")
    a(f"s_add_u32 s3, s3, {WS_X1}")
    a(f"v_lshrrev_b32 v{T}, 2, v{vL16}")
    a(f"v_add_u32 v{T}, s3, v{T}")
    a("s_waitcnt lgkmcnt(0)")
    for sl in range(8):
        a(f"v_writelane_b32 v{T+1}, s{18+2*sl}, {sl}")
    a("s_mov_b64 exec, 0xff")
    a(f"global_store_dword v{T}, v{T+1}, s[{S_WS}:{S_WS+1}]")
    a("s_mov_b64 exec, -1")
class Prof:
    def __init__(self, a, enabled):
        self.a=a; self.en=enabled; self.names=[]
    def stamp(self, name):
        if not self.en: return
        a=self.a
        a("s_memtime s[96:97]")
        a("s_waitcnt lgkmcnt(0)")
        if name in self.names: idx=self.names.index(name)
        else: self.names.append(name); idx=len(self.names)-1
        acc = 18+idx
        assert acc <= 33
        a(f"s_sub_u32 s3, s96, s2")
        a(f"s_add_u32 s{acc}, s{acc}, s3")
        a("s_mov_b32 s2, s96")

def xl(a, x, t, op):
    a(f"v_mov_b32 v{t}, v{x}")
    a(f"v_permlane32_swap_b32 v{t}, v{x}")
    a(f"{op} v{x}, v{t}, v{x}")
    a(f"v_mov_b32 v{t}, v{x}")
    a(f"v_permlane16_swap_b32 v{t}, v{x}")
    a(f"{op} v{x}, v{t}, v{x}")

import os
SPEC_T=int(os.environ.get('SPEC_T','1'))
PSL=int(os.environ.get('PSL','0'))
NV=int(os.environ.get('NV','5'))
R0=56; R1=72; R2=88
sFLW=8; sFLR=10; sV0=12
def chain_main(a, sc, dump=False, prof=False, kvflags=True, guard=True):
    P = Prof(a, prof)
    KVSC = 'nt' if 'nont' in WI else ''
    C = Cnt(a)
    a(f"s_mov_b32 s{sC1}, {f2u(C1)}")
    a(f"s_mov_b32 s{sC1+1}, {f2u(C1)}")
    for i in range(2):
        sadd64(a, sPB+2*i, S_WS, WS_PB + i*262144)
        sadd64(a, sPBr+2*i, S_WS, WS_PB + i*262144 + 4096)
    a(f"s_lshl_b32 s{sT}, s{S_VR}, 13")
    a(f"s_mov_b32 s{sT+1}, {WS_KF}")
    a(f"s_mov_b32 s{sVF}, {L_KT}")
    a(f"s_cmp_eq_u32 s{S_WAVE}, 3")
    a(f"s_cselect_b32 s{sT+1}, {WS_VF}, s{sT+1}")
    a(f"s_cselect_b32 s{sVF}, {L_VT}, s{sVF}")
    a(f"s_add_u32 s{sT+1}, s{sT+1}, s{sT}")
    sadd64(a, sKF, S_WS, f"s{sT+1}")
    sadd64(a, sV0, sKF, WS_VF - WS_KF)
    a(f"s_lshl_b32 s{sT}, s{S_VR}, 12")
    a(f"s_add_u32 s{sT+1}, s{sT}, {WS_KM - 131072}")
    sadd64(a, sKM, S_WS, f"s{sT+1}")
    a(f"s_lshl_b32 s{sT}, s{S_VR}, 11")
    a(f"s_add_u32 s{sT+1}, s{sT}, {WS_VM - 65536}")
    sadd64(a, sVM, S_WS, f"s{sT+1}")
    a(f"s_lshl_b32 s{sPRG}, s{S_VR}, 7")
    a(f"s_add_u32 s{sPRG}, s{sPRG}, {F_PROG}")
    a(f"v_mov_b32 v{vWV}, v{vL16}")
    a(f"v_add_u32 v{vWV+1}, 0x10000, v{vL16}")
    a(f"v_lshrrev_b32 v{vVXW}, 2, v{vL16}")
    a(f"v_bfe_u32 v{T}, v{vL16}, 5, 3")
    a(f"v_mul_u32_u24 v{T}, {RS}, v{T}")
    a(f"v_lshrrev_b32 v{T+1}, 8, v{vL16}")
    a(f"v_lshl_add_u32 v{T}, v{T+1}, 3, v{T}")
    a(f"v_add_u32 v{vOW}, {L_O}, v{T}")
    lnp = a.newlabel("c_np")
    a(f"s_cmp_lg_u32 s{S_WAVE}, 1")
    a(f"s_cbranch_scc1 {lnp}")
    a(f"v_mul_u32_u24 v{T}, {RS}, v{T+1}")
    a(f"v_and_b32 v{T+1}, 0xff, v{vL16}")
    a(f"v_add3_u32 v{vFLG}, v{T}, v{T+1}, v{vFLG}" if False else f"v_add_u32 v{T}, v{T}, v{T+1}")
    a(f"v_add_u32 v{vFLG}, {L_K}, v{T}")
    a.label(lnp)
    if dump: sadd64(a, sDUMP, S_WS, WS_DUMP)
    a(f"s_lshl_b32 s{sT}, s{S_WAVE}, 8")
    a(f"s_lshl_b32 s{sT+1}, s{S_VR}, 2")
    a(f"s_add_u32 s{sT}, s{sT}, s{sT+1}")
    a(f"s_add_u32 s{sT}, s{sT}, {F_PFL}")
    sadd64(a, sFLW, S_WS, f"s{sT}")
    a(f"s_lshr_b32 s{sT}, s{S_VR}, 2")
    a(f"s_lshl_b32 s{sT}, s{sT}, 7")
    a(f"s_add_u32 s{sT}, s{sT}, {F_PFL}")
    sadd64(a, sFLR, S_WS, f"s{sT}")
    for i in range(4): sadd64(a, sMB+2*i, S_WS, WS_MB + 8192*i)
    a(f"s_mov_b32 s{sSPIN}, 0")
    a(f"s_mov_b32 s{sSTEP}, 0")
    if prof:
        for r in range(18, 34): a(f"s_mov_b32 s{r}, 0")
    lw = [a.newlabel(f"c_w{i}") for i in range(4)]; lend = a.newlabel("c_end")
    for i in range(1, 4):
        a(f"s_cmp_eq_u32 s{S_WAVE}, {i}")
        a(f"s_cbranch_scc1 {lw[i]}")
    tails = []; slow = []; fbk = []; redo = []; ptail = []
    def retry_stub(lback):
        l = a.newlabel("c_retry"); tails.append((l, lback)); return l
    I = lambda txt: (lambda: a(txt))
    for w in range(4):
        role = ("R", "PUB", "DMA", "DMA")[w]
        if w: a.label(lw[w]); a.hist=[]
        KB = [w, w+4] + [k for k in range(8) if k not in (w, w+4)]
        VB = KB
        TL = [[], [0,1,2], [3,4,5], [6,7]][w]
        vops = [(kb, ti) for kb in KB for ti in range(len(TL))]
        NS = 5; SLOT = [R0, R0+8, R1, R1+8, R2]
        VACC = [VA, VA+4, R2+12]; VFR = [QA, QA+4, R2+8]; VH = [vQR, vKR, vVOFF]
        def wvr(n):
            kb, ti = vops[n]; sl_ = SLOT[n % NS]
            for hf in range(2):
                C.lds(f"ds_read_b128 v[{sl_+4*hf}:{sl_+4*hf+3}], v{vWV+(kb>>2)} offset:{(kb&3)*16384+TL[ti]*2048+hf*1024}", ("wv", n))
        def wait_flag_spin(off_sgpr):
            l = a.newlabel("c_fl")
            a(f"v_mov_b32 v{T}, s{off_sgpr}")
            a.label(l)
            a(f"global_load_dword v{vFLG}, v{T}, s[{S_WS}:{S_WS+1}] sc1")
            a(f"s_add_u32 s{sSPIN}, s{sSPIN}, 1")
            a(f"s_cmp_gt_u32 s{sSPIN}, 0x80000")
            a("s_cbranch_scc1 L_fail")
            a("s_waitcnt vmcnt(0)")
            a(f"v_cmp_gt_u32 vcc, {KV_TARGET}, v{vFLG}")
            a(f"s_cbranch_vccnz {l}")
        def wv_read(kb, t, slot, hf):
            C.lds(f"ds_read_b128 v[{slot+4*hf}:{slot+4*hf+3}], v{vWV+(kb>>2)} offset:{(kb&3)*16384+t*2048+hf*1024}", ("wv",kb,t))
        def wv4(kb, R): return [(lambda t=t, hf=hf: wv_read(kb, t, R+8*t, hf)) for t in range(2) for hf in range(2)]
        def vmf(kb, t, R):
            C.wait_l(("wv",kb,t))
            a(f"v_smfmac_f32_16x16x64_bf16 v[{VA+4*t}:{VA+4*t+3}], v[{M(kb)}:{M(kb)+3}], v[{R+8*t}:{R+8*t+7}], v{vIDX}")
        def qmf(kb, t):
            C.wait_l(("m",kb))
            a(f"v_smfmac_f32_16x16x64_bf16 v[{QA+4*t}:{QA+4*t+3}], v[{M(kb)}:{M(kb)+3}], a[{WQ(t,kb)}:{WQ(t,kb)+7}], v{vIDX}")
        def kmf(kb, t): a(f"v_smfmac_f32_16x16x64_bf16 v[{KA+4*t}:{KA+4*t+3}], v[{M(kb)}:{M(kb)+3}], a[{WK(t,kb)}:{WK(t,kb)+7}], v{vIDX}")
        def weave(mf, fill, per=1, drain=True):
            for m in mf:
                m()
                for _ in range(per):
                    if fill: fill.pop(0)()
            if drain:
                while fill: fill.pop(0)()
        if role == "R":
            a(f"v_bfe_u32 v{T}, v{vPUB}, 5, 3")
            a(f"v_lshrrev_b32 v{T+1}, 8, v{vPUB}")
            a(f"v_lshlrev_b32 v{T}, 10, v{T}")
            a(f"v_lshl_add_u32 v{T}, v{T+1}, 5, v{T}")
            a(f"v_and_b32 v{T+1}, 31, v{vPUB}")
            a(f"v_add_u32 v{T}, v{T}, v{T+1}")
            a(f"s_mov_b64 exec, s[{sPUBM}:{sPUBM+1}]")
            a(f"global_load_dwordx2 v[{T+2}:{T+3}], v{T}, s[{S_MEM0}:{S_MEM0+1}]")
            a("s_waitcnt vmcnt(0)")
            a(f"v_min_u32 v{T+2}, -2, v{T+2}")
            a(f"v_min_u32 v{T+3}, -2, v{T+3}")
            a(f"global_store_dwordx2 v{vPUB}, v[{T+2}:{T+3}], s[{sMB}:{sMB+1}] {sc}")
            if dump: a(f"global_store_dwordx2 v{vPUB}, v[{T+2}:{T+3}], s[{sDUMP}:{sDUMP+1}]")
            a("s_mov_b64 exec, -1")
        elif role == "DMA":
            a(f"s_mov_b32 s{sFOFF}, {F_KVRDY}")
            if kvflags: wait_flag_spin(sFOFF)
            a(f"s_mov_b32 m0, {L_DUM}")
            a(f"v_lshlrev_b32 v{T}, 3, v{vL16}")
            a(f"global_load_lds_dword v{T}, s[{sKF}:{sKF+1}] sc1")
            a(f"v_add_u32 v{T}, 0x40000, v{T}")
            a(f"global_load_lds_dword v{T}, s[{sKF}:{sKF+1}] sc1")
            a(f"v_lshlrev_b32 v{T+5}, 3, v{vL16}")
            a(f"s_mov_b32 s{sFOFF}, {F_KVRDY+128}")
            if kvflags: wait_flag_spin(sFOFF)
            a(f"s_mov_b32 s{sFOFF}, {F_KVRDY+256}")
        for r in range(QA, QA+24, 2): a(f"v_mov_b64 v[{r}:{r+1}], 0")
        if w:
            for n in range(NS): wvr(n)
            a(f"v_mov_b64 v[{R2+12}:{R2+13}], 0"); a(f"v_mov_b64 v[{R2+14}:{R2+15}], 0")
        if STAMP[0]: a(f"s_memtime s[{sT0}:{sT0+1}]")
        a("s_waitcnt lgkmcnt(0)")
        if prof: a(f"s_mov_b32 s2, s{sT0}")
        lloop = a.newlabel("c_loop"); lchk0 = a.newlabel("c_chk0")
        A_=M(KB[0]); B_=M(KB[1])
        def mloads(A_=A_, B_=B_):
            a(f"global_load_dwordx4 v[{A_}:{A_+3}], v{vMEMOFF}, s[{sMB}:{sMB+1}] sc1")
            a(f"global_load_dwordx4 v[{B_}:{B_+3}], v{vMEMOFF}, s[{sMB}:{sMB+1}] offset:1024 sc1")
        def dmal():
            lb = L_VT if w == 3 else L_KT
            l = [I(f"s_mov_b32 m0, {lb}")]
            l += [I(f"global_load_lds_dwordx4 v{vL16}, s[{sKF}:{sKF+1}] offset:{i*1024} {KVSC}") for i in range(4)]
            l += [I(f"v_add_u32 v{T}, 4096, v{vL16}"), I(f"s_mov_b32 m0, {lb+4096}")]
            l += [I(f"global_load_lds_dwordx4 v{T}, s[{sKF}:{sKF+1}] offset:{i*1024} {KVSC}") for i in range(4)]
            return l
        if role == "DMA":
            for f in dmal(): f()
            sadd64(a, sKF, sKF, 262144)
        def rotate():
            a(f"s_mov_b64 s[{sT}:{sT+1}], s[{sMB}:{sMB+1}]")
            a(f"s_mov_b64 s[{sMB}:{sMB+1}], s[{sMB+2}:{sMB+3}]")
            a(f"s_mov_b64 s[{sMB+2}:{sMB+3}], s[{sMB+4}:{sMB+5}]")
            a(f"s_mov_b64 s[{sMB+4}:{sMB+5}], s[{sMB+6}:{sMB+7}]")
            a(f"s_mov_b64 s[{sMB+6}:{sMB+7}], s[{sT}:{sT+1}]")
        mloads()
        a.flush_hazards()
        a.label(lloop)
        for par in range(2):
            C.l=[]; C.v=[]
            lp = a.newlabel("c_pollm")
            if par == 0:
                a(f"s_branch {lchk0}")
                a.label(lp)
                mloads()
                a.label(lchk0)
            else:
                lc1 = a.newlabel("c_chk1")
                ptail.append((lp, lc1, mloads))
                a.label(lc1)
            a("s_waitcnt vmcnt(1)")
            a(f"v_max3_u32 v{T}, v{A_}, v{A_+1}, v{A_+2}")
            a("s_waitcnt vmcnt(0)")
            a(f"v_max3_u32 v{T+1}, v{A_+3}, v{B_}, v{B_+1}")
            a(f"v_max3_u32 v{T}, v{T}, v{B_+2}, v{B_+3}")
            a(f"v_max_u32 v{T}, v{T}, v{T+1}")
            a(f"v_cmp_eq_u32 vcc, -1, v{T}")
            a(f"ds_write_b128 v{vMSW}, v[{A_}:{A_+3}]")
            a(f"ds_write_b128 v{vMSW}, v[{B_}:{B_+3}] offset:4096")
            a(f"s_cbranch_vccnz {retry_stub(lp)}")
            trace(a, 0); P.stamp("pollm")
            rf = []
            if role == "DMA":
                if 'nopf' not in WI: rf += [I(f"s_mov_b32 m0, {L_DUM}"), I(f"global_load_lds_dword v{T+5}, s[{sKF}:{sKF+1}]")]
                if par == 0 and kvflags:
                    rf += [I(f"v_mov_b32 v{T}, s{sFOFF}"), I(f"global_load_dword v{vFLG}, v{T}, s[{S_WS}:{S_WS+1}] sc1")]
            elif role == "PUB":
                slr = sPB + 2*(par^1); slr2 = sPBr + 2*(par^1)
                rf += [I(f"s_sub_u32 s{sT}, s{sSTEP}, 1"), I(f"s_max_i32 s{sT}, s{sT}, 0"), I(f"v_mov_b32 v{T}, s{sPRG}"), I(f"v_mov_b32 v{T+1}, s{sT}"),
                       I(f"global_store_dword v{T}, v{T+1}, s[{S_WS}:{S_WS+1}] sc1")]
            else:
                slr = sPB + 2*(par^1); slr2 = sPBr + 2*(par^1)
                rf += [I(f"v_mov_b32 v{T+2+i}, {SENT}") for i in range(4)]
                rf += [I(f"global_store_dwordx4 v{vPRD}, v[{T+2}:{T+5}], s[{slr}:{slr+1}] {sc}"),
                       I(f"global_store_dwordx4 v{vPRD}, v[{T+2}:{T+5}], s[{slr2}:{slr2+1}] {sc}")]
                for i in range(1, 4):
                    rf += [I(f"v_add_u32 v{T}, {8192*i}, v{vPRD}"),
                           I(f"global_store_dwordx4 v{T}, v[{T+2}:{T+5}], s[{slr}:{slr+1}] {sc}"),
                           I(f"global_store_dwordx4 v{T}, v[{T+2}:{T+5}], s[{slr2}:{slr2+1}] {sc}")]
            rs0 = []
            if w == 0 and 'noearly' in WI: rs0 = rf; rf = []
            if w and 'novpub' not in WI:
                rf = [I(f"global_store_dword v{vVXW}, v{VH[ti]}, s[{sVM}:{sVM+1}] offset:{256*tau} sc1") for ti, tau in enumerate(TL)] + rf
            qmf(KB[0],0); qmf(KB[0],1); qmf(KB[1],0)
            a("s_waitcnt lgkmcnt(0)")
            a("s_barrier")
            P.stamp("barMS")
            if TS_ENABLED[0] and w == 0:
                a(f"s_add_u32 s76, s{sSTEP}, 16")
                TS(a, "s76", vt=T)
            mr = [(lambda kb=kb: C.lds(f"ds_read_b128 v[{M(kb)}:{M(kb)+3}], v{vKT} offset:{L_MS-L_KT+kb*1024}", ("m",kb))) for kb in KB[2:]]
            mr[0](); mr[1]()
            qmf(KB[1],1); mr[2]()
            kmf(KB[0],0); mr[3]()
            if role == "PUB" and 'nokpub' not in WI:
                a(f"global_store_dwordx4 v{vL16}, v[{M(KB[6])}:{M(KB[6])+3}], s[{sKM}:{sKM+1}] sc1")
                a(f"global_store_dwordx4 v{vL16}, v[{M(KB[7])}:{M(KB[7])+3}], s[{sKM}:{sKM+1}] offset:1024 sc1")
            kmf(KB[0],1); mr[4]()
            kmf(KB[1],0); mr[5]()
            mf = []
            for kb in KB[2:]: mf += [lambda kb=kb: qmf(kb,0), lambda kb=kb: qmf(kb,1)]
            weave(mf, rf, 1, True)
            P.stamp("q")
            late = []
            qpost = [I(f"v_add_f32 v{QA}, v{QA}, v{QA+2}"), I(f"v_add_f32 v{QA+1}, v{QA+1}, v{QA+3}"),
                     I(f"v_add_f32 v{QA+4}, v{QA+4}, v{QA+6}"), I(f"v_add_f32 v{QA+5}, v{QA+5}, v{QA+7}"),
                     I(f"v_cvt_pk_bf16_f32 v{QA}, v{QA}, v{QA+4}"), I(f"v_cvt_pk_bf16_f32 v{QA+1}, v{QA+1}, v{QA+5}"),
                     lambda: C.lds(f"ds_write2_b32 v{vQKW}, v{QA}, v{QA+1} offset0:0 offset1:{RS//4}")]
            kmf(KB[1],1); kmf(KB[2],0)
            weave([lambda: kmf(KB[2],1), lambda: kmf(KB[3],0), lambda: kmf(KB[3],1), lambda: kmf(KB[4],0)], qpost, 2, True)
            kmf(KB[4],1); kmf(KB[5],0)
            C.all_l()
            a("s_barrier")
            trace(a, 1); P.stamp("barQ")
            krest = [lambda: kmf(KB[5],1), lambda: kmf(KB[6],0), lambda: kmf(KB[6],1), lambda: kmf(KB[7],0), lambda: kmf(KB[7],1)]
            kpost = [I(f"v_add_f32 v{KA}, v{KA}, v{KA+2}"), I(f"v_add_f32 v{KA+1}, v{KA+1}, v{KA+3}"),
                     I(f"v_add_f32 v{KA+4}, v{KA+4}, v{KA+6}"), I(f"v_add_f32 v{KA+5}, v{KA+5}, v{KA+7}"),
                     I(f"v_cvt_pk_bf16_f32 v{KA}, v{KA}, v{KA+4}"), I(f"v_cvt_pk_bf16_f32 v{KA+1}, v{KA+1}, v{KA+5}"),
                     lambda: C.lds(f"ds_write_b32 v{vQKW}, v{KA} offset:{L_K-L_Q}"),
                     lambda: C.lds(f"ds_write_b32 v{vQKW}, v{KA+1} offset:{L_K-L_Q+RS}", "kw")]
            ZQ = R2
            if w == 0:
                QBr=R0
                S0=QA; S1=QA+4; SM=KA
                rd = []
                for ks in range(4):
                    rd += [lambda ks=ks: C.lds(f"ds_read_b128 v[{QBr+4*ks}:{QBr+4*ks+3}], v{vQR} offset:{64*ks}", ("q",ks)),
                           lambda ks=ks: C.lds(f"ds_read_b128 v[{R1+4*ks}:{R1+4*ks+3}], v{vKT} offset:{ks*1024}", ("kt",0,ks))]
                rd += [(lambda ks=ks: C.lds(f"ds_read_b128 v[{R2+4*ks}:{R2+4*ks+3}], v{vKT} offset:{4096+ks*1024}", ("kt",1,ks))) for ks in range(4)]
                rd[0](); rd[1](); rd = rd[2:]
                weave(krest, rd, 2, True)
                def smf(kt, ks):
                    Sx = (S0, S1)[kt]; R = (R1, R2)[kt]
                    if ks in (0, 2): C.wait_l(("kt",kt,ks+1))
                    c = "0" if ks == 0 else f"v[{Sx}:{Sx+3}]"
                    a(f"v_mfma_f32_16x16x32_bf16 v[{Sx}:{Sx+3}], v[{R+4*ks}:{R+4*ks+3}], v[{QBr+4*ks}:{QBr+4*ks+3}], {c}")
                smf(0,0); smf(0,1)
                weave([lambda: smf(0,2), lambda: smf(0,3), lambda: smf(1,0), lambda: smf(1,1)], kpost, 2, True)
                smf(1,2); smf(1,3)
                C.wait_l("kw")
                a("s_barrier")
                trace(a, 5); P.stamp("barK")
                for ks in range(4):
                    C.lds(f"ds_read_b128 v[{R1+4*ks}:{R1+4*ks+3}], v{vKR} offset:{64*ks}", ("km",ks))
                if par == 1:
                    a(f"s_cmp_eq_u32 s{sSTEP}, 63")
                    a(f"s_cbranch_scc1 {lend}")
                mx=T; tt=T+1; nm=T+2; ls=T+4
                Pr=KA+4; PX=VA
                a(f"v_max3_f32 v{mx}, v{S0}, v{S0+1}, v{S0+2}")
                a(f"v_max3_f32 v{mx}, v{mx}, v{S0+3}, v{S1}")
                a(f"v_max3_f32 v{mx}, v{mx}, v{S1+1}, v{S1+2}")
                a(f"v_max_f32 v{mx}, v{mx}, v{S1+3}")
                a(f"v_mov_b32 v{tt}, v{mx}")
                def mmf(ks):
                    if ks in (0, 2): C.wait_l(("km",ks+1))
                    c = "0" if ks == 0 else f"v[{SM}:{SM+3}]"
                    a(f"v_mfma_f32_16x16x32_bf16 v[{SM}:{SM+3}], v[{R1+4*ks}:{R1+4*ks+3}], v[{QBr+4*ks}:{QBr+4*ks+3}], {c}")
                mmf(0)
                a(f"v_permlane32_swap_b32 v{tt}, v{mx}")
                mmf(1)
                a(f"v_max_f32 v{mx}, v{tt}, v{mx}")
                a(f"v_mov_b32 v{tt}, v{mx}")
                mmf(2)
                a(f"v_permlane16_swap_b32 v{tt}, v{mx}")
                mmf(3)
                a(f"v_max_f32 v{mx}, v{tt}, v{mx}")
                a(f"v_mul_f32 v{nm}, s{sC1}, v{mx}")
                tok = [S0+i for i in range(8)]
                for x in (S0, S0+2, S1, S1+2, SM):
                    a(f"v_pk_fma_f32 v[{x}:{x+1}], v[{x}:{x+1}], s[{sC1}:{sC1+1}], v[{nm}:{nm+1}] op_sel_hi:[1,1,0] neg_lo:[0,0,1] neg_hi:[0,0,1]")
                a(f"v_max_f32 v{tt}, v{SM}, v{SM+1}")
                a(f"v_cmp_lt_f32 vcc, 0x42800000, v{tt}")
                for r in tok: a(f"v_exp_f32 v{r}, v{r}")
                lfb = a.newlabel("c_fb"); lfr = a.newlabel("c_fr")
                a(f"s_cbranch_vccnz {lfb}")
                a.label(lfr)
                fbk.append((lfb, lfr))
                a(f"v_exp_f32 v{SM}, v{SM}")
                a(f"v_exp_f32 v{SM+1}, v{SM+1}")
                a(f"v_pk_add_f32 v[{ls}:{ls+1}], v[{S0}:{S0+1}], v[{S0+2}:{S0+3}]")
                a(f"v_pk_add_f32 v[{nm}:{nm+1}], v[{S1}:{S1+1}], v[{S1+2}:{S1+3}]")
                a(f"v_pk_add_f32 v[{ls}:{ls+1}], v[{ls}:{ls+1}], v[{nm}:{nm+1}]")
                a(f"v_pk_add_f32 v[{ls}:{ls+1}], v[{ls}:{ls+1}], v[{SM}:{SM+1}]")
                a(f"v_add_f32 v{ls}, v{ls}, v{ls+1}")
                a(f"v_mov_b32 v{tt}, v{ls}")
                a(f"v_mov_b64 v[{ZQ}:{ZQ+1}], 0")
                a(f"v_permlane32_swap_b32 v{tt}, v{ls}")
                a(f"v_add_f32 v{ls}, v{tt}, v{ls}")
                a(f"v_mov_b32 v{tt}, v{ls}")
                a(f"v_mov_b64 v[{ZQ+2}:{ZQ+3}], 0")
                a(f"v_permlane16_swap_b32 v{tt}, v{ls}")
                a(f"v_add_f32 v{ls}, v{tt}, v{ls}")
                a(f"v_rcp_f32 v{ls}, v{ls}")
                for x in (S0, S0+2, S1, S1+2, SM):
                    a(f"v_pk_mul_f32 v[{x}:{x+1}], v[{x}:{x+1}], v[{ls}:{ls+1}] op_sel_hi:[1,0]")
                for i in range(4): a(f"v_cvt_pk_bf16_f32 v{Pr+i}, v{tok[2*i]}, v{tok[2*i+1]}")
                C.lds(f"ds_write_b128 v{vKT}, v[{Pr}:{Pr+3}] offset:{L_MS-L_KT}")
                a(f"v_cvt_pk_bf16_f32 v{PX}, v{SM}, v{SM+1}")
                C.lds(f"ds_write_b64 v{vKT}, v[{PX}:{PX+1}] offset:{L_MS-L_KT+1024}")
                trace(a, 7)
                C.all_l()
                a("s_barrier")
                a(f"v_mfma_f32_32x32x16_bf16 v[0:15], v[{ZQ}:{ZQ+3}], v[{ZQ}:{ZQ+3}], 0")
                a(f"v_mfma_f32_32x32x16_bf16 v[16:31], v[{ZQ}:{ZQ+3}], v[{ZQ}:{ZQ+3}], 0")
                for f in rs0: f()
                a(f"v_add_u32 v{T}, 32768, v{vPST}"); a(f"s_add_u32 s{sT+6}, s{sSTEP}, 1"); a(f"v_mov_b32 v{T+1}, 0"); a(f"v_mov_b32 v{T+2}, s{sT+6}")
                trace(a, 6)
                a("s_barrier")
            else:
                vfr = [(lambda ti=ti, tau=tau: C.lds(f"ds_read_b128 v[{VFR[ti]}:{VFR[ti]+3}], v{vKT} offset:{L_VT-L_KT+tau*1024}", "vf")) for ti, tau in enumerate(TL)]
                weave(krest, vfr + late, 1, True)
                vq = list(vops)
                def vstep(n):
                    kb, ti = vops[n]
                    C.wait_l(("wv", n))
                    sl_ = SLOT[n % NS]
                    a(f"v_smfmac_f32_16x16x64_bf16 v[{VACC[ti]}:{VACC[ti]+3}], v[{M(kb)}:{M(kb)+3}], v[{sl_}:{sl_+7}], v{vIDX}")
                    if n + NS < len(vops): wvr(n + NS)
                vstep(0); vstep(1)
                for f in kpost: f()
                for n in range(2, NV): vstep(n)
                C.wait_l("kw")
                a("s_barrier")
                trace(a, 5); P.stamp("barK")
                dq = dmal() if (role == "DMA" and 'nodma' not in WI) else []
                for n in range(NV, len(vops)):
                    vstep(n)
                    if dq: dq.pop(0)()
                while dq: dq.pop(0)()
                a(f"v_mov_b64 v[{R1}:{R1+1}], 0"); a(f"v_mov_b64 v[{R1+2}:{R1+3}], 0")
                for ti, tau in enumerate(TL):
                    x = VACC[ti]
                    a(f"v_pk_add_f32 v[{x}:{x+1}], v[{x}:{x+1}], v[{x+2}:{x+3}]")
                    a(f"v_cvt_pk_bf16_f32 v{x}, v{x}, v{x+1}")
                    a(f"v_mov_b32 v{x+1}, 0")
                a(f"v_mfma_f32_32x32x16_bf16 v[0:15], v[{R1}:{R1+3}], v[{R1}:{R1+3}], 0")
                a(f"v_mfma_f32_32x32x16_bf16 v[16:31], v[{R1}:{R1+3}], v[{R1}:{R1+3}], 0")
                for ti, tau in enumerate(TL):
                    a(f"v_mov_b32 v{VH[ti]}, v{VACC[ti]}")
                if par == 1:
                    a(f"s_cmp_eq_u32 s{sSTEP}, 63")
                    a(f"s_cbranch_scc1 {lend}")
                trace(a, 7)
                C.all_l()
                a("s_barrier")
                Pr=KA+4; PX=T+4
                C.lds(f"ds_read_b128 v[{Pr}:{Pr+3}], v{vKT} offset:{L_MS-L_KT}", "p0")
                C.lds(f"ds_read_b64 v[{PX}:{PX+1}], v{vKT} offset:{L_MS-L_KT+1024}", "p1")
                OO = [R0, R0+4, R0+8]
                a(f"v_add_u32 v{T}, 32768, v{vPST}"); a(f"s_add_u32 s{sT+6}, s{sSTEP}, 1"); a(f"v_mov_b32 v{T+1}, 0"); a(f"v_mov_b32 v{T+2}, s{sT+6}")
                C.wait_l("p0")
                for ti in range(len(TL)):
                    a(f"v_mfma_f32_16x16x32_bf16 v[{OO[ti]}:{OO[ti]+3}], v[{VFR[ti]}:{VFR[ti]+3}], v[{Pr}:{Pr+3}], 0")
                C.wait_l("p1")
                for ti in range(len(TL)):
                    a(f"v_mfma_f32_16x16x16_bf16 v[{OO[ti]}:{OO[ti]+3}], v[{VACC[ti]}:{VACC[ti]+1}], v[{PX}:{PX+1}], v[{OO[ti]}:{OO[ti]+3}]")
                for ti, tau in enumerate(TL):
                    o = OO[ti]
                    a(f"v_cvt_pk_bf16_f32 v{o}, v{o}, v{o+1}")
                    a(f"v_cvt_pk_bf16_f32 v{o+1}, v{o+2}, v{o+3}")
                    C.lds(f"ds_write_b64 v{vOW}, v[{o}:{o+1}] offset:{32*tau}")
                trace(a, 6)
                C.all_l()
                a("s_barrier")
                ZQ = R1
            trace(a, 2); P.stamp("barO")
            OA=KA
            for kb2 in range(2):
                C.lds(f"ds_read_b128 v[{OA+4*kb2}:{OA+4*kb2+3}], v{vOR} offset:{128*kb2}", ("oa",kb2))
            pf = [(lambda n=n: wvr(n)) for n in range(NS)] if w else []
            C.wait_l(("oa",0))
            def omf(i, kb2):
                if kb2: C.wait_l(("oa",1))
                a(f"v_smfmac_f32_16x16x64_bf16 v[{4*i}:{4*i+3}], v[{OA+4*kb2}:{OA+4*kb2+3}], v[{WO(i,kb2)}:{WO(i,kb2)+7}], v{vIDX}")
            PK = QA
            def fin(i):
                return [I(f"v_add_f32 v{4*i}, v{4*i}, v{4*i+2}"), I(f"v_add_f32 v{4*i+1}, v{4*i+1}, v{4*i+3}"),
                        I(f"v_cvt_pk_bf16_f32 v{PK+i}, v{4*i}, v{4*i+1}")]
            sl = sPB + 2*par
            order = [(0,0),(1,0),(0,1),(1,1),(2,0),(3,0),(2,1),(3,1),(4,0),(5,0),(4,1),(5,1),(6,0),(7,0),(6,1),(7,1)]
            fq = []
            for n, (i, kb2) in enumerate(order):
                omf(i, kb2)
                if n in (5, 9, 13):
                    fq += fin((n-5)//2) + fin((n-5)//2+1)
                    if n == 9: fq += [I(f"global_store_dwordx4 v{vPST}, v[{PK}:{PK+3}], s[{sl}:{sl+1}] {sc}"),
                                      I(f"global_store_dword v{T+1}, v{T+2}, s[{sFLW}:{sFLW+1}] {sc}")]
                for _ in range(2 if n >= 5 else 1):
                    if fq: fq.pop(0)()
            for f in fq: f()
            a(f"v_pk_add_f32 v[24:25], v[24:25], v[26:27]")
            a(f"v_pk_add_f32 v[28:29], v[28:29], v[30:31]")
            a(f"v_cvt_pk_bf16_f32 v{PK+6}, v24, v25")
            a(f"v_cvt_pk_bf16_f32 v{PK+7}, v28, v29")
            a(f"global_store_dwordx4 v{T}, v[{PK+4}:{PK+7}], s[{sl}:{sl+1}] {sc}")
            a(f"global_store_dword v{T+1}, v{T+2}, s[{sFLW}:{sFLW+1}] offset:128 {sc}")
            trace(a, 3); P.stamp("outp")
            if role == "R":
                for f in pf: f()
            if role == "R":
                RB=0; BS=VA; D=KA
                a(f"v_lshrrev_b32 v{T+4}, 2, v{vL16}")
                a(f"v_and_b32 v{T+4}, 127, v{T+4}")
                a(f"global_load_dword v{T+5}, v{T+4}, s[{sFLR}:{sFLR+1}] sc1")
                for d in range(4):
                    a(f"v_cndmask_b32 v{BS+d}, 0, v{vSELX}, s[{sSEL+2*d}:{sSEL+2*d+1}]")
                for i in range(1, 4): a(f"v_add_u32 v{T+i}, {8192*i}, v{vPRD}")
                for r in range(QA, QA+8, 2): a(f"v_mov_b64 v[{r}:{r+1}], 0")
                a(f"v_mov_b64 v[{VA+4}:{VA+5}], 0"); a(f"v_mov_b64 v[{VA+6}:{VA+7}], 0")
                rotate()
                sadd64(a, sVM, sVM, 65536)
                lp = a.newlabel("c_pollp"); lslow = a.newlabel("c_slow"); lok = a.newlabel("c_ok")
                if 'nortt' in WI:
                    trace(a, 1)
                    a("s_waitcnt vmcnt(0)")
                    trace(a, 5)
                if 'nohop' in WI: trace(a, 5)
                ll = a.newlabel("c_light"); lgo = a.newlabel("c_go")
                LT = T+5
                a.label(ll)
                a("s_waitcnt vmcnt(0)")
                a(f"v_cmp_eq_u32 vcc, s{sT+6}, v{LT}")
                a(f"global_load_dword v{LT}, v{T+4}, s[{sFLR}:{sFLR+1}] sc1")
                a(f"s_bcnt1_i32_b32 s{sT}, vcc_lo")
                a(f"s_cmp_lt_u32 s{sT}, {SPEC_T}")
                a(f"s_cbranch_scc1 {retry_stub(ll)}")
                if 'nohop' in WI: trace(a, 6)
                a.label(lp)
                for i in range(8):
                    base = vPRD if i < 2 else T + (i >> 1)
                    sb = sl if (i & 1) == 0 else sPBr + 2*par
                    a(f"global_load_dwordx4 v[{RB+4*i}:{RB+4*i+3}], v{base}, s[{sb}:{sb+1}] sc1")
                a("s_waitcnt vmcnt(8)")
                a(f"v_cmp_ne_u32 vcc, s{sT+6}, v{LT}")
                lre = a.newlabel("c_re")
                a(f"s_cbranch_vccnz {lre}")
                redo.append((lre, lp, T+4, LT))
                if 'nohop' in WI: trace(a, 7)
                for i in range(8):
                    a(f"s_waitcnt vmcnt({7-i})")
                    c = "0" if i == 0 else f"v[{D}:{D+3}]"
                    a(f"v_mfma_f32_16x16x32_bf16 v[{D}:{D+3}], v[{RB+4*i}:{RB+4*i+3}], v[{BS}:{BS+3}], {c}")
                a(f"s_mov_b64 exec, s[{sPUBM}:{sPUBM+1}]")
                a(f"v_pk_add_f32 v[{D+4}:{D+5}], v[{D}:{D+1}], v[{D+2}:{D+3}]")
                a(f"v_cmp_u_f32 vcc, v{D+4}, v{D+5}")
                a(f"v_cvt_pk_bf16_f32 v{D}, v{D}, v{D+1}")
                a(f"v_cvt_pk_bf16_f32 v{D+1}, v{D+2}, v{D+3}")
                a(f"v_min_u32 v{D}, -2, v{D}")
                a(f"v_min_u32 v{D+1}, -2, v{D+1}")
                a(f"s_cbranch_vccnz {lslow}")
                a.label(lok)
                a(f"global_store_dwordx2 v{vPUB}, v[{D}:{D+1}], s[{sMB}:{sMB+1}] {sc}")
                trace(a, 4)
                a("s_barrier")
                a(f"v_mov_b64 v[{D+2}:{D+3}], -1")
                a(f"global_store_dwordx2 v{vPUB}, v[{D+2}:{D+3}], s[{sMB+4}:{sMB+5}] {sc}")
                if dump:
                    sadd64(a, sDUMP, sDUMP, 8192)
                    a(f"global_store_dwordx2 v{vPUB}, v[{D}:{D+1}], s[{sDUMP}:{sDUMP+1}]")
                a("s_mov_b64 exec, -1")
                trace_flush(a)
                if PSL: a(f"s_sleep {PSL}")
                mloads()
                for r in range(KA, KA+12, 2): a(f"v_mov_b64 v[{r}:{r+1}], 0")
                a(f"s_add_u32 s{sSTEP}, s{sSTEP}, 1")
                slow.append((lslow, lp, lok))
            else:
                if role == "PUB": sadd64(a, sKM, sKM, 131072)
                if role == "DMA":
                    sadd64(a, sKF, sKF, 262144)
                    a(f"v_lshlrev_b32 v{T+5}, 3, v{vL16}")
                    if par == 1 and kvflags:
                        lok2 = a.newlabel("c_fok")
                        a(f"v_cmp_le_u32 vcc, {KV_TARGET}, v{vFLG}")
                        a(f"s_cbranch_vccnz {lok2}")
                        wait_flag_spin(sFOFF)
                        a.label(lok2)
                        a(f"s_add_u32 s{sFOFF}, s{sFOFF}, 128")
                        a(f"s_min_u32 s{sFOFF}, s{sFOFF}, {F_KVRDY+31*128}")
            if role != "R":
                sadd64(a, sVM, sVM, 65536)
                rotate()
                trace_flush(a)
                a(f"s_add_u32 s{sSTEP}, s{sSTEP}, 1")
                a(f"v_mfma_f32_32x32x16_bf16 v[{QA}:{QA+15}], v[{ZQ}:{ZQ+3}], v[{ZQ}:{ZQ+3}], 0")
                for x in VACC:
                    a(f"v_mfma_f32_16x16x32_bf16 v[{x}:{x+3}], v[{ZQ}:{ZQ+3}], v[{ZQ}:{ZQ+3}], 0")
                for f in pf: f()
                if role == "PUB":
                    a(f"ds_read_b128 v[{M(KB[6])}:{M(KB[6])+3}], v{vFLG}")
                    a(f"ds_read_b128 v[{M(KB[7])}:{M(KB[7])+3}], v{vFLG} offset:{4*RS}")
                    a("s_waitcnt lgkmcnt(0)")
                a("s_barrier")
                if PSL: a(f"s_sleep {PSL}")
                mloads()
            a.flush_hazards()
        a(f"s_branch {lchk0}")
    for (l, lc, ml) in ptail:
        a.label(l)
        ml()
        a(f"s_branch {lc}")
    for (l, lback) in tails:
        a.label(l)
        a(f"s_add_u32 s{sSPIN}, s{sSPIN}, 1")
        a(f"s_cmp_lt_u32 s{sSPIN}, 0x80000")
        a(f"s_cbranch_scc1 {lback}")
        a("s_branch L_fail")
    for (l, lp, va, lt) in redo:
        a.label(l); a.hist=[]
        a(f"global_load_dword v{lt}, v{va}, s[{sFLR}:{sFLR+1}] sc1")
        a(f"s_add_u32 s{sSPIN}, s{sSPIN}, 1")
        a(f"s_cmp_lt_u32 s{sSPIN}, 0x80000")
        a(f"s_cbranch_scc1 {lp}")
        a("s_branch L_fail")
    for (l, lp, lok) in slow:
        a.label(l); a.hist=[]
        a("s_mov_b64 exec, -1")
        a(f"s_add_u32 s{sSPIN}, s{sSPIN}, 1")
        a(f"s_cmp_gt_u32 s{sSPIN}, 0x80000")
        a("s_cbranch_scc1 L_fail")
        a(f"s_and_b32 s{sT}, s{sSPIN}, 31")
        a(f"s_cmp_lg_u32 s{sT}, 0")
        a(f"s_cbranch_scc1 {lp}")
        a(f"s_mov_b32 s{sT}, {SENT}")
        a(f"s_mov_b64 s[{sT+2}:{sT+3}], 0")
        for r in range(32):
            a(f"v_cmp_eq_u32 vcc, s{sT}, v{r}")
            a(f"s_or_b64 s[{sT+2}:{sT+3}], s[{sT+2}:{sT+3}], vcc")
        a(f"s_cmp_lg_u64 s[{sT+2}:{sT+3}], 0")
        a(f"s_cbranch_scc1 {lp}")
        a(f"s_mov_b64 exec, s[{sPUBM}:{sPUBM+1}]")
        a(f"s_branch {lok}")
    for (l, lr) in fbk:
        a.label(l); a.hist=[]
        a("s_nop 7")
        SM=KA; S0=QA; Pr=KA+4; tt=T+1; d=T
        a(f"v_max_f32 v{d}, v{SM}, v{SM+1}")
        xl(a, d, tt, "v_max_f32")
        a(f"v_max_f32 v{d}, 0, v{d}")
        a(f"v_sub_f32 v{SM}, v{SM}, v{d}")
        a(f"v_sub_f32 v{SM+1}, v{SM+1}, v{d}")
        a(f"v_sub_f32 v{d}, 0, v{d}")
        a(f"v_exp_f32 v{d}, v{d}")
        for r in range(8): a(f"v_mul_f32 v{S0+r}, v{S0+r}, v{d}")
        a(f"s_branch {lr}")
    a.label(lend)
    a.flush_hazards()
    if STAMP[0]: a(f"s_memtime s[{sT0+2}:{sT0+3}]")
    l0 = a.newlabel("c_fin")
    sadd64(a, sVM, sVM, 65536)
    for w in range(1, 4):
        lx = a.newlabel("c_fv")
        a(f"s_cmp_lg_u32 s{S_WAVE}, {w}")
        a(f"s_cbranch_scc1 {lx}")
        if w == 1:
            sadd64(a, sKM, sKM, 131072)
            a(f"ds_read_b128 v[0:3], v{vFLG}")
            a(f"ds_read_b128 v[4:7], v{vFLG} offset:{4*RS}")
            a("s_waitcnt lgkmcnt(0)")
            a(f"global_store_dwordx4 v{vL16}, v[0:3], s[{sKM}:{sKM+1}] sc1")
            a(f"global_store_dwordx4 v{vL16}, v[4:7], s[{sKM}:{sKM+1}] offset:1024 sc1")
        for ti, tau in enumerate([[], [0,1,2], [3,4,5], [6,7]][w]):
            a(f"global_store_dword v{vVXW}, v{[vQR, vKR, vVOFF][ti]}, s[{sVM}:{sVM+1}] offset:{256*tau} sc1")
        a.label(lx)
    a("s_waitcnt vmcnt(0) lgkmcnt(0)")
    a("s_barrier")
    a(f"s_cmp_lg_u32 s{S_WAVE}, 1")
    a(f"s_cbranch_scc1 {l0}")
    a(f"v_mov_b32 v{T}, s{sPRG}")
    a(f"v_mov_b32 v{T+2}, 64")
    a(f"global_store_dword v{T}, v{T+2}, s[{S_WS}:{S_WS+1}] sc1")
    a.label(l0)
    a("s_waitcnt lgkmcnt(0) vmcnt(0)")
    return P
```

```python
import sys
from asmlib import *
from layout import *
import bulk, ef, final
import chain7 as chain
from bulk import S_XCC, sT
import os
WB = bool(os.environ.get('WB'))
KNAME = "adaLN_cond__memory_aug_recurrent_mem_tr__moe_arch_mod__prompt"
def gen(force_fallback=False, dump=False):
    a = Asm()
    a.label("L_code_start")
    a("s_getpc_b64 s[90:91]")
    bulk.startup(a)
    a(f"s_cmp_lg_u32 s{S_WAVE}, 3")
    a("s_cbranch_scc1 L_nowarm")
    a(f"s_cmp_lt_u32 s{S_TK}, 96")
    a("s_cbranch_scc1 L_nowarm")
    a(f"s_and_b32 s70, s{S_RANK}, 7")
    a("s_cmp_lg_u32 s70, 7")
    a("s_cbranch_scc1 L_nowarm")
    a("v_and_b32 v1, 63, v0")
    a("v_lshlrev_b32 v1, 7, v1")
    a.raw("    s_mov_b32 s70, L_code_end - L_code_start - 128")
    a.label("L_warm")
    a("v_min_u32 v3, s70, v1")
    a("global_load_dword v249, v3, s[90:91]")
    a("v_add_u32 v1, 0x2000, v1")
    a("v_readfirstlane_b32 s71, v1")
    a("s_cmp_lt_u32 s71, s70")
    a("s_cbranch_scc1 L_warm")
    a.label("L_nowarm")
    a.flush_hazards()
    TS(a, 0)
    a(f"s_cmp_lt_u32 s{S_TK}, 224")
    a("s_cbranch_scc1 L_bulk")
    a(f"s_cmp_eq_u32 s{S_TK}, 0xffff")
    a("s_cbranch_scc1 L_chain")
    bulk.decide(a, force_fallback)
    a(f"s_min_u32 s{sT+8}, s{sT+8}, {os.environ.get('TH','32')}")
    a(f"s_add_u32 s{S_VR}, s{sT+8}, s{S_TK}")
    a(f"s_sub_u32 s{S_VR}, s{S_VR}, 224")
    a(f"s_mov_b32 s{S_VX}, 0")
    a(f"s_cmp_ge_u32 s{S_VR}, 32")
    a("s_cbranch_scc1 L_fail")
    a.label("L_chain")
    a.flush_hazards()
    chain.lane_consts(a)
    chain.setup_weights(a)
    bulk.decide(a, force_fallback)
    TS(a, 1, vt=0)
    a(f"s_cmp_eq_u32 s{S_MODE}, 0")
    a("s_cbranch_scc1 L_chain0")
    chain.chain_main(a, "sc1", dump=dump)
    a("s_endpgm")
    a.label("L_chain0")
    a.flush_hazards()
    chain.chain_main(a, "", dump=dump)
    TS(a, 2, vt=0)
    if TS_ENABLED[0]:
        a(f"s_sub_u32 s70, s{chain.sT0+2}, s{chain.sT0}")
        a("v_mov_b32 v1, 0")
        a("v_mov_b32 v2, s70")
        a(f"global_store_dword v1, v2, s[{S_DBG}:{S_DBG+1}] offset:64")
    a("s_endpgm")
    a.label("L_bulk")
    a.flush_hazards()
    sB = 50
    a(f"s_sub_u32 s{sB}, s{S_TK}, 32")
    TS(a, 1)
    a(f"s_cmp_lt_u32 s{S_TK}, 32")
    a("s_cbranch_scc1 L_front")
    a(f"s_cmp_ge_u32 s{sB}, 64")
    a("s_cbranch_scc1 L_gonly")
    bulk.ln1_all(a, sB)
    bulk.gemm_pre(a, sB, True)
    a("s_branch L_gemm")
    a.label("L_gonly")
    a.flush_hazards()
    a(f"s_sub_u32 s{sB}, s{sB}, 64")
    bulk.gemm_pre(a, sB, False)
    a.label("L_gemm")
    a.flush_hazards()
    TS(a, 2)
    bulk.gemm_stage(a)
    TS(a, 4)
    a("s_branch L_ef")
    a.label("L_front")
    a.flush_hazards()
    bulk.mod_stage(a)
    TS(a, 8)
    a.label("L_ef")
    a.flush_hazards()
    bulk.decide(a, force_fallback)
    a(f"s_cmp_eq_u32 s{S_MODE}, 0")
    a("s_cbranch_scc1 L_efn")
    a(f"s_lshr_b32 s{S_VX}, s{S_TK}, 5")
    a(f"s_add_u32 s{S_VX}, s{S_VX}, 1")
    a(f"s_and_b32 s{S_VR}, s{S_TK}, 31")
    a.label("L_efn")
    a(f"s_cmp_ge_u32 s{S_VR}, 32")
    a("s_cbranch_scc1 L_fail")
    a(f"s_sub_u32 s{sT}, s{S_VX}, 1")
    a(f"s_cmp_ge_u32 s{sT}, 7")
    a("s_cbranch_scc1 L_fail")
    a(f"s_cmp_lg_u32 s{S_VX}, {FIN_UNIT}")
    a("s_cbranch_scc1 L_efs")
    final.ffn_preload(a)
    a.label("L_efs")
    a.flush_hazards()
    ef.ef_setup(a)
    TS(a, 5)
    a(f"s_cmp_lg_u32 s{S_MODE}, 0")
    a("s_cbranch_scc1 L_ef1")
    for sc, lab in (("", None), ("sc1", "L_ef1")):
        if lab: a.label(lab); a.flush_hazards()
        ef.ef_loop(a, sc)
        if WB:
            lwb = a.newlabel("wb")
            a(f"s_cmp_lg_u32 s{S_WAVE}, 0")
            a(f"s_cbranch_scc1 {lwb}")
            a(f"s_cmp_lg_u32 s{S_VR}, 0")
            a(f"s_cbranch_scc1 {lwb}")
            a("buffer_wbl2 sc1")
            a.label(lwb)
        a(f"s_cmp_lg_u32 s{S_VX}, {FIN_UNIT}")
        a("s_cbranch_scc1 L_exit")
        TS(a, 6)
        final.final_stage(a, sc)
        TS(a, 7)
        a("s_endpgm")
    a.label("L_fail")
    a("s_mov_b64 exec, -1")
    a("v_mov_b32 v1, 0")
    a("v_mov_b32 v2, 0xdead")
    a(f"global_store_dword v1, v2, s[{S_DBG}:{S_DBG+1}] offset:252")
    a.label("L_exit")
    a("s_endpgm")
    a.label("L_code_end")
    return a
def write(path, a):
    hdr = open(f"cdna_kernels/{KNAME}.s.ref").read().split("; Override launch geometry")[0]
    txt = hdr + f"""; @launch grid=(256,1,1) block=(256,1,1) lds=163840
.amdgcn_target "amdgcn-amd-amdhsa--gfx950"
; One persistent launch, 256 workgroups (1 per CU), roles assigned at run time (generated by a python script):
;  * chain  : 32 workgroups that registered on one XCD (checked through HW_REG_XCC_ID, otherwise a write-through
;             variant of the same code runs) keep Wq/Wk/Wo in registers and Wv in LDS and walk the 64-step memory
;             recurrence; 2:4 sparse MFMA packs the 8 memory rows x 2 K-halves into the 16 MFMA rows.
;  * bulk   : mod (silu(c) @ w_mod), LN1, token Q/K/V GEMM, then per-segment token attention + out-projection +
;             residual + LN2 + router score, finally top-2 FFN fix-up of the two selected rows.
.text
.globl {KNAME}_kernel
.p2align 8
.type {KNAME}_kernel,@function
{KNAME}_kernel:
{a.text()}
.section .rodata,"a"
.p2align 6
.amdhsa_kernel {KNAME}_kernel
  .amdhsa_next_free_vgpr 512
  .amdhsa_next_free_sgpr 102
  .amdhsa_accum_offset 256
  .amdhsa_group_segment_fixed_size 0
  .amdhsa_kernarg_size 136
  .amdhsa_user_sgpr_count 2
  .amdhsa_user_sgpr_kernarg_segment_ptr 1
  .amdhsa_system_sgpr_workgroup_id_x 1
.end_amdhsa_kernel
"""
    open(path, "w").write(txt)
if __name__ == "__main__":
    fb = "fb" in sys.argv; dump = "dump" in sys.argv
    TS_ENABLED[0] = "ts" in sys.argv
    chain.STAMP[0] = TS_ENABLED[0]
    a = gen(fb, dump)
    print("instrs", a.ninstr, "nops", a.nops_inserted)
    out = [x for x in sys.argv[1:] if x.endswith(".s")]
    write(out[0] if out else f"cdna_kernels/{KNAME}.s", a)
```
